```python
import torch

def _softmax(x, axis=-1):
    return torch.softmax(x, dim=axis)
def _gelu(x):
    return torch.nn.functional.gelu(x, approximate="tanh")
def _silu(x):
    return torch.nn.functional.silu(x)
def _sigmoid(x):
    return torch.sigmoid(x)
def _layernorm(x, axis=-1, eps=1e-5):
    m = x.mean(dim=axis, keepdim=True)
    v = x.var(dim=axis, keepdim=True, unbiased=False)
    return (x - m) / torch.sqrt(v + eps)
def _scatter_add(tgt, idx, src, axis=0):
    return tgt.clone().index_add_(axis, idx, src)
def _segment_sum(src, seg, n):
    out = torch.zeros((n,) + src.shape[1:], dtype=src.dtype)
    return out.index_add_(0, seg, src)
def _pad(x, pw):
    flat = tuple(v for pair in reversed(pw) for v in pair)
    return torch.nn.functional.pad(x, flat)

kernel_name = 'gated_mix__spectral_fnet__mha_block__prompt'

def setup_inputs():

    _w = (lambda a: (lambda t: t.to(torch.bfloat16) if t.is_floating_point() else t)(torch.as_tensor(a)))
    def _A_setup():
        B, S, D = 1, 2048, 1024
        ns = torch.arange(S)[:, None] * torch.arange(S)[None, :]
        nd = torch.arange(D)[:, None] * torch.arange(D)[None, :]
        Ws_re = torch.cos(-2.0 * torch.pi * ns / S).to(float)
        Ws_im = torch.sin(-2.0 * torch.pi * ns / S).to(float)
        Wd_re = torch.cos(-2.0 * torch.pi * nd / D).to(float)
        Wd_im = torch.sin(-2.0 * torch.pi * nd / D).to(float)
        return {
            "x": _w((lambda *s: torch.randn(*s, dtype=torch.bfloat16) * 0.05)(B, S, D)),
            "dft_seq_re": _w(Ws_re),
            "dft_seq_im": _w(Ws_im),
            "dft_hid_re": _w(Wd_re),
            "dft_hid_im": _w(Wd_im),
        }
    _A_in = _A_setup()

    def _B_setup():
        B, S, D, H = 1, 2048, 1024, 32
        return {
            "x": _w((lambda *s: torch.randn(*s, dtype=torch.bfloat16) * 0.05)(B, S, D)),
            "wqkv": _w((lambda *s: torch.randn(*s, dtype=torch.bfloat16) * 1.6)(D, 3 * D)),
            "wo": _w((lambda *s: torch.randn(*s, dtype=torch.bfloat16) * 0.2)(D, D)),
        }
    _B_in = _B_setup()

    return {
        "A_x": _A_in["x"],
        "A_dft_seq_re": _A_in["dft_seq_re"],
        "A_dft_seq_im": _A_in["dft_seq_im"],
        "A_dft_hid_re": _A_in["dft_hid_re"],
        "A_dft_hid_im": _A_in["dft_hid_im"],
        "B_x": _B_in["x"],
        "B_wqkv": _B_in["wqkv"],
        "B_wo": _B_in["wo"],
        "gate_w": _w((lambda *s: torch.randn(*s, dtype=torch.bfloat16) * 0.05)(1024) * 16.0),
    }

def reference(A_x, A_dft_seq_re, A_dft_seq_im, A_dft_hid_re, A_dft_hid_im, B_x, B_wqkv, B_wo, gate_w):
    def _A_ref(x, dft_seq_re, dft_seq_im, dft_hid_re, dft_hid_im):
        a = torch.einsum("bsd,ed->bse", x, dft_hid_re)
        b = torch.einsum("bsd,ed->bse", x, dft_hid_im)
        y = torch.einsum("ts,bse->bte", dft_seq_re, a) - torch.einsum("ts,bse->bte", dft_seq_im, b)
        return y

    def _B_ref(x, wqkv, wo):
        B, S, D = x.shape
        H = 32
        Dh = D // H
        qkv = (lambda x, *d: x.permute(*d))((x @ wqkv).reshape(B, S, 3, H, Dh), 2, 0, 3, 1, 4)
        q, k, v = qkv[0], qkv[1], qkv[2]
        scores = torch.einsum("bhqd,bhkd->bhqk", q, k) * (Dh ** -0.5)
        p = _softmax(scores, axis=-1)
        o = torch.einsum("bhqk,bhkd->bhqd", p, v)
        return (lambda x, *d: x.permute(*d))(o, 0, 2, 1, 3).reshape(B, S, D) @ wo

    x = A_x
    g = _sigmoid((x * gate_w).sum(-1, keepdims=True))
    a = _A_ref(x, A_dft_seq_re, A_dft_seq_im, A_dft_hid_re, A_dft_hid_im)
    b = _B_ref(x, B_wqkv, B_wo)
    return g * a + (1 - g) * b
```

```python
import re

TRANS = ("v_exp_", "v_log_", "v_rcp_", "v_rsq_", "v_sqrt_", "v_sin_", "v_cos_")

def _split_ops(s):
    out, depth, cur = [], 0, ""
    for ch in s:
        if ch == "[": depth += 1
        if ch == "]": depth -= 1
        if ch == "," and depth == 0:
            out.append(cur.strip()); cur = ""
        else:
            cur += ch
    if cur.strip(): out.append(cur.strip())
    return out

_reg_re = re.compile(r"^-?\|?([vsa])(\d+)\|?$")
_rng_re = re.compile(r"^-?\|?([vsa])\[(\d+):(\d+)\]\|?$")

def regs_of(tok):
    tok = tok.strip()
    m = _reg_re.match(tok)
    if m: return {(m.group(1), int(m.group(2)))}
    m = _rng_re.match(tok)
    if m: return {(m.group(1), i) for i in range(int(m.group(2)), int(m.group(3)) + 1)}
    if tok in ("vcc", "vcc_lo", "vcc_hi"): return {("s", "vcc")}
    if tok in ("exec", "exec_lo", "exec_hi"): return {("s", "exec")}
    if tok == "m0": return {("s", "m0")}
    return set()

class Ins:
    __slots__ = ("text", "op", "kind", "w", "r", "srcc", "srcab", "passes", "states", "label", "target",
                 "dpp", "sdwa", "lds", "wide_store", "sdata", "dot", "trans", "dreg")
    def __init__(self, text):
        self.text = text
        self.label = None; self.target = None
        self.w = set(); self.r = set(); self.srcc = set(); self.srcab = set()
        self.passes = 0; self.states = 1; self.dpp = False; self.sdwa = False; self.lds = False
        self.wide_store = False; self.sdata = set(); self.dot = False; self.trans = False; self.dreg = None
        t = text.split(";")[0].strip()
        if t.endswith(":"):
            self.kind = "label"; self.label = t[:-1]; self.op = ""; self.states = 0; return
        if t.startswith(".") or not t:
            self.kind = "dir"; self.op = ""; self.states = 0; return
        parts = t.split(None, 1)
        op = parts[0]; rest = parts[1] if len(parts) > 1 else ""
        self.op = op
        ops = _split_ops(rest)
        mods = ""
        if ops:
            last = ops[-1].split(None, 1)
            if len(last) > 1:
                ops[-1] = last[0]; mods = last[1]
        R = [regs_of(o) for o in ops]
        allr = lambda lst: set().union(*lst) if lst else set()
        if op.startswith("v_mfma") or op.startswith("v_smfmac"):
            self.kind = "mfma"
            self.w = R[0]; self.dreg = ops[0]
            if op.startswith("v_smfmac"):
                self.srcab = R[1] | R[2] | R[3]; self.srcc = R[0]
            else:
                self.srcab = R[1] | R[2]; self.srcc = R[3]
            self.r = self.srcab | self.srcc
            self.passes = 8 if "32x32" in op else 4
            if op.startswith("v_smfmac"):
                self.passes = 8 if "32x32" in op else 4
        elif op.startswith("v_"):
            self.kind = "valu"
            self.trans = op.startswith(TRANS)
            self.dot = op.startswith("v_dot")
            self.dpp = ("_dpp" in op) or ("row_" in mods) or ("quad_perm" in mods) or ("wave_" in mods)
            self.sdwa = ("_sdwa" in op) or ("op_sel" in mods)
            if op.startswith("v_cmpx"):
                self.w = R[0] | {("s", "exec")}; self.r = allr(R[1:])
            elif op.startswith("v_permlane") and "swap" in op:
                self.w = R[0] | R[1]; self.r = R[0] | R[1]
            elif "_co_" in op:
                self.w = R[0] | R[1]; self.r = allr(R[2:])
            elif op == "v_nop":
                pass
            else:
                self.w = R[0]; self.r = allr(R[1:])
                if op.startswith(("v_fmac", "v_mac", "v_dot2c", "v_dot4c", "v_writelane", "v_pk_fmac")) or self.sdwa or self.dpp:
                    self.r |= R[0]
        elif op.startswith("ds_"):
            self.kind = "ds"
            if op.startswith(("ds_read", "ds_bpermute", "ds_permute", "ds_swizzle")) or "_rtn" in op:
                self.w = R[0]; self.r = allr(R[1:])
            else:
                self.r = allr(R)
        elif op.startswith(("buffer_", "global_")):
            self.kind = "vmem"
            m = mods.split()
            self.lds = "lds" in m
            if op.startswith(("buffer_inv", "buffer_wbl2")):
                pass
            elif "load" in op:
                if self.lds:
                    self.r = allr(R) | {("s", "m0")}
                else:
                    self.w = R[0]; self.r = allr(R[1:])
                    if "d16" in op: self.r |= R[0]
            elif "store" in op:
                self.r = allr(R)
                d = R[0] if op.startswith("buffer_") else R[1]
                if "x3" in op or "x4" in op:
                    self.wide_store = True; self.sdata = d
            elif "atomic" in op:
                self.r = allr(R)
                if "sc0" in m: self.w = R[0]
        elif op.startswith("s_"):
            self.kind = "salu"
            if op == "s_nop":
                self.states = int(ops[0], 0) + 1
            elif op.startswith(("s_cbranch", "s_branch")):
                self.target = ops[0]
            elif op.startswith(("s_cmp", "s_waitcnt", "s_barrier", "s_endpgm", "s_sleep", "s_setprio", "s_bitcmp")):
                self.r = allr(R)
            elif op.startswith(("s_load", "s_memtime", "s_memrealtime", "s_buffer_load")):
                self.kind = "smem"; self.w = R[0]; self.r = allr(R[1:])
            else:
                self.w = R[0]; self.r = allr(R[1:])
                if "saveexec" in op: self.w |= {("s", "exec")}
        else:
            raise ValueError("unknown instruction: " + text)

def vonly(s): return {x for x in s if x[0] in "va"}
def sonly(s): return {x for x in s if x[0] == "s"}

def need(p, c):
    n = 0
    if p.kind == "valu":
        pv = vonly(p.w); ps = sonly(p.w)
        if c.kind == "mfma":
            if pv & c.r: n = max(n, 3 if p.dot else 2)
            if ("s", "exec") in ps: n = max(n, 4)
        if c.kind == "valu":
            if p.trans and (pv & c.r) : n = max(n, 1)
            if p.sdwa and (pv & (c.r | c.w)): n = max(n, 1)
            if p.dot and (pv & (c.r | c.w)):
                n = max(n, 3) if not (c.op == p.op and not (pv & (c.r - c.w)) ) else n
            if c.dpp and (pv & c.r): n = max(n, 2)
            if c.op.startswith("v_permlane") and (pv & c.r): n = max(n, 2)
            if c.op.startswith(("v_readlane", "v_readfirstlane")) and (pv & c.r): n = max(n, 1)
            if ps & c.r:
                n = max(n, 4 if c.op.startswith(("v_readlane", "v_writelane")) else 2)
            if ("s", "exec") in ps:
                if c.dpp: n = max(n, 5)
                if c.op.startswith(("v_readlane", "v_readfirstlane", "v_writelane", "v_permlane")): n = max(n, 4)
        if c.kind in ("vmem", "ds") and p.dot and (pv & c.r): n = max(n, 3)
        if c.kind == "vmem" and (ps & c.r): n = max(n, 5)
        if c.kind == "salu" and c.op.startswith("s_cbranch_vcc") and ("s", "vcc") in ps: n = max(n, 5)
        if c.kind == "salu" and c.op.startswith("s_cbranch_exec") and ("s", "exec") in ps: n = max(n, 5)
    elif p.kind == "mfma":
        big = p.passes == 8
        if c.kind == "mfma":
            if p.w & c.srcc:
                same = (c.srcc == p.w and c.passes == p.passes)
                if not same: n = max(n, 10 if big else 6)
            if p.w & c.srcab: n = max(n, 12 if big else 8)
            if (p.w & c.w) and not (c.srcc == p.w and c.passes == p.passes):
                n = max(n, 10 if big else 6)
        elif c.kind in ("valu", "vmem", "ds"):
            if p.w & (c.r | c.w): n = max(n, 12 if big else 8)
            if c.kind == "valu" and (p.srcc & c.w): n = max(n, 7 if big else 3)
            if c.kind in ("vmem", "ds") and (p.srcc & c.w): n = max(n, 7 if big else 3)
    elif p.kind == "salu":
        if ("s", "m0") in p.w and c.kind == "vmem" and c.lds: n = max(n, 1)
    elif p.kind == "vmem":
        if p.wide_store and (p.sdata & c.w): n = max(n, 2)
    return n

class Asm:
    def __init__(self):
        self.ins = []
        self.vm = []
        self.lg = []
        self.nops = 0
        self._lab = 0
    def newlabel(self, base="L"):
        self._lab += 1
        return f"{base}_{self._lab}"
    def raw(self, text):
        self.ins.append(Ins(text))
    def _required(self, hist, c):
        dist = 0; req = 0
        for p in reversed(hist):
            if p.kind in ("label", "dir"): continue
            k = need(p, c)
            if k > dist: req = max(req, k - dist)
            dist += p.states
            if dist >= 20: break
        return req
    def e(self, text, tag=None):
        for line in text.strip().split("\n"):
            line = line.strip()
            if not line: continue
            c = Ins(line)
            if c.kind not in ("label", "dir"):
                r = self._required(self.ins[-40:], c)
                while r > 0:
                    k = min(r, 16)
                    self.ins.append(Ins(f"s_nop {k-1}")); self.nops += 1
                    r -= k
            self.ins.append(c)
            if c.kind == "vmem": self.vm.append(tag)
            if c.kind == "ds": self.lg.append(tag)
            if c.op == "s_waitcnt":
                m = re.search(r"vmcnt\((\d+)\)", line)
                if m:
                    k = int(m.group(1)); self.vm = self.vm[-k:] if k else []
                m = re.search(r"lgkmcnt\((\d+)\)", line)
                if m:
                    k = int(m.group(1)); self.lg = self.lg[-k:] if k else []
    def _cnt(self, lst, tags):
        if not isinstance(tags, (list, set)): tags = [tags]
        last = -1
        for i, t in enumerate(lst):
            if t in tags: last = i
        if last < 0: return None
        return len(lst) - 1 - last
    def wait(self, vm=None, lg=None):
        parts = []
        if vm is not None:
            k = self._cnt(self.vm, vm)
            if k is not None: parts.append(f"vmcnt({min(k,63)})")
        if lg is not None:
            k = self._cnt(self.lg, lg)
            if k is not None: parts.append(f"lgkmcnt({min(k,15)})")
        if parts: self.e("s_waitcnt " + " ".join(parts))
    def verify_edges(self):
        lab = {i.label: n for n, i in enumerate(self.ins) if i.kind == "label"}
        bad = 0
        for n, i in enumerate(self.ins):
            if i.target is None: continue
            t = lab[i.target]
            hist = self.ins[max(0, n - 40):n + 1]
            cnt = 0
            for c in self.ins[t:t + 40]:
                if c.kind in ("label", "dir"): continue
                r = self._required(hist, c)
                if r > 0:
                    print(f"HAZARD across branch '{i.text}' -> '{c.text}' needs {r} more"); bad += 1
                hist = hist + [c]
                cnt += c.states
                if cnt >= 20 or c.op in ("s_branch", "s_endpgm"): break
        if bad: raise SystemExit("hazards across branches")
    def text(self):
        out = []
        for i in self.ins:
            out.append(i.text if i.kind == "label" else "    " + i.text)
        return "\n".join(out) + "\n"

def vr(a, n=1): return f"v{a}" if n == 1 else f"v[{a}:{a+n-1}]"
def sr(a, n=1): return f"s{a}" if n == 1 else f"s[{a}:{a+n-1}]"
```

```python
import sys, math, struct
from asmlib import Asm, vr, sr

NAME = "gated_mix__spectral_fnet__mha_block__prompt"
MB = 1 << 20
WS_KV = 0
WS_OF = 8 * MB
WS_XF = 12 * MB
XSTR = 0x84000
WS_UV = 15 * MB
UVSTR = 33 * 16384
WS_WF = 18 * MB
WS_SM = 20 * MB
WS_GP = WS_SM
WS_XE = WS_SM + 0x10000
WS_ZC = WS_SM + 0x20000
ZSTR = 0x10000
OOB = 0x40000000
WS_FL = 21 * MB
WS_ST = 22 * MB
WS_CF = 24 * MB
WS_DF = 26 * MB
WS_SIZE = 28 * MB
FL_KV = WS_FL
FL_0 = WS_FL + 0x4000
FL_O = WS_FL + 0x8000
FL_A = WS_FL + 0xC000

def f2u(x): return struct.unpack("<I", struct.pack("<f", x))[0]

class Cfg:
    stamps = False

def srd(a, d, koff, size):
    a.e(f"s_load_dwordx2 {sr(d,2)}, s[0:1], {koff}")
    a.e(f"s_mov_b32 s{d+2}, {hex(size)}")
    a.e(f"s_mov_b32 s{d+3}, 0x20000")

sX, sW, sWS, sDBG = 8, 12, 16, 20
sWAVE, sR, sH, sTAG = 3, 4, 5, 6
sT0, sT1, sT2, sT3 = 24, 25, 26, 27
sWo = 28
sWl, sXl, sXs = 31, 32, 33
sKVo, sF1o, sOFo = 34, 35, 36
sKVl = 37
sG = 38
sSpin = 39
sKVsrc = 40
sSlot = 41
sC1, sC2 = 42, 43
sGW, sWO, sMS, sMD, sOUT = 44, 48, 52, 56, 60
sRow = 98
sS = 7
sSTAMP = 78
sJ = 64
vLANE, vL16 = 1, 2
vXd = 4
vWd = 8
vWr = 9
vXr = 10
vT = 14
vAQ, vAK, vAV = 32, 48, 64
vXf = 80
vWf = 112
vS = [32, 48]
vO = 64
vM = 80
vQ = 96
vK = 104
vV = 112
vP = 120
vLs = 128
vSel = 132
vKVa = 3
NVGPR = 256

class Stamper:
    def __init__(self, a): self.a = a; self.n = 0
    def __call__(self):
        if not Cfg.stamps: return
        self.a.e(f"s_memtime s[94:95]")
        self.a.e("s_waitcnt lgkmcnt(0)")
        self.a.e(f"s_mov_b32 s{sSTAMP + self.n}, s94")
        self.n += 1
    def dump(self):
        if not Cfg.stamps: return
        a = self.a
        a.e(f"s_memrealtime {sr(sT0,2)}")
        a.e("s_waitcnt lgkmcnt(0)")
        a.e(f"s_lshl_b32 s{sT2}, s2, 3")
        a.e(f"s_add_u32 s{sT2}, s{sT2}, s{sWAVE}")
        a.e(f"s_lshl_b32 s{sT2}, s{sT2}, 7")
        a.e(f"s_add_u32 s{sT2}, s{sT2}, {hex(WS_ST)}")
        a.e(f"v_mov_b32 v{vT+1}, 0")
        for i in range(self.n):
            a.e(f"v_mov_b32 v{vT}, s{sSTAMP+i}")
            a.e(f"buffer_store_dword v{vT}, v{vT+1}, {sr(sWS,4)}, s{sT2} offen offset:{4*i}")
        a.e(f"v_mov_b32 v{vT}, s{sT0}")
        a.e(f"buffer_store_dword v{vT}, v{vT+1}, {sr(sWS,4)}, s{sT2} offen offset:{4*31}")
        a.e(f"v_mov_b32 v{vT}, s96")
        a.e(f"buffer_store_dword v{vT}, v{vT+1}, {sr(sWS,4)}, s{sT2} offen offset:{4*30}")

def prologue(a, st):
    a.e("s_cmp_ge_u32 s2, 256")
    a.e("s_cbranch_scc1 L_end")
    srd(a, sX, 0, 4 * MB)
    srd(a, sW, 48, 6 * MB)
    srd(a, sWS, 88, WS_SIZE)
    srd(a, sDBG, 80, 256)
    srd(a, sGW, 64, 2048)
    srd(a, sWO, 56, 2 * MB)
    srd(a, sOUT, 72, 4 * MB)
    srd(a, sMS, 8, 8 * MB)
    srd(a, sMD, 24, 2 * MB)
    a.e(f"s_load_dwordx2 {sr(sJ,2)}, s[0:1], 16")
    a.e(f"s_load_dwordx2 {sr(sJ+2,2)}, s[0:1], 32")
    a.e(f"v_and_b32 v{vLANE}, 63, v0")
    a.e(f"v_lshrrev_b32 v{vT}, 6, v0")
    a.e(f"v_lshlrev_b32 v{vL16}, 4, v{vLANE}")
    a.e(f"v_readfirstlane_b32 s{sWAVE}, v{vT}")
    a.e(f"s_and_b32 s{sT0}, s2, 1")
    a.e(f"s_lshl_b32 s{sT0}, s{sT0}, 2")
    a.e(f"s_bfe_u32 s{sT1}, s2, 0x20003")
    a.e(f"s_add_u32 s{sR}, s{sT0}, s{sT1}")
    a.e(f"s_bfe_u32 s{sT0}, s2, 0x20001")
    a.e(f"s_lshl_b32 s{sT0}, s{sT0}, 3")
    a.e(f"s_lshr_b32 s{sT1}, s2, 5")
    a.e(f"s_add_u32 s{sH}, s{sT0}, s{sT1}")
    a.e(f"s_lshl_b32 s{sT0}, s{sR}, 8")
    a.e(f"s_lshl_b32 s{sT1}, s{sWAVE}, 5")
    a.e(f"s_add_u32 s{sT0}, s{sT0}, s{sT1}")
    a.e(f"s_lshl_b32 s{sT0}, s{sT0}, 11")
    a.e(f"v_lshrrev_b32 v{vT}, 3, v{vLANE}")
    a.e(f"v_lshlrev_b32 v{vT}, 11, v{vT}")
    a.e(f"v_add_u32 v{vT}, s{sT0}, v{vT}")
    a.e(f"v_and_b32 v{vT+1}, 7, v{vLANE}")
    a.e(f"v_lshrrev_b32 v{vT+2}, 4, v{vLANE}")
    a.e(f"v_xor_b32 v{vT+1}, v{vT+1}, v{vT+2}")
    a.e(f"v_lshlrev_b32 v{vT+1}, 4, v{vT+1}")
    a.e(f"v_add_u32 v{vXd}, v{vT}, v{vT+1}")
    a.e(f"v_xor_b32 v{vT+1}, 64, v{vT+1}")
    a.e(f"v_add_u32 v{vT}, v{vT}, v{vT+1}")
    a.e(f"v_add_u32 v{vXd+1}, {16384-1024}, v{vT}")
    a.e(f"v_add_u32 v{vXd+2}, {2*(16384-1024)}, v{vXd}")
    a.e(f"v_add_u32 v{vXd+3}, {3*(16384-1024)}, v{vT}")
    a.e(f"v_lshrrev_b32 v{vT}, 2, v{vLANE}")
    a.e(f"v_mul_u32_u24 v{vT}, 6144, v{vT}")
    a.e(f"v_and_b32 v{vT+1}, 3, v{vLANE}")
    a.e(f"v_lshlrev_b32 v{vT+1}, 4, v{vT+1}")
    a.e(f"v_add_u32 v{vWd}, v{vT}, v{vT+1}")
    for c in range(3):
        a.e(f"s_add_u32 s{sT0}, s{sWAVE}, {8*c}")
        a.e(f"s_mul_i32 s{sT1}, s{sT0}, 43")
        a.e(f"s_lshr_b32 s{sT1}, s{sT1}, 7")
        a.e(f"s_mul_i32 s{sT2}, s{sT1}, 3")
        a.e(f"s_sub_u32 s{sT2}, s{sT0}, s{sT2}")
        a.e(f"s_mul_i32 s{sT1}, s{sT1}, {16*6144}")
        a.e(f"s_lshl_b32 s{sT2}, s{sT2}, 11")
        a.e(f"s_add_u32 s{sT1}, s{sT1}, s{sT2}")
        a.e(f"s_lshl_b32 s{sT2}, s{sH}, 6")
        a.e(f"s_add_u32 s{sWo+c}, s{sT1}, s{sT2}")
    a.e(f"s_lshl_b32 s{sWl}, s{sWAVE}, 10")
    a.e(f"s_mul_i32 s{sXl}, s{sWAVE}, 12288")
    a.e(f"s_add_u32 s{sXl}, s{sXl}, 65536")
    a.e("s_waitcnt lgkmcnt(0)")

def dma_w(a, j):
    c = j % 3
    a.e(f"s_add_u32 m0, s{sWl}, {(j % 8) * 8192}")
    a.e(f"buffer_load_dwordx4 v{vWd}, {sr(sW,4)}, s{sWo+c} offen lds", tag=("W", j))
    a.e(f"s_add_u32 s{sWo+c}, s{sWo+c}, {128*6144}")

def dma_x_setup(a, i):
    a.e(f"s_add_u32 m0, s{sXl}, {(i % 3) * 4096}")
    a.e(f"s_mov_b32 s{sXs}, {i*128}")
def dma_x(a, i, q):
    a.e(f"buffer_load_dwordx4 v{vXd+q}, {sr(sX,4)}, s{sXs} offen offset:{q*1024} lds", tag=("X", i))

vPa, vPb, vPc, vMk = 136, 137, 138, 139
vX0 = 140
vG = 156
vF = 160
vGp = 176
vU = 182
vSo, vL0, vL63, vSg = 200, 201, 21, 203

def p0_setup(a):
    a.e(f"s_cmp_ge_u32 s{sH}, 16")
    a.e(f"s_cselect_b64 {sr(sMS,2)}, {sr(sJ,2)}, {sr(sMS,2)}")
    a.e(f"s_cmp_ge_u32 s{sWAVE}, 4")
    a.e(f"s_cselect_b64 {sr(sMD,2)}, {sr(sJ+2,2)}, {sr(sMD,2)}")
    a.e(f"s_lshr_b32 s{sT0}, s{sWAVE}, 2")
    a.e(f"s_lshl1_add_u32 s{sS}, s2, s{sT0}")
    a.e(f"s_lshl_b32 s{sRow}, s{sS}, 11")
    a.e(f"s_sub_u32 s{sRow+1}, {hex(2048*2048)}, s{sRow}")
    a.e(f"s_sub_u32 s{sRow+2}, {hex(1024*2048)}, s{sRow}")
    a.e(f"s_add_u32 s{sRow+3}, {hex(1024*2048)}, s{sRow}")
    a.e(f"s_cmp_eq_u32 s{sS}, 0")
    a.e(f"s_cselect_b32 s{sRow+1}, {hex(512*2048)}, s{sRow+1}")
    a.e(f"s_cselect_b32 s{sRow+2}, {hex(1536*2048)}, s{sRow+2}")
    a.e(f"s_cselect_b32 s{sC1}, 0, 1.0")
    a.e(f"v_and_b32 v{vU}, 255, v0")
    a.e(f"v_lshlrev_b32 v{vPa}, 1, v{vU}")
    a.e(f"v_cmp_eq_u32 vcc, 0, v{vU}")
    a.e(f"v_sub_u32 v{vPb}, 2048, v{vPa}")
    a.e(f"v_sub_u32 v{vPc}, 1024, v{vPa}")
    a.e(f"v_mov_b32 v{vU+1}, 512")
    a.e(f"v_mov_b32 v{vU+2}, 1536")
    a.e(f"v_cndmask_b32 v{vPb}, v{vPb}, v{vU+1}, vcc")
    a.e(f"v_cndmask_b32 v{vPc}, v{vPc}, v{vU+2}, vcc")
    for i in range(20): a.e(f"v_mov_b32 v{vX0+i}, 0")
    a.e(f"v_cndmask_b32_e64 v{vMk}, 1.0, 0, vcc")
    a.e(f"v_mov_b32 v{vU+1}, {hex(OOB)}")
    a.e(f"v_cndmask_b32_e64 v{vL0}, v{vU+1}, 0, vcc")
    a.e(f"v_cmp_eq_u32 vcc, 63, v{vLANE}")
    a.e(f"v_cndmask_b32_e64 v{vL63}, v{vU+1}, 0, vcc")
    a.e(f"v_and_b32 v{vU+1}, 3, v{vLANE}")
    a.e(f"v_mul_u32_u24 v{vU+1}, {hex(XSTR)}, v{vU+1}")
    a.e(f"v_lshrrev_b32 v{vU}, 2, v{vU}")
    a.e(f"v_lshl_add_u32 v{vSo}, v{vU}, 4, v{vU+1}")
    a.e(f"v_lshlrev_b32 v{vU}, 31, v{vLANE}")
    a.e(f"v_or_b32 v{vSg}, 1.0, v{vU}")
    a.e(f"s_mov_b32 s{sC2}, 0x3f803f80")
    a.e(f"s_lshr_b32 s{sArr}, s{sH}, 3")
    a.e(f"s_and_b32 s{sCb}, s{sH}, 7")
    a.e(f"s_and_b32 s{sQ}, s{sWAVE}, 3")
    a.e(f"s_lshr_b32 s{sTt}, s{sWAVE}, 2")
    a.e(f"s_lshl1_add_u32 s{sT0}, s{sR}, s{sTt}")
    a.e(f"s_lshl_b32 s{sT0}, s{sT0}, 6")
    a.e(f"s_and_b32 s{sT1}, s{sArr}, 1")
    a.e(f"s_add_u32 s{sTrow}, s{sT0}, s{sT1}")
    a.e(f"v_and_b32 v{vU}, 31, v{vLANE}")
    a.e(f"v_lshrrev_b32 v{vU+1}, 5, v{vLANE}")
    a.e(f"v_lshlrev_b32 v{vU+1}, 4, v{vU+1}")
    a.e(f"v_lshl_add_u32 v{vCa}, v{vU}, 13, v{vU+1}")
    a.e(f"s_cmp_lg_u32 s{sQ}, 0")
    a.e(f"s_cselect_b32 s{sT0}, {hex(OOB)}, 0")
    a.e(f"v_lshl_add_u32 v{vDa}, v{vU}, 12, v{vU+1}")
    a.e(f"v_or_b32 v{vDa}, s{sT0}, v{vDa}")
    a.e(f"v_or_b32 v{vDs}, s{sT0}, v{vL16}")
    a.e(f"s_lshl2_add_u32 s{sT0}, s{sCb}, s{sQ}")
    a.e(f"s_lshl_b32 s{sT1}, s{sT0}, 5")
    a.e(f"s_lshl_b32 s{sT2}, s{sTrow}, 12")
    a.e(f"s_add_u32 s{sJ+6}, s{sT1}, s{sT2}")
    a.e(f"s_lshr_b32 s{sT1}, s{sTrow}, 6")
    a.e(f"s_lshl4_add_u32 s{sT1}, s{sArr}, s{sT1}")
    a.e(f"s_lshl_b32 s{sT1}, s{sT1}, 15")
    a.e(f"s_add_u32 s{sCFo}, s{sT1}, {hex(WS_CF)}")
    a.e(f"s_lshl_b32 s{sT0}, s{sT0}, 10")
    a.e(f"s_add_u32 s{sJ+7}, s{sCFo}, s{sT0}")
    a.e(f"s_and_b32 s{sT0}, s2, 7")
    a.e(f"s_lshr_b32 s{sT1}, s2, 7")
    a.e(f"s_bfe_u32 s{sT2}, s2, 0x40003")
    a.e(f"s_lshl_b32 s{sT3}, s{sT0}, 6")
    a.e(f"s_add_u32 s{sT3}, s{sT3}, s{sT1}")
    a.e(f"s_lshl_b32 s{sT3}, s{sT3}, 6")
    a.e(f"s_add_u32 s{sT3}, s{sT3}, s{sT2}")
    a.e(f"s_lshl_b32 s{sJ+8}, s{sT3}, 5")
    a.e(f"s_lshl1_add_u32 s{sT1}, s{sTt}, s{sT1}")
    a.e(f"s_lshl3_add_u32 s{sT1}, s{sT1}, s{sT0}")
    a.e(f"s_lshl4_add_u32 s{sT1}, s{sT1}, s{sT2}")
    a.e(f"s_lshl_b32 s{sT1}, s{sT1}, 10")
    a.e(f"s_add_u32 s{sJ+9}, s{sT1}, {hex(WS_DF)}")
vCa, vDa, vDs, vCd = 204, 205, 206, 208
sArr, sCb, sQ, sTt, sTrow, sCFo = sJ, sJ + 1, sJ + 2, sJ + 3, sJ + 5, sJ + 10

def p0_loads():
    q = []
    addr = [(vPa, 0), (vPb, 0), (vPc, 0), (vPa, 1024)]
    for r in range(4):
        for k in range(4):
            q.append((f"buffer_load_short_d16_hi v{vX0+4*r+k}, v{addr[k][0]}, {sr(sX,4)}, s{sRow+r} offen offset:{addr[k][1]}", "p0ld"))
    for k in range(4):
        q.append((f"buffer_load_short_d16_hi v{vG+k}, v{addr[k][0]}, {sr(sGW,4)}, 0 offen offset:{addr[k][1]}", "p0ld"))
    q.append((f"buffer_load_dwordx4 {vr(vCd,4)}, v{vCa}, {sr(sMS,4)}, s{sJ+6} offen", "p0ld"))
    q.append((f"buffer_load_dwordx4 {vr(vCd+4,4)}, v{vDa}, {sr(sMD,4)}, s{sJ+8} offen", "p0ld"))
    return q

DPP = ["row_shr:1 row_mask:0xf bank_mask:0xf", "row_shr:2 row_mask:0xf bank_mask:0xf", "row_shr:4 row_mask:0xf bank_mask:0xf",
       "row_shr:8 row_mask:0xf bank_mask:0xf", "row_bcast:15 row_mask:0xa bank_mask:0xf", "row_bcast:31 row_mask:0xc bank_mask:0xf"]

def p0_dfold(q, red):
    P = vU + 8
    for ar in range(4):
        f = vF + 4 * ar
        ng = "" if ar < 2 else "-"
        q.append(f"v_fma_f32 v{vU}, v{f+1}, {ng}v{vMk}, v{f}")
        q.append(f"v_fma_f32 v{vU+1}, v{f+2}, {ng}v{vMk}, v{f+3}")
        q.append(f"v_{'add' if ar < 2 else 'sub'}_f32 v{vU+4+ar}, v{f+1}, v{f+2}")
        q.append(f"v_add_f32 v{vU+2}, v{vU}, v{vU+1}")
        q.append(f"v_sub_f32 v{vU+3}, v{vU}, v{vU+1}")
        if ar < 2: q.append(f"v_mul_f32 v{vGp+4+ar}, v{vSg}, v{vU+2}")
        q.append(f"v_cvt_pk_bf16_f32 v{P+ar}, v{vU+2}, v{vU+3}")
    q.append(f"v_cvt_pk_bf16_f32 v{vU+4}, v{vU+4}, v{vU+5}")
    q.append(f"v_cvt_pk_bf16_f32 v{vU+6}, v{vU+6}, v{vU+7}")
    N = vU + 12
    q.append("s_mov_b32 vcc_lo, 0x55555555"); q.append("s_mov_b32 vcc_hi, 0x55555555")
    x1 = "quad_perm:[1,0,3,2] row_mask:0xf bank_mask:0xf"; x2 = "quad_perm:[2,3,0,1] row_mask:0xf bank_mask:0xf"
    q.append(f"v_cndmask_b32_dpp v{N}, v{P+1}, v{P}, vcc {x1}")
    q.append(f"v_cndmask_b32_dpp v{N+2}, v{P+3}, v{P+2}, vcc {x1}")
    q.append("s_not_b64 vcc, vcc")
    q.append(f"v_cndmask_b32_dpp v{N+1}, v{P}, v{P+1}, vcc {x1}")
    q.append(f"v_cndmask_b32_dpp v{N+3}, v{P+2}, v{P+3}, vcc {x1}")
    q.append("s_mov_b32 vcc_lo, 0x33333333"); q.append("s_mov_b32 vcc_hi, 0x33333333")
    q.append(f"s_lshl_b32 s{sT0}, s{sS}, 1")
    q.append(f"v_cndmask_b32_dpp v{P}, v{N+2}, v{N}, vcc {x2}")
    q.append(f"v_cndmask_b32_dpp v{P+1}, v{N+3}, v{N+1}, vcc {x2}")
    q.append("s_not_b64 vcc, vcc")
    q.append(f"v_cndmask_b32_dpp v{P+2}, v{N}, v{N+2}, vcc {x2}")
    q.append(f"v_cndmask_b32_dpp v{P+3}, v{N+1}, v{N+3}, vcc {x2}")
    q.append(f"s_mov_b32 s{sT1}, 0x05040100"); q.append(f"s_mov_b32 s{sT2}, 0x07060302")
    R = vU + 14 if (vU + 14) % 4 == 0 else None
    assert R is not None
    q.append(f"v_perm_b32 v{R}, v{P+1}, v{P}, s{sT1}")
    q.append(f"v_perm_b32 v{R+1}, v{P+3}, v{P+2}, s{sT1}")
    q.append(f"v_perm_b32 v{R+2}, v{P+1}, v{P}, s{sT2}")
    q.append(f"v_perm_b32 v{R+3}, v{P+3}, v{P+2}, s{sT2}")
    q.append(f"s_lshl_b32 s{sT1}, s{sS}, 10")
    q.append(f"s_add_u32 s{sT1}, s{sT1}, {hex(WS_XF)}")
    q.append(f"buffer_store_dwordx4 {vr(R,4)}, v{vSo}, {sr(sWS,4)}, s{sT1} offen sc1")
    for ar in range(4):
        q.append(f"s_add_u32 s{sT1}, s{sT0}, {hex(WS_XE + ar*16384)}")
        q.append(f"buffer_store_short{'_d16_hi' if ar % 2 else ''} v{vU+4+(ar//2)*2}, v{vL0}, {sr(sWS,4)}, s{sT1} offen sc1")
    for d in DPP:
        for r in red: q.append(f"v_add_f32_dpp v{r}, v{r}, v{r} {d}")
    q.append(f"v_cvt_pk_bf16_f32 v{vGp+4}, v{vGp+4}, v{vGp+5}")
    q.append(f"s_and_b32 s{sT1}, s{sWAVE}, 3")
    q.append(f"s_lshl_b32 s{sT2}, s{sT1}, 11")
    q.append(f"s_add_u32 s{sT0}, s{sT0}, s{sT2}")
    for ar in range(2):
        q.append(f"s_add_u32 s{sT2}, s{sT0}, {hex(WS_XE + ar*16384 + 4*2048)}")
        q.append(f"buffer_store_short{'_d16_hi' if ar % 2 else ''} v{vGp+4}, v{vL63}, {sr(sWS,4)}, s{sT2} offen sc1")

def p0_stream():
    q = [("wait", "p0ld")]
    q.append(f"buffer_store_dwordx4 {vr(vCd,4)}, v{vL16}, {sr(sWS,4)}, s{sJ+7} offen sc1")
    q.append(f"buffer_store_dwordx4 {vr(vCd+4,4)}, v{vDs}, {sr(sWS,4)}, s{sJ+9} offen sc1")
    for r in range(4):
        x = vX0 + 4 * r
        for k in range(4): q.append(f"v_mul_f32 v{vU+k}, v{x+k}, v{vG+k}")
        q.append(f"v_cvt_pk_bf16_f32 v{vU+4}, v{vU}, v{vU+1}")
        q.append(f"v_cvt_pk_bf16_f32 v{vU+5}, v{vU+2}, v{vU+3}")
        q.append(f"v_dot2_f32_bf16 v{vGp+r}, v{vU+4}, s{sC2}, 0")
        q.append(f"v_dot2_f32_bf16 v{vGp+r}, v{vU+5}, s{sC2}, v{vGp+r}")
    for k in range(4):
        A, B, C, D = [vX0 + 4 * r + k for r in range(4)]
        q.append(f"v_fma_f32 v{vU}, v{B}, s{sC1}, v{A}")
        q.append(f"v_fma_f32 v{vU+1}, v{C}, s{sC1}, v{D}")
        q.append(f"v_fma_f32 v{vU+2}, v{B}, -s{sC1}, v{A}")
        q.append(f"v_fma_f32 v{vU+3}, v{C}, -s{sC1}, v{D}")
        q.append(f"v_add_f32 v{vF+k}, v{vU}, v{vU+1}")
        q.append(f"v_sub_f32 v{vF+4+k}, v{vU}, v{vU+1}")
        q.append(f"v_add_f32 v{vF+8+k}, v{vU+2}, v{vU+3}")
        q.append(f"v_sub_f32 v{vF+12+k}, v{vU+2}, v{vU+3}")
    p0_dfold(q, [vGp + i for i in range(6)])
    q.append(f"s_lshl_b32 s{sT1}, s{sT1}, 2")
    for r in range(4):
        q.append(f"s_lshr_b32 s{sT2}, s{sRow+r}, 7")
        q.append(f"s_add_u32 s{sT2}, s{sT2}, s{sT1}")
        q.append(f"s_add_u32 s{sT2}, s{sT2}, {hex(WS_GP)}")
        q.append(f"buffer_store_dword v{vGp+r}, v{vL63}, {sr(sWS,4)}, s{sT2} offen sc1")
    return q

def p0_special(a):
    vm = list(a.vm)
    a.e(f"s_cmp_lg_u32 s{sS}, 0")
    a.e("s_cbranch_scc1 L_p0done")
    a.e(f"s_mov_b32 s{sS}, 512")
    for k in range(4):
        B, C = vX0 + 4 + k, vX0 + 8 + k
        a.e(f"v_add_f32 v{vF+k}, v{B}, v{C}")
        a.e(f"v_add_f32 v{vF+4+k}, v{B}, v{C}")
        a.e(f"v_sub_f32 v{vF+8+k}, v{B}, v{C}")
        a.e(f"v_sub_f32 v{vF+12+k}, v{B}, v{C}")
    q = []
    p0_dfold(q, [vGp + 4, vGp + 5])
    for t in q: a.e(t)
    a.e("L_p0done:")
    a.vm = vm

def flag_wg(a, off, lbl):
    vm = list(a.vm)
    a.e(f"s_cmp_lg_u32 s{sWAVE}, 0")
    a.e(f"s_cbranch_scc1 {lbl}")
    a.e(f"s_lshl_b32 s{sT0}, s2, 2")
    a.e(f"s_add_u32 s{sT0}, s{sT0}, {hex(off)}")
    a.e(f"v_mov_b32 v{vT+4}, s{sTAG}")
    a.e(f"buffer_store_dword v{vT+4}, v{vLz}, {sr(sWS,4)}, s{sT0} offen sc1")
    a.e(f"{lbl}:")
    a.vm = vm
vLz = 21

def phase1(a, st):
    dma_w(a, 0); dma_w(a, 1)
    dma_x_setup(a, 0)
    for q in range(4): dma_x(a, 0, q)
    dma_w(a, 2)
    dma_x_setup(a, 1)
    for q in range(4): dma_x(a, 1, q)
    dma_w(a, 3); dma_w(a, 4)
    dma_x_setup(a, 2)
    for q in range(4): dma_x(a, 2, q)
    for j in range(5, 8): dma_w(a, j)
    a.e(f"s_add_u32 s{sT0}, s2, s{sWAVE}")
    a.e(f"s_cmp_lg_u32 s{sT0}, 0")
    a.e("s_cbranch_scc1 L_notag")
    a.e(f"s_memrealtime {sr(sT0,2)}")
    a.e("s_waitcnt lgkmcnt(0)")
    a.e(f"s_or_b32 s{sT0}, s{sT0}, 1")
    a.e(f"v_mov_b32 v{vT}, s{sT0}")
    a.e(f"v_mov_b32 v{vT+1}, 0")
    a.e(f"buffer_store_dword v{vT}, v{vT+1}, {sr(sDBG,4)}, 0 offen sc1")
    a.vm.pop()
    a.e("L_notag:")
    p0_setup(a)
    a.e(f"v_lshrrev_b32 v{vT}, 5, v{vLANE}")
    a.e(f"v_lshlrev_b32 v{vT}, 9, v{vT}")
    a.e(f"v_bfe_u32 v{vT+1}, v{vLANE}, 2, 2")
    a.e(f"v_lshl_add_u32 v{vT}, v{vT+1}, 6, v{vT}")
    a.e(f"v_bfe_u32 v{vT+1}, v{vLANE}, 4, 1")
    a.e(f"v_lshl_add_u32 v{vT}, v{vT+1}, 5, v{vT}")
    a.e(f"v_and_b32 v{vT+1}, 3, v{vLANE}")
    a.e(f"v_lshl_add_u32 v{vWr}, v{vT+1}, 3, v{vT}")
    a.e(f"v_and_b32 v{vT}, 31, v{vLANE}")
    a.e(f"v_bfe_u32 v{vT+1}, v{vLANE}, 1, 3")
    a.e(f"v_lshrrev_b32 v{vT+2}, 5, v{vLANE}")
    a.e(f"v_xor_b32 v{vT+1}, v{vT+1}, v{vT+2}")
    a.e(f"v_lshlrev_b32 v{vT+1}, 4, v{vT+1}")
    a.e(f"v_lshl_add_u32 v{vT}, v{vT}, 7, v{vT+1}")
    for s in range(4):
        a.e(f"v_xor_b32 v{vT+1}, {32*s}, v{vT}")
        a.e(f"v_add_u32 v{vXr+s}, s{sXl}, v{vT+1}")
    st()
    def rd_w(n, m, t):
        p = 3 * n + m
        a.e(f"ds_read_b64_tr_b16 {vr(vWf + (n % 2) * 12 + 4 * m + 2 * t, 2)}, v{vWr} offset:{(p % 64) * 1024 + 256 * t}", tag=("w", n))
    def rd_x(i, s):
        a.e(f"ds_read_b128 {vr(vXf + (i % 2) * 16 + 4 * s, 4)}, v{vXr+s} offset:{(i % 3) * 4096}", tag=("x", i, s))
    def mfma(n, m):
        i, s = divmod(n, 4)
        xf = vr(vXf + (i % 2) * 16 + 4 * s, 4); wf = vr(vWf + (n % 2) * 12 + 4 * m, 4)
        acc = vr([vAQ, vAK, vAV][m], 16)
        c = "0" if n == 0 else acc
        if m < 2: a.e(f"v_mfma_f32_32x32x16_bf16 {acc}, {wf}, {xf}, {c}")
        else:     a.e(f"v_mfma_f32_32x32x16_bf16 {acc}, {xf}, {wf}, {c}")
    def barrier(i):
        jmax = (12 * (i + 1) + 7) // 8 - 1
        a.wait(vm=[("X", i)] + [("W", j) for j in range(jmax + 1)])
        a.e("s_barrier")
    barrier(0)
    st()
    rd_x(0, 0)
    for m in range(3):
        for t in range(2): rd_w(0, m, t)
    for s in range(1, 4): rd_x(0, s)
    nextj = 8
    side = p0_loads()
    for n in range(64):
        i, s = divmod(n, 4)
        fill = [[], [], []]
        last = (s == 3)
        a.wait(lg=[("w", n), ("x", i, s)])
        if last and i < 15:
            barrier(i + 1)
        if n < 63:
            if last: fill[0].append(lambda: rd_x(i + 1, 0))
            for m in range(3):
                for t in range(2):
                    fill[m].append(lambda m=m, t=t: rd_w(n + 1, m, t))
            if last:
                for s2 in range(1, 4): fill[2].append(lambda s2=s2: rd_x(i + 1, s2))
        if s == 0 and i >= 1:
            jl = min(23, (3 * i) // 2 + 7)
            k = 0
            while nextj <= jl:
                fill[1 + k].append(lambda j=nextj: dma_w(a, j)); nextj += 1; k += 1
        if i + 3 < 16:
            if s == 1:
                fill[0].append(lambda: dma_x_setup(a, i + 3))
                fill[0].append(lambda: dma_x(a, i + 3, 0))
                fill[2].append(lambda: dma_x(a, i + 3, 1))
            if s == 2:
                fill[0].append(lambda: dma_x(a, i + 3, 2))
                fill[2].append(lambda: dma_x(a, i + 3, 3))
        if n == 4 * 6 + 2:
            fill[1].append(lambda: a.e(f"v_mov_b32 v{vT+1}, 0"))
            fill[2].append(lambda: a.e(f"buffer_load_dword v{vT}, v{vT+1}, {sr(sDBG,4)}, 0 offen sc1", tag="tag"))
        if n == 4 * 3:
            assert not side
            side = p0_stream()
        if n == 4 * 8 + 2:
            assert not side, len(side)
            fill[2].append(lambda: p0_special(a))
        if n == 4 * 12:
            fill[2].append(lambda: get_tag(a))
            fill[2].append(lambda: flag_wg(a, FL_0, "L_f0"))
        if n == 4 * 13 + 1:
            side = wf_loads()
        for m in range(3):
            mfma(n, m)
            for f in fill[m]: f()
            if True:
                k = 0
                while side and k < 3:
                    t = side.pop(0)
                    if isinstance(t, tuple) and t[0] == "wait": a.wait(vm=t[1])
                    elif isinstance(t, tuple):
                        a.e(t[0], tag=t[1]); k += 3
                    else:
                        a.e(t)
                        if not t.startswith("s_"): k += 1
    st()

def get_tag(a):
    a.e(f"s_mov_b32 s{sSpin}, 0")
    a.wait(vm="tag")
    vm = list(a.vm)
    a.e("L_tagspin:")
    a.e(f"v_readfirstlane_b32 s{sTAG}, v{vT}")
    a.e(f"s_cmp_lg_u32 s{sTAG}, 0")
    a.e("s_cbranch_scc1 L_tagok")
    a.e(f"buffer_load_dword v{vT}, v{vT+1}, {sr(sDBG,4)}, 0 offen sc1")
    a.e("s_waitcnt vmcnt(0)")
    a.e(f"s_add_u32 s{sSpin}, s{sSpin}, 1")
    a.e(f"s_cmp_lt_u32 s{sSpin}, 0x40000")
    a.e("s_cbranch_scc1 L_tagspin")
    a.e("L_tagok:")
    a.vm = vm

def pack(a, dst, src, n):
    for i in range(n):
        a.e(f"v_cvt_pk_bf16_f32 v{dst+i}, v{src+2*i}, v{src+2*i+1}")

def epilogue1(a, st):
    a.e(f"s_lshl_b32 s{sT0}, s{sR}, 3")
    a.e(f"s_add_u32 s{sT0}, s{sT0}, s{sWAVE}")
    a.e(f"s_lshl_b32 s{sT1}, s{sH}, 6")
    a.e(f"s_add_u32 s{sT1}, s{sT1}, s{sT0}")
    a.e(f"s_lshl_b32 s{sKVo}, s{sT1}, 12")
    a.e(f"s_lshl_b32 s{sT1}, s{sT1}, 2")
    a.e(f"s_add_u32 s{sT3}, s{sT1}, {hex(FL_KV)}")
    a.e(f"s_lshl_b32 s{sF1o}, s{sH}, 8")
    a.e(f"s_add_u32 s{sF1o}, s{sF1o}, {hex(FL_KV)}")
    a.e(f"s_lshl_b32 s{sT0}, s{sT0}, 5")
    a.e(f"s_add_u32 s{sT0}, s{sT0}, s{sH}")
    a.e(f"s_lshl_b32 s{sT0}, s{sT0}, 11")
    a.e(f"s_add_u32 s{sOFo}, s{sT0}, {hex(WS_OF)}")
    pack(a, vK, vAK, 8)
    pack(a, vV, vAV, 8)
    a.e(f"v_add_u32 v{vT}, s{sXl}, v{vL16}")
    for f in range(4):
        a.e(f"buffer_store_dwordx4 {vr(vK+4*f,4)}, v{vL16}, {sr(sWS,4)}, s{sKVo} offen offset:{f*1024} sc1", tag="kvst")
        a.e(f"ds_write_b128 v{vT}, {vr(vK+4*f,4)} offset:{f*1024}")
    wf_store(a)
    a.e(f"s_mov_b32 s{sT0}, {hex(f2u(math.log2(math.e) / math.sqrt(32.0)))}")
    for i in range(16):
        a.e(f"v_mul_f32 v{vAQ+i}, s{sT0}, v{vAQ+i}")
    pack(a, vQ, vAQ, 8)
    a.e(f"v_mfma_f32_32x32x16_bf16 {vr(vS[0],16)}, {vr(vK,4)}, {vr(vQ,4)}, 0")
    a.e(f"v_mfma_f32_32x32x16_bf16 {vr(vS[0],16)}, {vr(vK+4,4)}, {vr(vQ+4,4)}, {vr(vS[0],16)}")
    a.e(f"v_bfe_u32 v{vT}, v{vLANE}, 4, 1")
    a.e(f"v_bfe_u32 v{vT+1}, v{vLANE}, 2, 1")
    a.e(f"v_cmp_eq_u32 vcc, v{vT}, v{vT+1}")
    a.e(f"v_mov_b32 v{vT}, 0x3f803f80")
    a.e(f"v_cndmask_b32 v{vSel}, 0, v{vT}, vcc")
    for i in range(1, 4): a.e(f"v_mov_b32 v{vSel+i}, v{vSel}")
    for i in range(16): a.e(f"v_mov_b32 v{vO+i}, 0")
    for i in range(4): a.e(f"v_mov_b32 v{vLs+i}, 0")
    for i in range(4): a.e(f"v_mov_b32 v{vP+4+i}, 0")
    S = vS[0]
    a.e(f"v_max3_f32 v{vT}, v{S}, v{S+1}, v{S+2}")
    for i in range(3, 15, 2):
        a.e(f"v_max3_f32 v{vT}, v{vT}, v{S+i}, v{S+i+1}")
    a.e(f"v_max_f32 v{vT}, v{vT}, v{S+15}")
    a.e(f"v_mov_b32 v{vT+1}, v{vT}")
    a.e(f"v_permlane32_swap_b32 v{vT}, v{vT+1}")
    a.e(f"v_max_f32 v{vT}, v{vT}, v{vT+1}")
    for i in range(16): a.e(f"v_sub_f32 v{vM+i}, 0, v{vT}")
    a.e(f"v_add_u32 v{vKVa}, 65536, v{vL16}")
    a.e("s_waitcnt lgkmcnt(0)")
    a.e("s_barrier")
    st()

vWG = 24
def wf_loads():
    q = []
    q.append(f"s_and_b32 s{sT0}, s2, 7")
    q.append(f"s_lshl_b32 s{sT1}, s{sT0}, 6")
    q.append(f"s_and_b32 s{sT2}, s{sWAVE}, 1")
    q.append(f"s_add_u32 s{sT1}, s{sT1}, s{sT2}")
    q.append(f"v_and_b32 v28, 31, v{vLANE}")
    q.append(f"v_lshl_add_u32 v28, v28, 1, s{sT1}")
    q.append(f"v_sub_u32 v29, 1024, v28")
    q.append(f"v_cmp_eq_u32 vcc, 0, v28")
    q.append(f"v_mov_b32 v30, 512")
    q.append(f"v_cndmask_b32 v29, v29, v30, vcc")
    q.append(f"s_bitcmp1_b32 s{sWAVE}, 1")
    q.append(f"s_cselect_b64 vcc, -1, 0")
    q.append(f"v_cndmask_b32 v28, v28, v29, vcc")
    q.append(f"v_lshrrev_b32 v29, 5, v{vLANE}")
    q.append(f"v_lshlrev_b32 v29, 13, v29")
    q.append(f"v_lshl_add_u32 v28, v28, 1, v29")
    q.append(f"s_lshr_b32 s{sT1}, s2, 3")
    q.append(f"s_lshr_b32 s{sT2}, s{sWAVE}, 2")
    q.append(f"s_lshl1_add_u32 s{sT1}, s{sT1}, s{sT2}")
    q.append(f"s_and_b32 s{sT2}, s{sWAVE}, 3")
    q.append(f"s_lshl2_add_u32 s{sT0}, s{sT0}, s{sT2}")
    q.append(f"s_lshl_b32 s{sT0}, s{sT0}, 6")
    q.append(f"s_add_u32 s{sT0}, s{sT0}, s{sT1}")
    q.append(f"s_lshl_b32 s{sT0}, s{sT0}, 10")
    q.append(f"s_add_u32 s{sJ+4}, s{sT0}, {hex(WS_WF)}")
    q.append(f"s_lshl_b32 s{sT1}, s{sT1}, 15")
    for p, row in enumerate((0, 2, 8, 10)):
        q.append(f"s_add_u32 s{sT2}, s{sT1}, {row*2048}")
        q.append((f"buffer_load_ushort v{vWG+p}, v28, {sr(sWO,4)}, s{sT2} offen", "wg"))
        q.append((f"buffer_load_ushort v{vX0+p}, v28, {sr(sWO,4)}, s{sT2} offen offset:2048", "wg"))
    return q
def wf_store(a):
    a.wait(vm="wg")
    for p in range(4): a.e(f"v_lshl_or_b32 v{vWG+p}, v{vX0+p}, 16, v{vWG+p}")
    a.e(f"buffer_store_dwordx4 {vr(vWG,4)}, v{vL16}, {sr(sWS,4)}, s{sJ+4} offen sc1")

vJC, vJE, vJacc, vJx, vX9, vJz, vSelS, vA0, vA1 = 136, 172, 208, 240, 24, 4, 8, 12, 13

def a_loads():
    T = vT
    steps = []
    def setup(a):
        a.e(f"s_mul_i32 s{sJ+6}, s{sArr}, {hex(XSTR)}")
        a.e(f"s_lshl_b32 s{sT0}, s{sCb}, 7")
        a.e(f"s_add_u32 s{sJ+6}, s{sJ+6}, s{sT0}")
        a.e(f"s_add_u32 s{sJ+6}, s{sJ+6}, {hex(WS_XF)}")
        a.e(f"s_lshl_b32 s{sT0}, s{sWAVE}, 16")
        a.e(f"s_add_u32 s{sJ+7}, s{sJ+6}, s{sT0}")
        a.e(f"s_lshl_b32 s{sJ+8}, s{sWAVE}, 13")
        a.e(f"v_lshrrev_b32 v{T}, 2, v{vLANE}")
        a.e(f"v_and_b32 v{T+1}, 3, v{vLANE}")
        a.e(f"v_lshlrev_b32 v{T+1}, 4, v{T+1}")
        a.e(f"v_lshl_add_u32 v{T}, v{T}, 10, v{T+1}")
    steps.append(setup)
    for p in range(8):
        def f(a, p=p):
            a.e(f"s_add_u32 m0, s{sJ+8}, {p*1024}")
            a.e(f"s_add_u32 s{sT0}, s{sJ+7}, {(p//2)*16384 + (p%2)*64}")
            a.e(f"buffer_load_dwordx4 v{T}, {sr(sWS,4)}, s{sT0} offen sc1 lds")
        steps.append(f)
    def csetup(a):
        a.e(f"v_lshrrev_b32 v{T+1}, 5, v{vLANE}")
        a.e(f"v_lshlrev_b32 v{T+1}, 4, v{T+1}")
        a.e(f"s_lshl_b32 s{sT0}, s{sQ}, 13")
        a.e(f"s_add_u32 s{sJ+7}, s{sCFo}, s{sT0}")
        a.e(f"s_add_u32 s{sJ+8}, s{sJ+7}, 4096")
    steps.append(csetup)
    for j in range(8):
        steps.append(lambda a, j=j: a.e(f"buffer_load_dwordx4 {vr(vJC+4*j,4)}, v{vL16}, {sr(sWS,4)}, s{sJ+7+j//4} offen offset:{1024*(j%4)} sc1"))
    def esetup(a):
        a.e(f"v_and_b32 v{T}, 3, v{vLANE}")
        a.e(f"v_bfe_u32 v{T+2}, v{vLANE}, 3, 1")
        a.e(f"v_lshl_add_u32 v{T}, v{T+2}, 2, v{T}")
        a.e(f"v_add_u32 v{T+2}, -1, v{T}")
        a.e(f"v_lshl_add_u32 v{T}, v{T}, 11, v{T+1}")
        a.e(f"v_cmp_lt_u32 vcc, 2, v{T+2}")
        a.e(f"v_mov_b32 v{T+2}, {hex(OOB)}")
        a.e(f"v_cndmask_b32 v{T}, v{T+2}, v{T}, vcc")
        a.e(f"v_cmp_ne_u32 vcc, 0, v{vSel}")
        a.e(f"v_cndmask_b32 v{T}, v{T+2}, v{T}, vcc")
        a.e(f"s_lshl_b32 s{sJ+7}, s{sArr}, 14")
        a.e(f"s_add_u32 s{sJ+7}, s{sJ+7}, {hex(WS_XE)}")
        a.e(f"s_lshl_b32 s{sT0}, s{sQ}, 8")
        a.e(f"s_add_u32 s{sJ+8}, s{sJ+7}, s{sT0}")
    steps.append(esetup)
    for j in range(8):
        steps.append(lambda a, j=j: a.e(f"buffer_load_dwordx4 {vr(vJE+4*j,4)}, v{T}, {sr(sWS,4)}, s{sJ+8} offen offset:{32*j} sc1"))
    def nine(a):
        a.e(f"s_cmp_lg_u32 s{sQ}, 0")
        a.e(f"s_cselect_b32 s{sT0}, {hex(OOB)}, 0")
        a.e(f"v_lshlrev_b32 v{T+1}, 26, v{T+1}")
        a.e(f"v_or_b32 v{T+1}, s{sT0}, v{T+1}")
        a.e(f"v_or_b32 v{T}, v{T}, v{T+1}")
        a.e(f"buffer_load_ushort v{vJE+32}, v{T}, {sr(sWS,4)}, s{sJ+7} offen offset:1024 sc1")
        a.e(f"v_and_b32 v{T}, 31, v{vLANE}")
        a.e(f"v_lshl_or_b32 v{T}, v{T}, 13, v{T+1}")
        a.e(f"s_lshl_b32 s{sT0}, s{sTrow}, 12")
        a.e(f"buffer_load_dwordx4 {vr(vJC+32,4)}, v{T}, {sr(sMS,4)}, s{sT0} offen offset:1024")
        a.e(f"v_bfrev_b32 v{T}, v{vLANE}")
        a.e(f"v_bfe_u32 v{T}, v{T}, 27, 3")
        a.e(f"v_and_b32 v{T+2}, 3, v{vLANE}")
        a.e(f"v_lshl_add_u32 v{T}, v{T}, 2, v{T+2}")
        a.e(f"v_lshl_or_b32 v{T}, v{T}, 1, v{T+1}")
        a.e(f"s_lshl_b32 s{sT0}, s{sTt}, 6")
        a.e(f"s_add_u32 s{sT1}, s{sJ+6}, {512*1024}")
        a.e(f"s_add_u32 s{sT2}, s{sT1}, s{sT0}")
        a.e(f"buffer_load_ushort v{vX9}, v{T}, {sr(sWS,4)}, s{sT2} offen sc1")
        a.e(f"s_xor_b32 s{sT2}, s{sT2}, 64")
        a.e(f"buffer_load_ushort v{vX9+4}, v{T}, {sr(sWS,4)}, s{sT2} offen sc1")
    steps.append(nine)
    return steps

def job_a(a):
    T = vT
    a.e(f"v_lshrrev_b32 v{T}, 5, v{vLANE}")
    a.e(f"v_lshlrev_b32 v{T}, 9, v{T}")
    a.e(f"v_bfe_u32 v{T+1}, v{vLANE}, 2, 2")
    a.e(f"v_lshl_add_u32 v{T}, v{T+1}, 6, v{T}")
    a.e(f"v_and_b32 v{T+1}, 1, v{vLANE}")
    a.e(f"v_lshl_add_u32 v{T}, v{T+1}, 5, v{T}")
    a.e(f"v_bfe_u32 v{T+1}, v{vLANE}, 1, 1")
    a.e(f"v_lshl_add_u32 v{T}, v{T+1}, 4, v{T}")
    a.e(f"v_bfe_u32 v{T+1}, v{vLANE}, 4, 1")
    a.e(f"v_lshl_add_u32 v{T}, v{T+1}, 3, v{T}")
    a.e(f"s_lshl_b32 s{sT0}, s{sQ}, 14")
    a.e(f"s_lshl_b32 s{sT1}, s{sTt}, 10")
    a.e(f"s_add_u32 s{sT0}, s{sT0}, s{sT1}")
    a.e(f"v_add_u32 v{vA0}, s{sT0}, v{T}")
    a.e(f"v_xor_b32 v{vA1}, 1024, v{vA0}")
    def rd(j):
        for sg in range(2):
            for t in range(2):
                a.e(f"ds_read_b64_tr_b16 {vr(vJx + (j%2)*8 + 4*sg + 2*t, 2)}, v{[vA0, vA1][sg]} offset:{j*2048 + 256*t}", tag=("xa", j))
    rd(0); rd(1)
    for r in (vX9 + 1, vX9 + 2, vX9 + 3, vX9 + 5, vX9 + 6, vX9 + 7, vJE + 33, vJE + 34, vJE + 35):
        a.e(f"v_mov_b32 v{r}, 0")
    a.e(f"v_lshlrev_b32 v{T}, 2, v{vSel}")
    a.e(f"v_and_b32 v{T}, 0x80000000, v{T}")
    for i in range(4): a.e(f"v_or_b32 v{vSelS+i}, v{T}, v{vSel}")
    a.e(f"s_xor_b32 s{sT0}, s{sR}, s{sCb}")
    a.e(f"s_bitcmp1_b32 s{sT0}, 0")
    a.e("s_cbranch_scc1 L_jaY")
    lg = list(a.lg)
    z = vr(vJz, 4)
    for ver in "XY":
        if ver == "Y":
            a.e("L_jaY:"); a.lg = list(lg)
        for sg in range(2):
            a.e(f"v_mfma_f32_32x32x16_bf16 {vr(vJacc+16*sg,16)}, {vr(vX9+4*sg,4)}, {vr(vJC+32,4)}, 0")
        if ver == "X": a.e(f"v_mfma_f32_16x16x32_bf16 {z}, {vr(vJE+32,4)}, {vr(vJC+32,4)}, 0")
        else:          a.e(f"v_mfma_f32_16x16x32_bf16 {z}, {vr(vSelS,4)}, {vr(vX9,4)}, 0")
        for j in range(8):
            a.wait(lg=("xa", j))
            x = vJx + (j % 2) * 8
            for sg in range(2):
                a.e(f"v_mfma_f32_32x32x16_bf16 {vr(vJacc+16*sg,16)}, {vr(x+4*sg,4)}, {vr(vJC+4*j,4)}, {vr(vJacc+16*sg,16)}")
            if ver == "X": a.e(f"v_mfma_f32_16x16x32_bf16 {z}, {vr(vJE+4*j,4)}, {vr(vJC+4*j,4)}, {z}")
            else:          a.e(f"v_mfma_f32_16x16x32_bf16 {z}, {vr(vSelS,4)}, {vr(x,4)}, {z}")
            if j + 2 < 8: rd(j + 2)
        a.e(f"v_and_b32 v{T}, 31, v{vLANE}")
        a.e(f"v_lshrrev_b32 v{T+1}, 5, v{vLANE}")
        if ver == "X":
            a.e(f"s_cmp_ge_u32 s{sCb}, 2")
            a.e("s_cbranch_scc1 L_jaC")
            a.e(f"v_lshlrev_b32 v{T+3}, 4, v{T+1}")
            a.e(f"v_lshl_add_u32 v{T+2}, v{T}, 6, v{T+3}")
            a.e(f"s_lshr_b32 s{sT0}, s{sArr}, 1")
            a.e(f"s_lshl_b32 s{sT0}, s{sT0}, 16")
            a.e(f"s_lshl2_add_u32 s{sT0}, s{sQ}, s{sT0}")
            a.e(f"s_add_u32 s{sT0}, s{sT0}, {hex(WS_ZC)}")
            a.e(f"s_lshl_b32 s{sT1}, s{sTrow}, 5")
            a.e(f"s_add_u32 s{sT1}, s{sT1}, s{sT0}")
            def zsum():
                a.e(f"v_add_f32 v{vJz}, v{vJz}, v{vJz+1}")
                a.e(f"v_add_f32 v{vJz+2}, v{vJz+2}, v{vJz+3}")
                a.e(f"v_add_f32 v{T+4}, v{vJz}, v{vJz+2}")
            zsum()
            a.e(f"buffer_store_dword v{T+4}, v{T+2}, {sr(sWS,4)}, s{sT1} offen sc1")
            a.e(f"s_or_b32 s{sT1}, s{sH}, s{sTrow}")
            a.e(f"s_cmp_lg_u32 s{sT1}, 0")
            a.e("s_cbranch_scc1 L_jaC")
            for i in range(4): a.e(f"v_mov_b32 v{vSelS+i}, 0xbf803f80")
            for j in range(9):
                a.e(f"v_mfma_f32_16x16x32_bf16 {z}, {vr(vJE+4*j,4)}, {vr(vSelS,4)}, {z if j else 0}")
            a.e(f"s_add_u32 s{sT1}, s{sT0}, {1024*32}")
            zsum()
            a.e(f"buffer_store_dword v{T+4}, v{T+3}, {sr(sWS,4)}, s{sT1} offen sc1")
            a.e("s_branch L_jaC")
        else:
            a.e(f"s_lshr_b32 s{sT0}, s{sR}, 1")
            a.e(f"s_or_b32 s{sT0}, s{sT0}, s{sArr}")
            a.e(f"s_cmp_lg_u32 s{sT0}, 0")
            a.e("s_cbranch_scc1 L_jaC")
            a.e(f"v_lshrrev_b32 v{T+2}, 4, v{T}")
            a.e(f"v_mul_u32_u24 v{T+2}, {hex(UVSTR)}, v{T+2}")
            a.e(f"v_bfe_u32 v{T+3}, v{T}, 2, 1")
            a.e(f"v_lshl_add_u32 v{T+2}, v{T+3}, 9, v{T+2}")
            a.e(f"v_bfe_u32 v{T+3}, v{T}, 3, 1")
            a.e(f"v_lshl_add_u32 v{T+2}, v{T+3}, 3, v{T+2}")
            a.e(f"v_and_b32 v{T+3}, 3, v{T}")
            a.e(f"v_lshl_add_u32 v{T+2}, v{T+3}, 1, v{T+2}")
            a.e(f"v_lshl_or_b32 v{T+2}, v{T+1}, 30, v{T+2}")
            a.e(f"s_lshl1_add_u32 s{sT0}, s{sCb}, s{sTt}")
            a.e(f"s_lshl_b32 s{sT0}, s{sT0}, 10")
            a.e(f"s_and_b32 s{sT1}, s{sQ}, 1")
            a.e(f"s_lshl_b32 s{sT1}, s{sT1}, 8")
            a.e(f"s_add_u32 s{sT0}, s{sT0}, s{sT1}")
            a.e(f"s_lshr_b32 s{sT1}, s{sQ}, 1")
            a.e(f"s_lshl4_add_u32 s{sT0}, s{sT1}, s{sT0}")
            a.e(f"s_add_u32 s{sT0}, s{sT0}, {hex(WS_UV + 32*16384)}")
            a.e(f"v_cvt_pk_bf16_f32 v{T+4}, v{vJz}, v{vJz}")
            a.e(f"buffer_store_short v{T+4}, v{T+2}, {sr(sWS,4)}, s{sT0} offen sc1")
    a.e("L_jaC:")
    a.e("s_barrier")
    a.e(f"s_lshl_b32 s{sT0}, s{sWAVE}, 13")
    a.e(f"v_add_u32 v{T+2}, s{sT0}, v{vL16}")
    a.e("s_nop 7")
    for c in range(8):
        a.e(f"ds_write_b128 v{T+2}, {vr(vJacc+4*c,4)} offset:{c*1024}")
    a.e(f"s_lshl_b32 s{sT0}, s{sTt}, 15")
    a.e(f"s_lshl_b32 s{sT1}, s{sQ}, 11")
    a.e(f"s_add_u32 s{sT0}, s{sT0}, s{sT1}")
    a.e(f"v_add_u32 v{T+2}, s{sT0}, v{vL16}")
    a.e(f"v_lshrrev_b32 v{T+3}, 4, v{T}")
    a.e(f"v_lshlrev_b32 v{T+3}, 14, v{T+3}")
    a.e(f"v_lshl_add_u32 v{T+3}, v{T+1}, 9, v{T+3}")
    a.e(f"v_and_b32 v{T}, 15, v{T}")
    a.e(f"v_lshl_add_u32 v{T+3}, v{T}, 4, v{T+3}")
    a.e(f"s_and_b32 s{sT0}, s{sArr}, 2")
    a.e(f"s_and_b32 s{sT1}, s{sQ}, 1")
    a.e(f"s_add_u32 s{sT0}, s{sT0}, s{sT1}")
    a.e(f"s_mul_i32 s{sT0}, s{sT0}, {hex(UVSTR)}")
    a.e(f"s_lshr_b32 s{sT1}, s{sTrow}, 6")
    a.e(f"s_lshl_b32 s{sT1}, s{sT1}, 15")
    a.e(f"s_add_u32 s{sT0}, s{sT0}, s{sT1}")
    a.e(f"s_lshr_b32 s{sT1}, s{sQ}, 1")
    a.e(f"s_xor_b32 s{sT1}, s{sT1}, s{sTt}")
    a.e(f"s_lshl1_add_u32 s{sT1}, s{sCb}, s{sT1}")
    a.e(f"s_lshl_b32 s{sT1}, s{sT1}, 10")
    a.e(f"s_add_u32 s{sT0}, s{sT0}, s{sT1}")
    a.e(f"s_and_b32 s{sT1}, s{sArr}, 1")
    a.e(f"s_lshl_b32 s{sT1}, s{sT1}, 8")
    a.e(f"s_add_u32 s{sT0}, s{sT0}, s{sT1}")
    a.e(f"s_add_u32 s{sT0}, s{sT0}, {hex(WS_UV)}")
    a.e("s_waitcnt lgkmcnt(0)")
    a.e("s_barrier")
    for w in range(4):
        for c in range(2):
            a.e(f"ds_read_b128 {vr(vJC+8*w+4*c,4)}, v{T+2} offset:{w*8192 + c*1024}", tag=("ra", w))
    for w in range(1, 4):
        a.wait(lg=("ra", w))
        for i in range(8): a.e(f"v_add_f32 v{vJC+i}, v{vJC+i}, v{vJC+8*w+i}")
    pack(a, vJC + 8, vJC, 4)
    a.e(f"buffer_store_dwordx4 {vr(vJC+8,4)}, v{T+3}, {sr(sWS,4)}, s{sT0} offen sc1")

def poll256_issue(a, off, reg):
    if isinstance(off, tuple):
        a.e(f"buffer_load_dwordx4 {vr(reg,4)}, v{off[0]}, {sr(sWS,4)}, s{off[1]} offen sc1", tag="poll")
        return
    a.e(f"s_mov_b32 s{sT0}, {hex(off)}")
    a.e(f"buffer_load_dwordx4 {vr(reg,4)}, v{vL16}, {sr(sWS,4)}, s{sT0} offen sc1", tag="poll")
def poll256_check(a, off, reg, lbl, slp=8):
    a.e(f"s_mov_b32 s{sSpin}, 0")
    a.e(f"{lbl}_spin:")
    a.e(f"v_xor_b32 v{reg}, s{sTAG}, v{reg}")
    a.e(f"v_xor_b32 v{reg+1}, s{sTAG}, v{reg+1}")
    a.e(f"v_xor_b32 v{reg+2}, s{sTAG}, v{reg+2}")
    a.e(f"v_xor_b32 v{reg+3}, s{sTAG}, v{reg+3}")
    a.e(f"v_or3_b32 v{reg}, v{reg}, v{reg+1}, v{reg+2}")
    a.e(f"v_or_b32 v{reg}, v{reg}, v{reg+3}")
    a.e(f"v_cmp_ne_u32 vcc, 0, v{reg}")
    a.e(f"s_cmp_eq_u64 vcc, 0")
    a.e(f"s_cbranch_scc1 {lbl}_ok")
    vm = list(a.vm)
    a.e(f"s_sleep {slp}")
    poll256_issue(a, off, reg)
    a.e("s_waitcnt vmcnt(0)")
    a.e(f"s_add_u32 s{sSpin}, s{sSpin}, 1")
    a.e(f"s_cmp_lt_u32 s{sSpin}, 0x40000")
    a.e(f"s_cbranch_scc1 {lbl}_spin")
    a.e(f"{lbl}_ok:")
    a.vm = vm

def rd_k(a, t):
    for f in range(2):
        a.e(f"ds_read_b128 {vr(vK+4*f,4)}, v{vKVa} offset:{t*12288 + f*1024}", tag="K")
def rd_v(a, t, f):
    a.e(f"ds_read_b128 {vr(vV+4*f,4)}, v{vKVa2} offset:{t*12288 + (2+f)*1024}", tag=f"V{f+1}")
vKVa2 = 20

def att_body(a, par, hooks):
    S = vS[par]; N = vS[1 - par]
    def ex(*idx):
        for i in idx: a.e(f"v_exp_f32 v{S+i}, v{S+i}")
    def cv(j): a.e(f"v_cvt_pk_bf16_f32 v{vP+j}, v{S+2*j}, v{S+2*j+1}")
    def hk(p):
        for f in hooks.get(p, []): f()
    a.wait(lg=["K", "V2"])
    a.e(f"v_mfma_f32_32x32x16_bf16 {vr(N,16)}, {vr(vK,4)}, {vr(vQ,4)}, {vr(vM,16)}")
    ex(0, 1)
    hk(1)
    a.e(f"v_mfma_f32_32x32x16_bf16 {vr(vO,16)}, {vr(vV+4,4)}, {vr(vP+4,4)}, {vr(vO,16)}")
    ex(2, 3)
    a.e(f"v_mfma_f32_16x16x32_bf16 {vr(vLs,4)}, {vr(vSel,4)}, {vr(vP+4,4)}, {vr(vLs,4)}")
    ex(4, 5); cv(0); cv(1)
    a.e(f"v_mfma_f32_32x32x16_bf16 {vr(N,16)}, {vr(vK+4,4)}, {vr(vQ+4,4)}, {vr(N,16)}")
    hk(2)
    ex(6, 7); cv(2); ex(8); cv(3); ex(9, 10)
    a.wait(lg="V1")
    a.e(f"v_mfma_f32_32x32x16_bf16 {vr(vO,16)}, {vr(vV,4)}, {vr(vP,4)}, {vr(vO,16)}")
    ex(11, 12)
    hk(3)
    a.e(f"v_mfma_f32_16x16x32_bf16 {vr(vLs,4)}, {vr(vSel,4)}, {vr(vP,4)}, {vr(vLs,4)}")
    hk(4)
    ex(13, 14); cv(4); ex(15); cv(5); cv(6); cv(7)

def kv_dma(a, q):
    a.e(f"buffer_load_dwordx4 v{vL16}, {sr(sWS,4)}, s{sKVsrc} offen offset:{q*1024} sc1 lds", tag="kv")

def kv_dma_setup(a):
    a.e(f"s_add_u32 s{sT0}, s{sKVsrc}, {8*4096}")
    a.e(f"s_and_b32 s{sT0}, s{sT0}, 0x3ffff")
    a.e(f"s_andn2_b32 s{sKVsrc}, s{sKVsrc}, 0x3ffff")
    a.e(f"s_or_b32 s{sKVsrc}, s{sKVsrc}, s{sT0}")
    a.e(f"s_add_u32 s{sSlot}, s{sSlot}, 4096")
    a.e(f"s_cmp_eq_u32 s{sSlot}, {3*4096}")
    a.e(f"s_cselect_b32 s{sSlot}, 0, s{sSlot}")
    a.e(f"s_add_u32 m0, s{sXl}, s{sSlot}")

def attention(a, st):
    a.e(f"s_mov_b32 s{sKVsrc}, s{sKVo}")
    a.e(f"s_mov_b32 s{sSlot}, 0")
    a.e(f"s_mov_b32 s{sKVl}, 65536")
    a.e(f"v_mov_b32 v{vKVa2}, v{vKVa}")
    rd_k(a, 0)
    a.wait(lg="K")
    a.e(f"v_mfma_f32_32x32x16_bf16 {vr(vS[0],16)}, {vr(vK,4)}, {vr(vQ,4)}, {vr(vM,16)}")
    a.e(f"v_mfma_f32_32x32x16_bf16 {vr(vS[0],16)}, {vr(vK+4,4)}, {vr(vQ+4,4)}, {vr(vS[0],16)}")
    rd_k(a, 1)
    rd_v(a, 0, 1)
    rd_v(a, 0, 0)
    a.e("s_nop 7")
    def adv_k(second_half_next):
        if second_half_next:
            a.e(f"v_add_u32 v{vKVa}, 49152, v{vKVa}")
        else:
            a.e(f"s_add_u32 s{sKVl}, s{sKVl}, 4096")
            a.e(f"s_cmp_eq_u32 s{sKVl}, {65536+3*4096}")
            a.e(f"s_cselect_b32 s{sKVl}, 65536, s{sKVl}")
            a.e(f"v_add_u32 v{vKVa}, s{sKVl}, v{vL16}")
    def group(extra):
        for t in range(8):
            h = {1: [], 2: [], 3: [], 4: []}
            tk = (t + 2) % 4
            if tk == 0:
                if t == 6:
                    h[2].append(lambda: (a.wait(vm="kvneed"), a.e("s_barrier")))
                h[2].append(lambda t=t: adv_k(t == 2))
            h[2].append(lambda tk=tk: rd_k(a, tk))
            h[2].append(lambda t=t: rd_v(a, t % 4, 1))
            if (t + 1) % 4 == 0:
                h[4].append(lambda: a.e(f"v_mov_b32 v{vKVa2}, v{vKVa}"))
            h[4].append(lambda t=t: rd_v(a, (t + 1) % 4, 0))
            for p in (1, 2, 3, 4):
                h[p] += extra.get((t, p), [])
            att_body(a, t % 2, h)
    def flag_store():
        a.wait(vm="kvst")
        a.e(f"v_mov_b32 v{vT}, s{sTAG}")
        a.e(f"v_mov_b32 v{vT+1}, 0")
        a.e("s_mov_b64 exec, 1")
        a.e(f"buffer_store_dword v{vT}, v{vT+1}, {sr(sWS,4)}, s{sT3} offen sc1")
        a.e("s_mov_b64 exec, -1")
    def poll_issue():
        a.e(f"v_lshlrev_b32 v{vT+3}, 2, v{vLANE}")
        a.e(f"buffer_load_dword v{vT+2}, v{vT+3}, {sr(sWS,4)}, s{sF1o} offen sc1", tag="poll")
    def poll_check():
        a.e(f"s_mov_b32 s{sSpin}, 0")
        a.e("L_kvspin:")
        a.e("s_waitcnt vmcnt(0)")
        a.e(f"v_cmp_eq_u32 vcc, s{sTAG}, v{vT+2}")
        a.e("s_cmp_eq_u64 vcc, -1")
        a.e("s_cbranch_scc1 L_kvok")
        a.e(f"buffer_load_dword v{vT+2}, v{vT+3}, {sr(sWS,4)}, s{sF1o} offen sc1")
        a.e("s_sleep 1")
        a.e(f"s_add_u32 s{sSpin}, s{sSpin}, 1")
        a.e(f"s_cmp_lt_u32 s{sSpin}, 0x40000")
        a.e("s_cbranch_scc1 L_kvspin")
        a.e("L_kvok:")
        a.vm = []
    def dma_group(tag):
        kv_dma_setup(a)
        for q in range(4):
            kv_dma(a, q); a.vm[-1] = tag
    ex0 = {(1, 1): [flag_store], (2, 3): [poll_issue, lambda: poll256_issue(a, FL_0, vJx)],
           (3, 3): [poll_check, st, lambda: dma_group("kvneed"), lambda: dma_group("kvnext")],
           (3, 4): [lambda: poll256_check(a, FL_0, vJx, "L_p0")]}
    steps = a_loads()
    pos = [(t, p) for t in range(4, 8) for p in (1, 2, 3, 4)]
    for i, f in enumerate(steps):
        ex0.setdefault(pos[i * len(pos) // len(steps)], []).append(lambda f=f: f(a))
    group(ex0)
    st()
    a.e(f"s_mov_b32 s{sG}, 1")
    a.vm = ["kvneed"] * 4
    a.lg = ["K", "K", "V2", "V1"]
    lg0 = list(a.lg)
    a.e("L_att:")
    for g in sorted(JOBS):
        a.e(f"s_cmp_eq_u32 s{sG}, {g}")
        a.e(f"s_cbranch_scc1 L_job{g}")
    a.e("L_attb:")
    ex = {(6, 3): [lambda: kv_dma_setup(a), lambda: kv_dma(a, 0)], (6, 4): [lambda: kv_dma(a, 1)],
          (7, 1): [lambda: kv_dma(a, 2)], (7, 3): [lambda: kv_dma(a, 3)]}
    group(ex)
    assert a.lg == lg0, (a.lg, lg0)
    a.e(f"s_add_u32 s{sG}, s{sG}, 1")
    a.e(f"s_cmp_lt_u32 s{sG}, 8")
    a.e("s_cbranch_scc1 L_att")
    a.wait(lg="V2")
    a.e(f"v_mfma_f32_32x32x16_bf16 {vr(vO,16)}, {vr(vV+4,4)}, {vr(vP+4,4)}, {vr(vO,16)}")
    a.e(f"v_mfma_f32_16x16x32_bf16 {vr(vLs,4)}, {vr(vSel,4)}, {vr(vP+4,4)}, {vr(vLs,4)}")
    st()
    a.e(f"v_rcp_f32 v{vT}, v{vLs}")
    for i in range(16): a.e(f"v_mul_f32 v{vO+i}, v{vT}, v{vO+i}")
    pack(a, vP, vO, 8)
    for f in range(2):
        a.e(f"buffer_store_dwordx4 {vr(vP+4*f,4)}, v{vL16}, {sr(sWS,4)}, s{sOFo} offen offset:{f*1024} sc1", tag="ost")

sTB, sWFo = sJ + 11, sJ + 12
vBD, vBU, vBacc, vBR = 136, 168, 200, 216
TS = 4352
def job3(a):
    flag_wg(a, FL_A, "L_fa")
    a.e(f"s_and_b32 s{sT0}, s2, 7")
    a.e(f"s_bfe_u32 s{sT1}, s2, 0x20003")
    a.e(f"s_lshl2_add_u32 s{sTB}, s{sT0}, s{sT1}")
    a.e(f"s_lshr_b32 s{sT0}, s{sWAVE}, 1")
    a.e(f"s_lshl3_add_u32 s{sT0}, s{sT0}, s{sCb}")
    a.e(f"s_and_b32 s{sT1}, s{sWAVE}, 1")
    a.e(f"s_lshl1_add_u32 s{sT0}, s{sT0}, s{sT1}")
    a.e(f"s_lshl_b32 s{sT0}, s{sT0}, 13")
    a.e(f"s_add_u32 s{sT0}, s{sT0}, {hex(WS_DF)}")
    a.e(f"s_add_u32 s{sT1}, s{sT0}, 4096")
    for j in range(8):
        a.e(f"buffer_load_dwordx4 {vr(vBD+4*j,4)}, v{vL16}, {sr(sWS,4)}, s{sT0+j//4} offen offset:{1024*(j%4)} sc1")
def job4(a):
    poll256_issue(a, FL_A, vJx)
def job5(a):
    T = vT
    poll256_check(a, FL_A, vJx, "L_pa")
    a.e(f"v_lshrrev_b32 v{T}, 5, v{vLANE}")
    a.e(f"v_lshlrev_b32 v{T}, 9, v{T}")
    a.e(f"v_and_b32 v{T+1}, 1, v{vLANE}")
    a.e(f"v_lshl_add_u32 v{T}, v{T+1}, 8, v{T}")
    a.e(f"v_bfe_u32 v{T+1}, v{vLANE}, 1, 4")
    a.e(f"v_lshl_add_u32 v{T}, v{T+1}, 4, v{T}")
    a.e(f"s_lshr_b32 s{sT0}, s{sWAVE}, 1")
    a.e(f"s_mul_i32 s{sT0}, s{sT0}, {hex(UVSTR)}")
    a.e(f"s_and_b32 s{sT1}, s{sWAVE}, 1")
    a.e(f"s_lshl1_add_u32 s{sT1}, s{sTB}, s{sT1}")
    a.e(f"s_lshl_b32 s{sT1}, s{sT1}, 13")
    a.e(f"s_add_u32 s{sT0}, s{sT0}, s{sT1}")
    a.e(f"s_add_u32 s{sT0}, s{sT0}, {hex(WS_UV)}")
    a.e(f"s_add_u32 s{sT1}, s{sT0}, 4096")
    for j in range(8):
        a.e(f"buffer_load_dwordx4 {vr(vBU+4*j,4)}, v{T}, {sr(sWS,4)}, s{sT0+j//4} offen offset:{1024*(j%4)} sc1")
    a.e(f"s_or_b32 s{sT2}, s{sTB}, s{sTt}")
    a.e(f"s_cmp_lg_u32 s{sT2}, 0")
    a.e("s_cbranch_scc1 L_j5e")
    a.e(f"s_add_u32 s{sT0}, s{sT0}, {32*16384}")
    a.e(f"s_add_u32 s{sT1}, s{sT1}, {32*16384}")
    for j in range(8):
        a.e(f"buffer_load_dwordx4 {vr(vBR+4*j,4)}, v{T}, {sr(sWS,4)}, s{sT0+j//4} offen offset:{1024*(j%4)} sc1")
    a.e("L_j5e:")
def wfreg(n): return 136 + 4 * n if n < 30 else 24 + 4 * (n - 30)
def wf_frag_loads(a, lo, hi):
    for n in range(lo, hi):
        if n % 4 == 0: a.e(f"s_add_u32 s{sT0}, s{sWFo}, {(n//4)*4096}")
        a.e(f"buffer_load_dwordx4 {vr(wfreg(n),4)}, v{vL16}, {sr(sWS,4)}, s{sT0} offen offset:{1024*(n%4)} sc1")
def tile_waddr(a, dst, T):
    a.e(f"v_lshrrev_b32 v{T}, 5, v{vLANE}")
    a.e(f"v_lshl_add_u32 v{dst}, v{T}, 5, v{vL16}")
def job6(a):
    T = vT
    for j in range(8):
        a.e(f"v_mfma_f32_32x32x16_bf16 {vr(vBacc,16)}, {vr(vBD+4*j,4)}, {vr(vBU+4*j,4)}, {vr(vBacc,16) if j else 0}")
    tile_waddr(a, T, T + 1)
    a.e(f"s_mul_i32 s{sT0}, s{sWAVE}, {TS}")
    a.e(f"v_add_u32 v{T}, s{sT0}, v{T}")
    a.e(f"s_lshl2_add_u32 s{sT0}, s{sCb}, s{sQ}")
    a.e(f"s_lshl1_add_u32 s{sT0}, s{sT0}, s{sTt}")
    a.e(f"s_lshl_b32 s{sT0}, s{sT0}, 15")
    a.e(f"s_add_u32 s{sWFo}, s{sT0}, {hex(WS_WF)}")
    a.e(f"s_or_b32 s{sT2}, s{sTB}, s{sTt}")
    a.e(f"s_cmp_lg_u32 s{sT2}, 0")
    a.e("s_cbranch_scc1 L_j6b")
    for j in range(8):
        a.e(f"v_mfma_f32_32x32x16_bf16 {vr(vBU,16)}, {vr(vBD+4*j,4)}, {vr(vBR+4*j,4)}, {vr(vBU,16) if j else 0}")
    for q in range(4):
        a.e(f"ds_write_b128 v{T}, {vr(vBU+4*q,4)} offset:{8*TS + q*1088}")
    a.e("s_waitcnt lgkmcnt(0)")
    a.e("L_j6b:")
    wf_frag_loads(a, 0, 16)
    for q in range(4):
        a.e(f"ds_write_b128 v{T}, {vr(vBacc+4*q,4)} offset:{q*1088}")
def job7(a):
    wf_frag_loads(a, 16, 32)

vAcc, vGY, vOmg, vFr = 32, 64, 80, 88
vOd0, vOd1, vFl, vRa, vRow, vSt = 81, 82, 83, 84, 85, 86
def rbf(a, r):
    a.e(f"v_cvt_pk_bf16_f32 v{r}, v{r}, v{r}")
    a.e(f"v_and_b32 v{r}, 0xffff0000, v{r}")
def phase3(a, st):
    T = vT
    a.e(f"v_lshrrev_b32 v{T}, 3, v{vLANE}")
    a.e(f"s_lshl_b32 s{sT0}, s{sQ}, 3")
    a.e(f"v_add_u32 v{T}, s{sT0}, v{T}")
    a.e(f"v_and_b32 v{T+1}, 7, v{vLANE}")
    a.e(f"v_mul_u32_u24 v{vRa}, 544, v{T+1}")
    a.e(f"v_mov_b32 v{T+5}, v{vRa}")
    a.e(f"v_lshl_add_u32 v{vRa}, v{T}, 4, v{vRa}")
    for t in range(8):
        a.e(f"ds_read_b128 {vr(vFr+4*t,4)}, v{vRa} offset:{t*TS}", tag=("pm", t))
    a.e(f"s_lshl_b32 s{sT0}, s{sTB}, 5")
    a.e(f"v_add_u32 v{T}, s{sT0}, v{T}")
    a.e(f"v_sub_u32 v{T+2}, 2048, v{T}")
    a.e(f"v_cmp_eq_u32 vcc, 0, v{T}")
    a.e(f"v_mov_b32 v{T+3}, 1024")
    a.e(f"v_cndmask_b32 v{T+2}, v{T+2}, v{T+3}, vcc")
    a.e(f"v_cndmask_b32 v{T+3}, v{T}, v{T+3}, vcc")
    a.e(f"s_cmp_lg_u32 s{sTt}, 0")
    a.e(f"s_cselect_b64 vcc, -1, 0")
    a.e(f"v_cndmask_b32 v{vRow}, v{T}, v{T+2}, vcc")
    a.e(f"v_cndmask_b32 v{T+3}, v{T}, v{T+3}, vcc")
    a.e(f"v_lshlrev_b32 v{T+2}, 4, v{vRow}")
    a.e(f"v_lshlrev_b32 v{T+3}, 5, v{T+3}")
    a.e(f"v_lshlrev_b32 v{T}, 5, v{T}")
    a.e(f"s_mov_b32 s{sT0}, {hex(WS_GP)}")
    a.e(f"s_mov_b32 s{sT1}, {hex(WS_ZC)}")
    a.e(f"s_mov_b32 s{sT2}, {hex(WS_ZC+ZSTR)}")
    G, ZC, ZW, ZS = 32, 36, 40, 44
    a.e(f"buffer_load_dwordx4 {vr(G,4)}, v{T+2}, {sr(sWS,4)}, s{sT0} offen sc1", tag="sm")
    a.e(f"buffer_load_dwordx4 {vr(ZC,4)}, v{T+3}, {sr(sWS,4)}, s{sT1} offen sc1", tag="sm")
    a.e(f"buffer_load_dwordx4 {vr(ZW,4)}, v{T+3}, {sr(sWS,4)}, s{sT1} offen offset:16 sc1", tag="sm")
    a.e(f"buffer_load_dwordx4 {vr(ZS,4)}, v{T}, {sr(sWS,4)}, s{sT2} offen sc1", tag="sm")
    a.e(f"s_lshl_b32 s{sT0}, s{sTB}, 16")
    a.e(f"v_add_u32 v{vOd0}, s{sT0}, v{vL16}")
    a.e(f"s_sub_u32 s{sT0}, 63, s{sTB}")
    a.e(f"s_sub_u32 s{sT1}, 64, s{sTB}")
    a.e(f"s_cmp_eq_u32 s{sTB}, 0")
    a.e(f"s_cselect_b32 s{sT1}, 32, s{sT1}")
    a.e(f"v_and_b32 v{T}, 31, v{vLANE}")
    a.e(f"v_cmp_eq_u32 vcc, 0, v{T}")
    a.e(f"v_mov_b32 v{T+2}, s{sT0}")
    a.e(f"v_mov_b32 v{T+3}, s{sT1}")
    a.e(f"v_cndmask_b32 v{T+2}, v{T+2}, v{T+3}, vcc")
    a.e(f"v_sub_u32 v{T}, 32, v{T}")
    a.e(f"v_and_b32 v{T}, 31, v{T}")
    a.e(f"v_and_b32 v{T+3}, 32, v{vLANE}")
    a.e(f"v_add_u32 v{T}, v{T}, v{T+3}")
    a.e(f"v_lshlrev_b32 v{T}, 4, v{T}")
    a.e(f"v_lshl_add_u32 v{vOd1}, v{T+2}, 16, v{T}")
    a.e(f"v_cmp_eq_u32 vcc, 0, v{T+3}")
    a.e(f"v_mov_b32 v{T}, s{sTB}")
    a.e(f"v_cndmask_b32 v{T+2}, v{T+2}, v{T}, vcc")
    a.e(f"v_lshlrev_b32 v{vFl}, 7, v{T+2}")
    for t in range(0, 8, 2):
        a.wait(lg=("pm", t + 1))
        for i in range(4): a.e(f"v_add_f32 v{vFr+4*t+i}, v{vFr+4*t+i}, v{vFr+4*t+4+i}")
    a.e(f"s_xor_b32 s{sT0}, s{sWAVE}, 4")
    a.e(f"s_or_b32 s{sT0}, s{sT0}, s{sTB}")
    a.e(f"s_cmp_lg_u32 s{sT0}, 0")
    a.e("s_cbranch_scc1 L_norow")
    a.e("s_mov_b64 exec, 0xff")
    for pe in range(2):
        for k in range(8):
            d = vFr + 8 * pe if k == 0 else 48
            a.e(f"ds_read_b128 {vr(d,4)}, v{T+5} offset:{(8+2*pe+k//4)*TS + (k%4)*16}")
            a.e("s_waitcnt lgkmcnt(0)")
            if k:
                for i in range(4): a.e(f"v_add_f32 v{vFr+8*pe+i}, v{vFr+8*pe+i}, v{48+i}")
    a.e("s_mov_b64 exec, -1")
    a.e("L_norow:")
    a.wait(vm="ost")
    a.e(f"s_sub_u32 s{sT0}, s{sOFo}, {hex(WS_OF)}")
    a.e(f"s_lshr_b32 s{sT0}, s{sT0}, 9")
    a.e(f"s_add_u32 s{sT0}, s{sT0}, {hex(FL_O)}")
    a.e(f"v_mov_b32 v{T+4}, s{sTAG}")
    a.e(f"buffer_store_dword v{T+4}, v{vLz}, {sr(sWS,4)}, s{sT0} offen sc1")
    st()
    a.e(f"s_lshl_b32 s{sJ+6}, s{sWAVE}, 4")
    a.e(f"s_add_u32 s{sJ+6}, s{sJ+6}, {hex(FL_O)}")
    poll256_issue(a, (vFl, sJ + 6), 48)
    a.wait(vm="sm")
    for r in (G, ZC, ZW, ZS):
        a.e(f"v_add_f32 v{r}, v{r}, v{r+1}")
        a.e(f"v_add_f32 v{r+2}, v{r+2}, v{r+3}")
        a.e(f"v_add_f32 v{r}, v{r}, v{r+2}")
    rbf(a, G)
    a.e(f"v_mul_f32 v{G}, {hex(f2u(-math.log2(math.e)))}, v{G}")
    a.e(f"v_exp_f32 v{G}, v{G}")
    a.e(f"v_add_f32 v{ZW}, v{ZW}, v{ZC}")
    a.e(f"v_add_f32 v{G}, 1.0, v{G}")
    a.e(f"v_rcp_f32 v{G}, v{G}")
    for i in range(4):
        a.e(f"v_{'sub' if i % 2 else 'add'}_f32 v{vFr+i}, v{vFr+i}, v{ZC}")
        a.e(f"v_{'add' if i % 2 else 'sub'}_f32 v{vFr+24+i}, v{vFr+24+i}, v{ZS}")
    rbf(a, G)
    a.e(f"v_sub_f32 v{vOmg}, 1.0, v{G}")
    rbf(a, vOmg)
    a.e(f"s_cmp_lg_u32 s{sTt}, 0")
    a.e(f"s_cselect_b32 s{sT0}, 1.0, -1.0")
    for pe in range(2):
        for i in range(4):
            P, Q = vFr + 8 * pe + i, vFr + 16 + 8 * pe + i
            a.e(f"v_fma_f32 v{vGY+4*pe+i}, v{Q}, s{sT0}, v{P}")
            a.e(f"v_fma_f32 v{vGY+8+4*pe+i}, v{Q}, -s{sT0}, v{P}")
    a.e(f"v_or_b32 v{T}, s{sCb}, v{T+1}")
    a.e(f"v_cmp_eq_u32 vcc, 0, v{T}")
    a.e(f"v_cndmask_b32 v{vGY+8}, v{vGY+8}, v{ZW}, vcc")
    for i in range(16): a.e(f"v_mul_f32 v{vGY+i}, v{G}, v{vGY+i}")
    a.e(f"s_lshl_b32 s{sT0}, s{sCb}, 7")
    a.e(f"v_lshl_add_u32 v{T}, v{T+1}, 4, s{sT0}")
    a.e(f"v_lshlrev_b32 v{vRow}, 11, v{vRow}")
    a.e(f"v_add_u32 v{vSt}, v{vRow}, v{T}")
    a.e(f"v_sub_u32 v{T}, {2048-16}, v{T}")
    a.e(f"v_add_u32 v{vSt+1}, v{vRow}, v{T}")
    a.e(f"v_add_u32 v{vRow}, {1024-16}, v{vRow}")
    a.e(f"v_cndmask_b32 v{vRow}, v{vSt+1}, v{vRow}, vcc")
    a.e(f"s_lshl_b32 s{sT0}, s{sTt}, 14")
    a.e(f"v_add_u32 v{T}, s{sT0}, v{vL16}")
    a.e(f"v_add_u32 v{T+1}, 65536, v{T}")
    a.e("s_waitcnt vmcnt(0) lgkmcnt(0)")
    a.e("s_barrier")
    poll256_check(a, (vFl, sJ + 6), 48, "L_po", slp=1)
    st()
    base = [65536, 98304, 0, 32768]
    a.e(f"s_lshl_b32 s{sT0}, s{sWAVE}, 12")
    a.e(f"s_lshl_b32 s{sT1}, s{sWAVE}, 13")
    a.e(f"s_add_u32 s{sT1}, s{sT1}, {hex(WS_OF)}")
    for j in range(4):
        for rs in range(2):
            a.e(f"s_add_u32 m0, s{sT0}, {base[j] + rs*2048}")
            for f in range(2):
                a.e(f"buffer_load_dwordx4 v{[vOd0, vOd1][rs]}, {sr(sWS,4)}, s{sT1} offen offset:{f*1024} sc1 lds", tag=("O", j))
        if j < 3: a.e(f"s_add_u32 s{sT1}, s{sT1}, 2048")
    D = 3
    def rd(n):
        j, k = divmod(n, 8)
        if k == 0:
            a.wait(vm=("O", j)); a.e("s_barrier")
        for rs in range(2):
            a.e(f"ds_read_b128 {vr(vFr + (n % 6)*8 + 4*rs, 4)}, v{T+1 if j < 2 else T} offset:{(j%2)*32768 + (k//2)*4096 + rs*2048 + (k%2)*1024}", tag=("o", n))
    for n in range(D): rd(n)
    for n in range(32):
        j, k = divmod(n, 8)
        a.wait(lg=("o", n))
        wf = wfreg(8 * (k // 2) + 2 * j + k % 2)
        for rs in range(2):
            acc = vr(vAcc + 16 * rs, 16)
            a.e(f"v_mfma_f32_32x32x16_bf16 {acc}, {vr(wf,4)}, {vr(vFr + (n%6)*8 + 4*rs, 4)}, {acc if n else 0}")
        if n + D < 32: rd(n + D)
        if n == 2: st()
    st()
    tile_waddr(a, T, T + 1)
    a.e(f"s_lshl1_add_u32 s{sT0}, s{sQ}, s{sTt}")
    a.e(f"s_mul_i32 s{sT0}, s{sT0}, {TS}")
    a.e(f"s_add_u32 s{sT0}, s{sT0}, 65536")
    a.e(f"v_add_u32 v{T}, s{sT0}, v{T}")
    a.e(f"s_mul_i32 s{sT0}, s{sTt}, {8*TS}")
    a.e(f"s_add_u32 s{sT0}, s{sT0}, 65536")
    a.e(f"v_add_u32 v{vRa}, s{sT0}, v{vRa}")
    for rs in range(2):
        for q in range(4):
            a.e(f"ds_write_b128 v{T}, {vr(vAcc+16*rs+4*q,4)} offset:{rs*8*TS + q*1088}")
    a.e("s_waitcnt lgkmcnt(0)")
    a.e("s_barrier")
    for t in range(8):
        a.e(f"ds_read_b128 {vr(vFr+4*t,4)}, v{vRa} offset:{t*TS}", tag=("fb", t))
    for c in range(4):
        a.wait(lg=("fb", 2 * c + 1))
        for i in range(4):
            a.e(f"v_add_f32 v{vFr+8*c+i}, v{vFr+8*c+i}, v{vFr+8*c+4+i}")
        for i in range(4):
            a.e(f"v_fma_f32 v{vGY+4*c+i}, v{vFr+8*c+i}, v{vOmg}, v{vGY+4*c+i}")
        if c == 1:
            for i in range(4): a.e(f"v_cvt_pk_bf16_f32 v{32+i}, v{vGY+i}, v{vGY+4+i}")
            a.e(f"buffer_store_dwordx4 {vr(32,4)}, v{vSt}, {sr(sOUT,4)}, 0 offen")
    E, Od = vGY + 8, vGY + 12
    for i in range(3): a.e(f"v_cvt_pk_bf16_f32 v{36+i}, v{E+3-i}, v{Od+2-i}")
    a.e(f"v_cvt_pk_bf16_f32 v40, v{Od+3}, v{E}")
    a.e(f"buffer_store_dwordx3 {vr(36,3)}, v{vSt+1}, {sr(sOUT,4)}, 0 offen offset:4")
    a.e(f"buffer_store_short v40, v{vSt+1}, {sr(sOUT,4)}, 0 offen offset:2")
    a.e(f"buffer_store_short_d16_hi v40, v{vRow}, {sr(sOUT,4)}, 0 offen offset:16")

JOBS = {2: job_a, 3: job3, 4: job4, 5: job5, 6: job6, 7: job7}

def kernel_a():
    a = Asm(); st = Stamper(a)
    if Cfg.stamps: a.e("s_memrealtime s[96:97]")
    st()
    prologue(a, st)
    phase1(a, st)
    epilogue1(a, st)
    attention(a, st)
    phase3(a, st)
    a.e("s_waitcnt vmcnt(0) lgkmcnt(0)")
    st()
    st.dump()
    a.e("s_waitcnt vmcnt(0)")
    a.e("L_end:")
    a.e("s_endpgm")
    for g in sorted(JOBS):
        a.e(f"L_job{g}:")
        a.lg = ["K", "K", "V2", "V1"]; a.vm = []
        JOBS[g](a)
        a.e("s_waitcnt lgkmcnt(0)")
        a.e("s_branch L_attb")
    a.verify_edges()
    return a

HEADER = open("cdna_kernels/" + NAME + ".s.ref").read().split("; Override launch")[0]

def wrap(kernels):
    out = HEADER
    if len(kernels) == 1:
        l, a, g, b, lds, nv = kernels[0]
        out += f"; @launch grid=({g},1,1) block=({b},1,1) lds={lds}\n"
    else:
        for l, a, g, b, lds, nv in kernels:
            out += f"; @launch kernel={l} grid=({g},1,1) block=({b},1,1) lds={lds}\n"
    out += '.amdgcn_target "amdgcn-amd-amdhsa--gfx950"\n.text\n'
    for l, a, g, b, lds, nv in kernels:
        out += f".globl {l}\n.p2align 8\n.type {l},@function\n{l}:\n" + a.text()
    out += '.section .rodata,"a"\n'
    for l, a, g, b, lds, nv in kernels:
        acc = (nv + 3) // 4 * 4
        out += f""".p2align 6
.amdhsa_kernel {l}
  .amdhsa_next_free_vgpr {nv}
  .amdhsa_next_free_sgpr 102
  .amdhsa_accum_offset {acc}
  .amdhsa_group_segment_fixed_size 0
  .amdhsa_kernarg_size 96
  .amdhsa_user_sgpr_count 2
  .amdhsa_user_sgpr_kernarg_segment_ptr 1
  .amdhsa_system_sgpr_workgroup_id_x 1
.end_amdhsa_kernel
"""
    return out

if __name__ == "__main__":
    outp = sys.argv[1] if len(sys.argv) > 1 else "dev.s"
    Cfg.stamps = "--stamps" in sys.argv
    a = kernel_a()
    open(outp, "w").write(wrap([(NAME + "_kernel", a, 256, 512, 163840, NVGPR)]))
    print("instrs", len(a.ins), "auto nops", a.nops)
```

```python
import sys, math, struct
from asmlib import Asm, vr, sr

NAME = "gated_mix__spectral_fnet__mha_block__prompt"
MB = 1 << 20
WS_KV = 0
WS_OF = 8 * MB
WS_XF = 12 * MB
XSTR = 0x84000
WS_UV = 15 * MB
UVSTR = 33 * 16384
WS_WF = 18 * MB
WS_SM = 20 * MB
WS_GP = WS_SM
WS_XE = WS_SM + 0x10000
WS_ZC = WS_SM + 0x20000
ZSTR = 0x10000
OOB = 0x40000000
WS_FL = 21 * MB
WS_ST = 22 * MB
WS_CF = 24 * MB
WS_DF = 26 * MB
WS_SIZE = 28 * MB
FL_KV = WS_FL
FL_0 = WS_FL + 0x4000
FL_O = WS_FL + 0x8000
FL_A = WS_FL + 0xC000

def f2u(x): return struct.unpack("<I", struct.pack("<f", x))[0]

class Cfg:
    stamps = False
    pf = True
    wl = 4
    x = set()

def srd(a, d, koff, size):
    a.e(f"s_load_dwordx2 {sr(d,2)}, s[0:1], {koff}")
    a.e(f"s_mov_b32 s{d+2}, {hex(size)}")
    a.e(f"s_mov_b32 s{d+3}, 0x20000")

sX, sW, sWS, sDBG = 8, 12, 16, 20
sWAVE, sR, sH, sTAG = 3, 4, 5, 6
sT0, sT1, sT2, sT3 = 24, 25, 26, 27
sWo = 28
sWl, sXl, sXs = 31, 32, 33
sKVo, sF1o, sOFo = 34, 35, 36
sKVl = 37
sG = 38
sSpin = 39
sKVsrc = 40
sSlot = 41
sC1, sC2 = 42, 43
sGW, sWO, sMS, sMD, sOUT = 44, 48, 52, 56, 60
sRow = 98
sS = 7
sSTAMP = 78
sJ = 64
vLANE, vL16 = 1, 2
vXd = 4
vWd = 8
vWr = 9
vXr = 10
vT = 14
vAQ, vAK, vAV = 32, 48, 64
vXf = 80
vWf = 112
vS = [32, 48]
vO = 64
vM = 80
vQ = 96
vK = 104
vV = 112
vP = 120
vLs = 128
vSel = 132
vKVa = 3
NVGPR = 256

class Stamper:
    def __init__(self, a): self.a = a; self.n = 0
    def __call__(self):
        if not Cfg.stamps: return
        self.a.e(f"s_memtime s[94:95]")
        self.a.e("s_waitcnt lgkmcnt(0)")
        self.a.e(f"s_mov_b32 s{sSTAMP + self.n}, s94")
        self.n += 1
    def dump(self):
        if not Cfg.stamps: return
        a = self.a
        a.e(f"s_memrealtime {sr(sT0,2)}")
        a.e("s_waitcnt lgkmcnt(0)")
        a.e(f"s_lshl_b32 s{sT2}, s2, 3")
        a.e(f"s_add_u32 s{sT2}, s{sT2}, s{sWAVE}")
        a.e(f"s_lshl_b32 s{sT2}, s{sT2}, 7")
        a.e(f"s_add_u32 s{sT2}, s{sT2}, {hex(WS_ST)}")
        a.e(f"v_mov_b32 v{vT+1}, 0")
        for i in range(self.n):
            a.e(f"v_mov_b32 v{vT}, s{sSTAMP+i}")
            a.e(f"buffer_store_dword v{vT}, v{vT+1}, {sr(sWS,4)}, s{sT2} offen offset:{4*i}")
        a.e(f"v_mov_b32 v{vT}, s{sT0}")
        a.e(f"buffer_store_dword v{vT}, v{vT+1}, {sr(sWS,4)}, s{sT2} offen offset:{4*31}")
        a.e(f"v_mov_b32 v{vT}, s96")
        a.e(f"buffer_store_dword v{vT}, v{vT+1}, {sr(sWS,4)}, s{sT2} offen offset:{4*30}")


sPh, sOff, sXb, sLl, sWb, sK = 54, 55, 28, 29, 30, 31
sArr, sCb, sQ, sTt, sTrow = sJ, sJ + 1, sJ + 2, sJ + 3, sJ + 5
vLz = 21
LD_TAG = 61440
def prologue(a, st):
    a.e("s_cmp_ge_u32 s2, 256")
    a.e("s_cbranch_scc1 L_end")
    srd(a, sX, 0, 4 * MB)
    srd(a, sW, 48, 6 * MB)
    srd(a, sWS, 88, WS_SIZE)
    srd(a, sDBG, 80, 256)
    srd(a, sGW, 64, 2048)
    srd(a, sWO, 56, 2 * MB)
    srd(a, sOUT, 72, 4 * MB)
    a.e(f"v_and_b32 v{vLANE}, 63, v0")
    a.e(f"v_lshrrev_b32 v{vT}, 6, v0")
    a.e(f"v_lshlrev_b32 v{vL16}, 4, v{vLANE}")
    a.e(f"v_readfirstlane_b32 s{sWAVE}, v{vT}")
    a.e(f"s_bfe_u32 s{sT1}, s2, 0x20003")
    a.e(f"s_xor_b32 s{sT0}, s2, s{sT1}")
    a.e(f"s_and_b32 s{sT0}, s{sT0}, 1")
    a.e(f"s_lshl1_add_u32 s{sR}, s{sT1}, s{sT0}")
    a.e(f"s_bfe_u32 s{sT0}, s2, 0x20001")
    a.e(f"s_lshr_b32 s{sT1}, s2, 5")
    a.e(f"s_lshl3_add_u32 s{sH}, s{sT0}, s{sT1}")
    a.e(f"s_lshr_b32 s{sT0}, s{sWAVE}, 1")
    a.e(f"s_cmp_eq_u32 s{sT0}, 2")
    a.e("s_cbranch_scc1 L_load")
    common(a)
    a.e(f"s_cmp_ge_u32 s{sWAVE}, 6")
    a.e("s_cbranch_scc1 L_p0")
def common(a):
    a.e(f"s_mul_i32 s{sXl}, s{sWAVE}, 12288")
    a.e(f"s_add_u32 s{sXl}, s{sXl}, 65536")
    a.e(f"s_lshr_b32 s{sArr}, s{sH}, 3")
    a.e(f"s_and_b32 s{sCb}, s{sH}, 7")
    a.e(f"s_and_b32 s{sQ}, s{sWAVE}, 3")
    a.e(f"s_lshr_b32 s{sTt}, s{sWAVE}, 2")
    a.e(f"s_lshl1_add_u32 s{sT0}, s{sR}, s{sTt}")
    a.e(f"s_lshl_b32 s{sT0}, s{sT0}, 6")
    a.e(f"s_and_b32 s{sT1}, s{sArr}, 1")
    a.e(f"s_add_u32 s{sTrow}, s{sT0}, s{sT1}")
    a.e(f"v_mov_b32 v{vT}, {hex(OOB)}")
    a.e(f"v_cmp_eq_u32 vcc, 63, v{vLANE}")
    a.e(f"v_cndmask_b32_e64 v{vLz}, v{vT}, 0, vcc")

vWd3 = 8
def issue_x(a, i):
    a.e(f"s_add_u32 s{sK}, s{sOff}, {i}")
    a.e(f"s_and_b32 s{sK}, s{sK}, 15")
    a.e(f"s_lshl_b32 s{sK}, s{sK}, 7")
    a.e(f"s_add_u32 s{sK}, s{sK}, s{sXb}")
    for t in range(4):
        a.e(f"s_add_u32 m0, s{sLl}, {t*12288 + (i % 3)*4096}")
        if t: a.e(f"s_add_u32 s{sK}, s{sK}, 65536")
        for q in range(4):
            a.e(f"buffer_load_dwordx4 v{vXd+q}, {sr(sX,4)}, s{sK} offen offset:{q*1024} lds", tag=("X", i))
def issue_w(a, i):
    a.e(f"s_add_u32 s{sK}, s{sOff}, {i}")
    a.e(f"s_and_b32 s{sK}, s{sK}, 15")
    a.e(f"s_mul_i32 s{sK}, s{sK}, {64*6144}")
    a.e(f"s_add_u32 s{sK}, s{sK}, s{sWb}")
    for j in range(2):
        a.e(f"s_add_u32 m0, s{sXs}, {(i % 5)*12288 + j*3072}")
        if j: a.e(f"s_add_u32 s{sK}, s{sK}, {16*6144}")
        for m in range(3):
            a.e(f"buffer_load_dwordx4 v{vWd3+m}, {sr(sW,4)}, s{sK} offen offset:{m*1024} lds", tag=("W", i))
def loader_start(a):
    if "o1" in Cfg.x:
        a.e(f"s_and_b32 s{sOff}, s2, 7"); a.e(f"s_lshl_b32 s{sOff}, s{sOff}, 1")
    elif "o0" in Cfg.x:
        a.e(f"s_mov_b32 s{sOff}, 0")
    elif "o4" in Cfg.x:
        a.e(f"s_add_u32 s{sOff}, s{sR}, s{sH}"); a.e(f"s_and_b32 s{sOff}, s{sOff}, 2"); a.e(f"s_and_b32 s{sT0}, s{sH}, 1")
        a.e(f"s_add_u32 s{sOff}, s{sOff}, s{sT0}"); a.e(f"s_lshl_b32 s{sOff}, s{sOff}, 2")
        a.e(f"s_bfe_u32 s{sT0}, s2, 0x20001"); a.e(f"s_add_u32 s{sOff}, s{sOff}, s{sT0}")
    else:
        a.e(f"s_and_b32 s{sOff}, s{sH}, 1"); a.e(f"s_lshl_b32 s{sOff}, s{sOff}, 3")
        a.e(f"s_and_b32 s{sT0}, s2, 7"); a.e(f"s_add_u32 s{sOff}, s{sOff}, s{sT0}")
    a.e(f"s_and_b32 s{sT2}, s{sWAVE}, 1")
    a.e(f"s_lshl1_add_u32 s{sT0}, s{sR}, s{sT2}")
    a.e(f"s_lshl_b32 s{sXb}, s{sT0}, 18")
    a.e(f"s_mul_i32 s{sLl}, s{sT2}, {4*12288}")
    a.e(f"s_add_u32 s{sLl}, s{sLl}, 65536")
    a.e(f"s_mul_i32 s{sWb}, s{sT2}, {32*6144}")
    a.e(f"s_lshl_b32 s{sT0}, s{sH}, 6")
    a.e(f"s_add_u32 s{sWb}, s{sWb}, s{sT0}")
    a.e(f"s_mul_i32 s{sXs}, s{sT2}, 6144")
    a.e(f"v_lshrrev_b32 v{vT}, 3, v{vLANE}")
    a.e(f"v_lshlrev_b32 v{vT}, 11, v{vT}")
    a.e(f"v_and_b32 v{vT+1}, 7, v{vLANE}")
    a.e(f"v_lshrrev_b32 v{vT+2}, 4, v{vLANE}")
    a.e(f"v_xor_b32 v{vT+1}, v{vT+1}, v{vT+2}")
    a.e(f"v_lshlrev_b32 v{vT+1}, 4, v{vT+1}")
    a.e(f"v_add_u32 v{vXd}, v{vT}, v{vT+1}")
    a.e(f"v_xor_b32 v{vT+1}, 64, v{vT+1}")
    a.e(f"v_add_u32 v{vT}, v{vT}, v{vT+1}")
    a.e(f"v_add_u32 v{vXd+1}, {16384-1024}, v{vT}")
    a.e(f"v_add_u32 v{vXd+2}, {2*(16384-1024)}, v{vXd}")
    a.e(f"v_add_u32 v{vXd+3}, {3*(16384-1024)}, v{vT}")
    a.e(f"v_lshrrev_b32 v{vT}, 2, v{vLANE}")
    a.e(f"v_mul_u32_u24 v{vT}, 6144, v{vT}")
    a.e(f"v_and_b32 v{vT+1}, 3, v{vLANE}")
    a.e(f"v_lshl_add_u32 v{vWd3}, v{vT+1}, 4, v{vT}")
    a.e(f"v_add_u32 v{vWd3+1}, 1024, v{vWd3}")
    a.e(f"v_add_u32 v{vWd3+2}, 2048, v{vWd3}")
    a.e("s_waitcnt lgkmcnt(0)")
    issue_w(a, 0); issue_x(a, 0); issue_w(a, 1); issue_x(a, 1)

def c_stream():
    return [f"s_lshl_b32 s{sJ+7}, s{sQ}, 7", f"s_lshr_b32 s{sJ+8}, s{sArr}, 1"] + \
        cos_stream(vJC, 8, sTrow, sJ + 7, sJ + 8, 1.0 / 2048, 24, nine=True)

def loader(a, st):
    a.e("L_load:")
    a.vm = []; a.lg = []
    loader_start(a)
    common(a)
    side = c_stream()
    nw = 2
    for i in range(16):
        a.wait(vm=[("X", i), ("W", i)])
        a.e("s_barrier")
        if i in (0, 4, 8, 12): st()
        if i + 2 < 16: issue_x(a, i + 2)
        k = 0
        while nw < 16 and nw <= i + Cfg.wl and k < 2:
            issue_w(a, nw); nw += 1; k += 1
        if i >= 13:
            for _ in range(70 if i < 15 else 1000):
                if side: a.e(side.pop(0))
    st()
    a.e("s_branch L_epi")

vX0 = 32
vG = 96
vF = 112
vGp = 128
vU = 174
vPa, vPb, vPc, vPb0, vPc0, vMk, vSo, vL0, vSg = range(192, 201)
vWa = 202
vWG = 208
vCd = 240

def cos_stream(dst, nfr, srow, scol, smat, inv, T, nine=False):
    q = []
    A, tf, t9, t0 = T, T + 1, T + 2, T + 3
    q.append(f"s_cmp_lg_u32 s{smat}, 0")
    q.append(f"s_cselect_b32 s{sPh}, 0x3e800000, 0")
    q.append(f"v_and_b32 v{tf}, 31, v{vLANE}")
    q.append(f"v_lshl_add_u32 v{tf}, v{tf}, 1, s{srow}")
    q.append(f"v_cvt_f32_u32 v{tf}, v{tf}")
    q.append(f"v_mul_f32 v{tf}, {hex(f2u(inv))}, v{tf}")
    q.append(f"v_lshrrev_b32 v{t0}, 5, v{vLANE}")
    q.append(f"v_lshl_add_u32 v{t0}, v{t0}, 3, s{scol}")
    q.append(f"v_cvt_f32_u32 v{t0}, v{t0}")
    q.append(f"v_fma_f32 v{A}, v{tf}, v{t0}, s{sPh}")
    q.append(f"v_fract_f32 v{A}, v{A}")
    q.append(f"v_mul_f32 v{t9}, {hex(f2u(9.0))}, v{tf}")
    if nine:
        q.append(f"v_mul_f32 v{t0}, {hex(f2u(512.0))}, v{tf}")
        q.append(f"v_add_f32 v{t0}, s{sPh}, v{t0}")
        q.append(f"v_fract_f32 v{t0}, v{t0}")
        q.append(f"v_cos_f32 v{t0}, v{t0}")
        for i in range(1, 4): q.append(f"v_mov_b32 v{dst+4*nfr+i}, 0")
        q.append(f"v_cvt_pk_bf16_f32 v{dst+4*nfr}, v{t0}, v{t0}")
    for k in range(4 * nfr):
        t = t0 + 2 * (k % 2)
        q.append(f"v_cos_f32 v{t}, v{A}")
        q.append(f"v_add_f32 v{A}, v{A}, v{tf}")
        q.append(f"v_cos_f32 v{t+1}, v{A}")
        q.append(f"v_add_f32 v{A}, v{A}, v{t9 if k % 4 == 3 else tf}")
        q.append(f"v_cvt_pk_bf16_f32 v{dst+k}, v{t}, v{t+1}")
    return q

def p0_setup(a):
    a.e(f"s_and_b32 s{sT0}, s2, 1")
    a.e(f"s_lshl_b32 s{sT0}, s{sT0}, 8")
    a.e(f"s_andn2_b32 s{sT1}, s2, 1")
    a.e(f"s_add_u32 s{sT0}, s{sT0}, s{sT1}")
    a.e(f"s_and_b32 s{sT3}, s{sWAVE}, 1")
    a.e(f"s_add_u32 s{sS}, s{sT0}, s{sT3}")
    a.e(f"s_lshl_b32 s{sRow}, s{sS}, 11")
    a.e(f"s_sub_u32 s{sRow+1}, {hex(2048*2048)}, s{sRow}")
    a.e(f"s_sub_u32 s{sRow+2}, {hex(1024*2048)}, s{sRow}")
    a.e(f"s_add_u32 s{sRow+3}, {hex(1024*2048)}, s{sRow}")
    a.e(f"s_cmp_eq_u32 s{sS}, 0")
    a.e(f"s_cselect_b32 s{sRow+1}, {hex(512*2048)}, s{sRow+1}")
    a.e(f"s_cselect_b32 s{sRow+2}, {hex(1536*2048)}, s{sRow+2}")
    a.e(f"s_cselect_b32 s{sC1}, 0, 1.0")
    a.e(f"v_lshlrev_b32 v{vPa}, 1, v{vLANE}")
    a.e(f"v_cmp_eq_u32 vcc, 0, v{vLANE}")
    a.e(f"v_sub_u32 v{vPb0}, 2048, v{vPa}")
    a.e(f"v_sub_u32 v{vPc0}, 1024, v{vPa}")
    a.e(f"v_sub_u32 v{vPb}, {2048-384}, v{vPa}")
    a.e(f"v_sub_u32 v{vPc}, {1024-384}, v{vPa}")
    a.e(f"v_mov_b32 v{vU+1}, 512")
    a.e(f"v_mov_b32 v{vU+2}, 1536")
    a.e(f"v_cndmask_b32 v{vPb0}, v{vPb0}, v{vU+1}, vcc")
    a.e(f"v_cndmask_b32 v{vPc0}, v{vPc0}, v{vU+2}, vcc")
    for i in range(80): a.e(f"v_mov_b32 v{vX0+i}, 0")
    a.e(f"v_cndmask_b32_e64 v{vMk}, 1.0, 0, vcc")
    a.e(f"v_mov_b32 v{vU+1}, {hex(OOB)}")
    a.e(f"v_cndmask_b32_e64 v{vL0}, v{vU+1}, 0, vcc")
    a.e(f"v_and_b32 v{vU+1}, 3, v{vLANE}")
    a.e(f"v_mul_u32_u24 v{vU+1}, {hex(XSTR)}, v{vU+1}")
    a.e(f"v_lshrrev_b32 v{vU}, 2, v{vLANE}")
    a.e(f"v_lshl_add_u32 v{vSo}, v{vU}, 4, v{vU+1}")
    a.e(f"v_lshlrev_b32 v{vU}, 31, v{vLANE}")
    a.e(f"v_or_b32 v{vSg}, 1.0, v{vU}")
    a.e(f"s_mov_b32 s{sC2}, 0x3f803f80")
    a.e(f"s_and_b32 s{sT0}, s2, 7")
    a.e(f"s_lshr_b32 s{sT1}, s2, 7")
    a.e(f"s_bfe_u32 s{sT2}, s2, 0x40003")
    a.e(f"s_lshl_b32 s{sJ+7}, s{sT0}, 6")
    a.e(f"s_add_u32 s{sJ+7}, s{sJ+7}, s{sT1}")
    a.e(f"s_lshl_b32 s{sJ+8}, s{sT2}, 4")
    a.e(f"s_lshl1_add_u32 s{sT1}, s{sT3}, s{sT1}")
    a.e(f"s_lshl3_add_u32 s{sT1}, s{sT1}, s{sT0}")
    a.e(f"s_lshl4_add_u32 s{sT1}, s{sT1}, s{sT2}")
    a.e(f"s_lshl_b32 s{sT1}, s{sT1}, 10")
    a.e(f"s_add_u32 s{sJ+9}, s{sT1}, {hex(WS_DF)}")
    a.e(f"s_mov_b32 s{sJ+10}, s{sT3}")
    a.e(f"s_lshl_b32 s{sT1}, s{sT0}, 6")
    a.e(f"v_and_b32 v{vU}, 31, v{vLANE}")
    a.e(f"v_lshl_add_u32 v{vU}, v{vU}, 1, s{sT1}")
    a.e(f"v_sub_u32 v{vU+1}, 1024, v{vU}")
    a.e(f"v_cmp_eq_u32 vcc, 0, v{vU}")
    a.e(f"v_mov_b32 v{vU+2}, 512")
    a.e(f"v_cndmask_b32 v{vU+2}, v{vU+1}, v{vU+2}, vcc")
    a.e(f"v_lshrrev_b32 v{vU+3}, 5, v{vLANE}")
    a.e(f"v_lshlrev_b32 v{vU+3}, 13, v{vU+3}")
    a.e(f"v_lshl_add_u32 v{vWa}, v{vU}, 1, v{vU+3}")
    a.e(f"v_add_u32 v{vWa+1}, 2, v{vWa}")
    a.e(f"v_lshl_add_u32 v{vWa+2}, v{vU+2}, 1, v{vU+3}")
    a.e(f"v_lshl_add_u32 v{vWa+3}, v{vU+1}, 1, v{vU+3}")
    a.e(f"v_add_u32 v{vWa+3}, -2, v{vWa+3}")
    a.e(f"s_lshr_b32 s{sT1}, s2, 3")
    a.e(f"s_lshl1_add_u32 s{sT1}, s{sT1}, s{sT3}")
    a.e(f"s_lshl_b32 s{sT0}, s{sT0}, 8")
    a.e(f"s_add_u32 s{sT0}, s{sT0}, s{sT1}")
    a.e(f"s_lshl_b32 s{sT0}, s{sT0}, 10")
    a.e(f"s_add_u32 s{sJ+4}, s{sT0}, {hex(WS_WF)}")
    a.e(f"s_lshl_b32 s{sJ+6}, s{sT1}, 15")

def p0_loads(a, qq):
    addr = [(vPa, 128 * qq), (vPb, 128 * (3 - qq)), (vPc, 128 * (3 - qq)), (vPa, 1024 + 128 * qq)]
    if qq == 0: addr[1] = (vPb0, 0); addr[2] = (vPc0, 0)
    for r in range(4):
        for k in range(4):
            a.e(f"buffer_load_short_d16_hi v{vX0+16*qq+4*r+k}, v{addr[k][0]}, {sr(sX,4)}, s{sRow+r} offen offset:{addr[k][1]}", tag=("p0", qq))
    for k in range(4):
        a.e(f"buffer_load_short_d16_hi v{vG+4*qq+k}, v{addr[k][0]}, {sr(sGW,4)}, 0 offen offset:{addr[k][1]}", tag=("p0", qq))
def wf_loads(a, ct):
    for p, row in enumerate((0, 2, 8, 10)):
        a.e(f"s_add_u32 s{sT2}, s{sJ+6}, {row*2048}")
        a.e(f"buffer_load_ushort v{vWG+8*ct+p}, v{vWa+ct}, {sr(sWO,4)}, s{sT2} offen", tag=("wg", ct))
        a.e(f"buffer_load_ushort v{vWG+8*ct+4+p}, v{vWa+ct}, {sr(sWO,4)}, s{sT2} offen offset:2048", tag=("wg", ct))
def wf_store(a, ct):
    a.wait(vm=("wg", ct))
    for p in range(4): a.e(f"v_lshl_or_b32 v{vWG+8*ct+p}, v{vWG+8*ct+4+p}, 16, v{vWG+8*ct+p}")
    a.e(f"s_add_u32 s{sT2}, s{sJ+4}, {ct*65536}")
    a.e(f"buffer_store_dwordx4 {vr(vWG+8*ct,4)}, v{vL16}, {sr(sWS,4)}, s{sT2} offen sc1")

DPP = ["row_shr:1 row_mask:0xf bank_mask:0xf", "row_shr:2 row_mask:0xf bank_mask:0xf", "row_shr:4 row_mask:0xf bank_mask:0xf",
       "row_shr:8 row_mask:0xf bank_mask:0xf", "row_bcast:15 row_mask:0xa bank_mask:0xf", "row_bcast:31 row_mask:0xc bank_mask:0xf"]

def p0_dfold(a, qq):
    P = vU + 8
    for ar in range(4):
        f = vF + 4 * ar
        if qq == 0:
            ng = "" if ar < 2 else "-"
            a.e(f"v_fma_f32 v{vU}, v{f+1}, {ng}v{vMk}, v{f}")
            a.e(f"v_fma_f32 v{vU+1}, v{f+2}, {ng}v{vMk}, v{f+3}")
            a.e(f"v_{'add' if ar < 2 else 'sub'}_f32 v{vU+4+ar}, v{f+1}, v{f+2}")
        else:
            op = "add" if ar < 2 else "sub"
            a.e(f"v_{op}_f32 v{vU}, v{f}, v{f+1}")
            a.e(f"v_{op}_f32 v{vU+1}, v{f+3}, v{f+2}")
        a.e(f"v_add_f32 v{vU+2}, v{vU}, v{vU+1}")
        a.e(f"v_sub_f32 v{vU+3}, v{vU}, v{vU+1}")
        if ar < 2:
            if qq == 0: a.e(f"v_mul_f32 v{vGp+4+ar}, v{vSg}, v{vU+2}")
            else:       a.e(f"v_fmac_f32 v{vGp+4+ar}, v{vSg}, v{vU+2}")
        a.e(f"v_cvt_pk_bf16_f32 v{P+ar}, v{vU+2}, v{vU+3}")
    N = vU + 12
    a.e("s_mov_b32 vcc_lo, 0x55555555"); a.e("s_mov_b32 vcc_hi, 0x55555555")
    x1 = "quad_perm:[1,0,3,2] row_mask:0xf bank_mask:0xf"; x2 = "quad_perm:[2,3,0,1] row_mask:0xf bank_mask:0xf"
    a.e(f"v_cndmask_b32_dpp v{N}, v{P+1}, v{P}, vcc {x1}")
    a.e(f"v_cndmask_b32_dpp v{N+2}, v{P+3}, v{P+2}, vcc {x1}")
    a.e("s_not_b64 vcc, vcc")
    a.e(f"v_cndmask_b32_dpp v{N+1}, v{P}, v{P+1}, vcc {x1}")
    a.e(f"v_cndmask_b32_dpp v{N+3}, v{P+2}, v{P+3}, vcc {x1}")
    a.e("s_mov_b32 vcc_lo, 0x33333333"); a.e("s_mov_b32 vcc_hi, 0x33333333")
    a.e(f"v_cndmask_b32_dpp v{P}, v{N+2}, v{N}, vcc {x2}")
    a.e(f"v_cndmask_b32_dpp v{P+1}, v{N+3}, v{N+1}, vcc {x2}")
    a.e("s_not_b64 vcc, vcc")
    a.e(f"v_cndmask_b32_dpp v{P+2}, v{N}, v{N+2}, vcc {x2}")
    a.e(f"v_cndmask_b32_dpp v{P+3}, v{N+1}, v{N+3}, vcc {x2}")
    a.e(f"s_mov_b32 s{sT1}, 0x05040100"); a.e(f"s_mov_b32 s{sT2}, 0x07060302")
    R = vU + 14
    assert R % 4 == 0
    a.e(f"v_perm_b32 v{R}, v{P+1}, v{P}, s{sT1}")
    a.e(f"v_perm_b32 v{R+1}, v{P+3}, v{P+2}, s{sT1}")
    a.e(f"v_perm_b32 v{R+2}, v{P+1}, v{P}, s{sT2}")
    a.e(f"v_perm_b32 v{R+3}, v{P+3}, v{P+2}, s{sT2}")
    a.e(f"s_lshl_b32 s{sT1}, s{sS}, 10")
    a.e(f"s_add_u32 s{sT1}, s{sT1}, {hex(WS_XF)}")
    a.e(f"buffer_store_dwordx4 {vr(R,4)}, v{vSo}, {sr(sWS,4)}, s{sT1} offen offset:{256*qq} sc1")
    if qq == 0:
        a.e(f"v_cvt_pk_bf16_f32 v{vU+4}, v{vU+4}, v{vU+5}")
        a.e(f"v_cvt_pk_bf16_f32 v{vU+6}, v{vU+6}, v{vU+7}")
        a.e(f"s_lshl_b32 s{sT0}, s{sS}, 1")
        for ar in range(4):
            a.e(f"s_add_u32 s{sT1}, s{sT0}, {hex(WS_XE + ar*16384)}")
            a.e(f"buffer_store_short{'_d16_hi' if ar % 2 else ''} v{vU+4+(ar//2)*2}, v{vL0}, {sr(sWS,4)}, s{sT1} offen sc1")
def p0_reduce(a, red):
    for d in DPP:
        for r in red: a.e(f"v_add_f32_dpp v{r}, v{r}, v{r} {d}")
    a.e(f"v_cvt_pk_bf16_f32 v{vGp+4}, v{vGp+4}, v{vGp+5}")
    a.e(f"s_lshl_b32 s{sT0}, s{sS}, 1")
    for ar in range(2):
        a.e(f"s_add_u32 s{sT2}, s{sT0}, {hex(WS_XE + ar*16384 + 4*2048)}")
        a.e(f"buffer_store_short{'_d16_hi' if ar % 2 else ''} v{vGp+4}, v{vLz}, {sr(sWS,4)}, s{sT2} offen sc1")

def p0_quarter(a, qq):
    a.wait(vm=("p0", qq))
    X = vX0 + 16 * qq
    for r in range(4):
        x = X + 4 * r
        for k in range(4): a.e(f"v_mul_f32 v{vU+k}, v{x+k}, v{vG+4*qq+k}")
        a.e(f"v_cvt_pk_bf16_f32 v{vU+4}, v{vU}, v{vU+1}")
        a.e(f"v_cvt_pk_bf16_f32 v{vU+5}, v{vU+2}, v{vU+3}")
        a.e(f"v_dot2_f32_bf16 v{vGp+r}, v{vU+4}, s{sC2}, {'v%d' % (vGp+r) if qq else '0'}")
        a.e(f"v_dot2_f32_bf16 v{vGp+r}, v{vU+5}, s{sC2}, v{vGp+r}")
    for k in range(4):
        A, B, C, D = [X + 4 * r + k for r in range(4)]
        a.e(f"v_fma_f32 v{vU}, v{B}, s{sC1}, v{A}")
        a.e(f"v_fma_f32 v{vU+1}, v{C}, s{sC1}, v{D}")
        a.e(f"v_fma_f32 v{vU+2}, v{B}, -s{sC1}, v{A}")
        a.e(f"v_fma_f32 v{vU+3}, v{C}, -s{sC1}, v{D}")
        a.e(f"v_add_f32 v{vF+k}, v{vU}, v{vU+1}")
        a.e(f"v_sub_f32 v{vF+4+k}, v{vU}, v{vU+1}")
        a.e(f"v_add_f32 v{vF+8+k}, v{vU+2}, v{vU+3}")
        a.e(f"v_sub_f32 v{vF+12+k}, v{vU+2}, v{vU+3}")
    p0_dfold(a, qq)
def p0_finish(a):
    p0_reduce(a, [vGp + i for i in range(6)])
    for r in range(4):
        a.e(f"s_lshr_b32 s{sT2}, s{sRow+r}, 9")
        a.e(f"s_add_u32 s{sT2}, s{sT2}, {hex(WS_GP)}")
        a.e(f"buffer_store_dword v{vGp+r}, v{vLz}, {sr(sWS,4)}, s{sT2} offen sc1")

def p0_special(a):
    vm = list(a.vm)
    a.e(f"s_cmp_lg_u32 s{sS}, 0")
    a.e("s_cbranch_scc1 L_p0done")
    a.e(f"s_mov_b32 s{sS}, 512")
    for qq in range(4):
        for k in range(4):
            B, C = vX0 + 16 * qq + 4 + k, vX0 + 16 * qq + 8 + k
            a.e(f"v_add_f32 v{vF+k}, v{B}, v{C}")
            a.e(f"v_add_f32 v{vF+4+k}, v{B}, v{C}")
            a.e(f"v_sub_f32 v{vF+8+k}, v{B}, v{C}")
            a.e(f"v_sub_f32 v{vF+12+k}, v{B}, v{C}")
        p0_dfold(a, qq)
    p0_reduce(a, [vGp + 4, vGp + 5])
    a.e("L_p0done:")
    a.vm = vm

def flag_wg(a, off, lbl, wave=0):
    vm = list(a.vm)
    a.e(f"s_cmp_lg_u32 s{sWAVE}, {wave}")
    a.e(f"s_cbranch_scc1 {lbl}")
    a.e(f"s_lshl_b32 s{sT0}, s2, 2")
    a.e(f"s_add_u32 s{sT0}, s{sT0}, {hex(off)}")
    a.e(f"v_mov_b32 v{vT+4}, s{sTAG}")
    a.e(f"buffer_store_dword v{vT+4}, v{vLz}, {sr(sWS,4)}, s{sT0} offen sc1")
    a.e(f"{lbl}:")
    a.vm = vm

def p0wave(a, st):
    a.e("L_p0:")
    a.vm = []; a.lg = []
    p0_setup(a)
    a.e("s_waitcnt lgkmcnt(0)")
    a.e(f"s_cmp_lg_u32 s{sS}, 0")
    a.e("s_cbranch_scc1 L_notag")
    a.e(f"s_memrealtime {sr(sT0,2)}")
    a.e("s_waitcnt lgkmcnt(0)")
    a.e(f"s_or_b32 s{sT0}, s{sT0}, 1")
    a.e(f"v_mov_b32 v{vT}, s{sT0}")
    a.e(f"v_mov_b32 v{vT+1}, 0")
    a.e(f"buffer_store_dword v{vT}, v{vT+1}, {sr(sDBG,4)}, 0 offen sc1")
    a.vm.pop()
    a.e("L_notag:")
    def dfrag():
        for t in cos_stream(vCd, 1, sJ + 7, sJ + 8, sJ + 10, 1.0 / 1024, 24): a.e(t)
        a.e(f"buffer_store_dwordx4 {vr(vCd,4)}, v{vL16}, {sr(sWS,4)}, s{sJ+9} offen sc1")
    def tag_issue():
        a.e(f"v_mov_b32 v{vT+1}, 0")
        a.e(f"buffer_load_dword v{vT}, v{vT+1}, {sr(sDBG,4)}, 0 offen sc1", tag="tag")
    def tag_lds():
        a.e(f"v_mov_b32 v{vT}, s{sTAG}")
        a.e(f"v_and_b32 v{vT+1}, 7, v{vLANE}")
        a.e(f"v_mul_u32_u24 v{vT+1}, 12288, v{vT+1}")
        a.e(f"v_add_u32 v{vT+1}, 65536, v{vT+1}")
        a.e(f"ds_write_b32 v{vT+1}, v{vT} offset:6144")
    side = c_stream()
    def cs(n):
        for _ in range(n):
            if side: a.e(side.pop(0))
    L = lambda f, *x: (lambda: f(a, *x))
    seg = {-1: [dfrag, L(p0_loads, 0), L(p0_loads, 1)],
           0: [L(p0_loads, 2)], 1: [L(p0_quarter, 0), L(p0_loads, 3)], 2: [L(p0_quarter, 1), L(wf_loads, 0), L(wf_loads, 1)],
           3: [L(p0_quarter, 2), L(wf_loads, 2), L(wf_loads, 3), tag_issue], 4: [L(p0_quarter, 3)], 5: [L(p0_finish), L(p0_special)],
           6: [L(wf_store, 0), L(wf_store, 1), L(wf_store, 2), L(wf_store, 3), L(get_tag)], 7: [lambda: cs(60)], 8: [lambda: cs(60)],
           9: [lambda: cs(100), lambda: a.e("s_waitcnt vmcnt(0)")], 10: [L(flag_wg, FL_0, "L_f0", 6)], 14: [tag_lds]}
    for i in range(-1, 16):
        if i >= 0: a.e("s_barrier")
        if i in (0, 4, 8, 12): st()
        for f in seg.get(i, []): f()
    assert not side
    st()
    a.e("s_branch L_epi")

vA2, vXf2 = 172, 220
def phase1(a, st):
    a.vm = []; a.lg = []
    a.e(f"v_lshrrev_b32 v{vT}, 5, v{vLANE}")
    a.e(f"v_lshlrev_b32 v{vT}, 9, v{vT}")
    a.e(f"v_bfe_u32 v{vT+1}, v{vLANE}, 2, 2")
    a.e(f"v_lshl_add_u32 v{vT}, v{vT+1}, 6, v{vT}")
    a.e(f"v_bfe_u32 v{vT+1}, v{vLANE}, 4, 1")
    a.e(f"v_lshl_add_u32 v{vT}, v{vT+1}, 5, v{vT}")
    a.e(f"v_and_b32 v{vT+1}, 3, v{vLANE}")
    a.e(f"v_lshl_add_u32 v{vWr}, v{vT+1}, 3, v{vT}")
    a.e(f"v_and_b32 v{vT}, 31, v{vLANE}")
    a.e(f"v_bfe_u32 v{vT+1}, v{vLANE}, 1, 3")
    a.e(f"v_lshrrev_b32 v{vT+2}, 5, v{vLANE}")
    a.e(f"v_xor_b32 v{vT+1}, v{vT+1}, v{vT+2}")
    a.e(f"v_lshlrev_b32 v{vT+1}, 4, v{vT+1}")
    a.e(f"v_lshl_add_u32 v{vT}, v{vT}, 7, v{vT+1}")
    for s in range(4):
        a.e(f"v_xor_b32 v{vT+1}, {32*s}, v{vT}")
        a.e(f"v_add_u32 v{vXr+s}, s{sXl}, v{vT+1}")
    for t in c_stream(): a.e(t)
    a.e("s_waitcnt lgkmcnt(0)")
    def rd_w(n, m):
        i, s = divmod(n, 4)
        for t in range(2):
            a.e(f"ds_read_b64_tr_b16 {vr(vWf + (n % 2) * 12 + 4 * m + 2 * t, 2)}, v{vWr} offset:{((i % 5)*12 + 3*s + m) * 1024 + 256 * t}", tag=("w", n, m))
    def xreg(i, s, b): return [vXf, vXf2][b] + (i % 2) * 16 + 4 * s
    def rd_x(i, s, b):
        a.e(f"ds_read_b128 {vr(xreg(i,s,b), 4)}, v{vXr+s} offset:{(i % 3) * 4096 + b*49152}", tag=("x", i, s, b))
    a.e("s_barrier")
    st()
    rd_x(0, 0, 0); rd_w(0, 0); rd_x(0, 0, 1); rd_w(0, 1); rd_w(0, 2)
    for s in range(1, 4): rd_x(0, s, 0); rd_x(0, s, 1)
    for n in range(64):
        i, s = divmod(n, 4)
        fill = [[] for _ in range(6)]
        if s == 3 and i < 15:
            a.wait(lg=[("w", n, 2)])
            a.e("s_barrier")
            if (i + 1) % 4 == 0: st()
        if n < 63:
            for m in range(3): fill[m].append(lambda m=m: rd_w(n + 1, m))
            if s == 3:
                fill[0].insert(0, lambda: rd_x(i + 1, 0, 0)); fill[1].insert(0, lambda: rd_x(i + 1, 0, 1))
                for s2 in range(1, 4):
                    for b in range(2): fill[2 + s2].append(lambda s2=s2, b=b: rd_x(i + 1, s2, b))
        for m in range(3):
            for b in range(2):
                a.wait(lg=[("w", n, m), ("x", i, s, b)])
                xf = vr(xreg(i, s, b), 4); wf = vr(vWf + (n % 2) * 12 + 4 * m, 4)
                acc = vr([vAQ, vA2][b] + 16 * m, 16)
                c = "0" if n == 0 else acc
                if m < 2: a.e(f"v_mfma_f32_32x32x16_bf16 {acc}, {wf}, {xf}, {c}")
                else:     a.e(f"v_mfma_f32_32x32x16_bf16 {acc}, {xf}, {wf}, {c}")
                for f in fill[2 * m + b]: f()
    st()

def get_tag(a):
    a.e(f"s_mov_b32 s{sSpin}, 0")
    a.wait(vm="tag")
    vm = list(a.vm)
    a.e("L_tagspin:")
    a.e(f"v_readfirstlane_b32 s{sTAG}, v{vT}")
    a.e(f"s_cmp_lg_u32 s{sTAG}, 0")
    a.e("s_cbranch_scc1 L_tagok")
    a.e(f"buffer_load_dword v{vT}, v{vT+1}, {sr(sDBG,4)}, 0 offen sc1")
    a.e("s_waitcnt vmcnt(0)")
    a.e(f"s_add_u32 s{sSpin}, s{sSpin}, 1")
    a.e(f"s_cmp_lt_u32 s{sSpin}, 0x40000")
    a.e("s_cbranch_scc1 L_tagspin")
    a.e("L_tagok:")
    a.vm = vm

def pack(a, dst, src, n):
    for i in range(n):
        a.e(f"v_cvt_pk_bf16_f32 v{dst+i}, v{src+2*i}, v{src+2*i+1}")

def epilogue1(a, st):
    a.e(f"s_lshl3_add_u32 s{sT0}, s{sR}, s{sWAVE}")
    a.e(f"s_lshl_b32 s{sT1}, s{sH}, 6")
    a.e(f"s_add_u32 s{sT1}, s{sT1}, s{sT0}")
    a.e(f"s_lshl_b32 s{sT1}, s{sT1}, 12")
    a.e(f"s_add_u32 s{sT2}, s{sT1}, {4*4096}")
    a.e(f"v_add_u32 v{vT}, s{sXl}, v{vL16}")
    for b in range(2):
        A = [vAQ, vA2][b]; P = vXf + 16 * b
        for f in range(4):
            pack(a, P + 4 * f, A + 16 + 8 * f, 4)
            a.e(f"buffer_store_dwordx4 {vr(P+4*f,4)}, v{vL16}, {sr(sWS,4)}, s{sT1+b} offen offset:{f*1024} sc1", tag="kvst")
            a.e(f"ds_write_b128 v{vT}, {vr(P+4*f,4)} offset:{b*49152 + f*1024}")
    a.e(f"s_mov_b32 s{sT0}, {hex(f2u(math.log2(math.e) / math.sqrt(32.0)))}")
    for b in range(2):
        A = [vAQ, vA2][b]; P = vWf + 8 * b
        for f in range(2):
            for i in range(8): a.e(f"v_mul_f32 v{A+8*f+i}, s{sT0}, v{A+8*f+i}")
            pack(a, P + 4 * f, A + 8 * f, 4)
            a.e(f"ds_write_b128 v{vT}, {vr(P+4*f,4)} offset:{b*49152 + 4096 + f*1024}")
    a.e("L_epi:")
    a.e(f"s_lshl3_add_u32 s{sT0}, s{sR}, s{sWAVE}")
    a.e(f"s_lshl_b32 s{sT1}, s{sH}, 6")
    a.e(f"s_add_u32 s{sT1}, s{sT1}, s{sT0}")
    a.e(f"s_lshl_b32 s{sKVo}, s{sT1}, 12")
    a.e(f"s_lshl_b32 s{sT1}, s{sT1}, 2")
    a.e(f"s_add_u32 s{sT3}, s{sT1}, {hex(FL_KV)}")
    a.e(f"s_lshl_b32 s{sF1o}, s{sH}, 8")
    a.e(f"s_add_u32 s{sF1o}, s{sF1o}, {hex(FL_KV)}")
    a.e(f"s_lshl_b32 s{sT0}, s{sT0}, 5")
    a.e(f"s_add_u32 s{sT0}, s{sT0}, s{sH}")
    a.e(f"s_lshl_b32 s{sT0}, s{sT0}, 11")
    a.e(f"s_add_u32 s{sOFo}, s{sT0}, {hex(WS_OF)}")
    a.e(f"v_add_u32 v{vKVa}, 65536, v{vL16}")
    a.e(f"v_add_u32 v{vT}, s{sXl}, v{vL16}")
    a.e("s_waitcnt lgkmcnt(0)")
    a.e("s_barrier")
    for f in range(2):
        a.e(f"ds_read_b128 {vr(vQ+4*f,4)}, v{vT} offset:{4096 + f*1024}", tag="K")
        a.e(f"ds_read_b128 {vr(vK+4*f,4)}, v{vKVa} offset:{f*1024}", tag="K")
    a.e(f"ds_read_b32 v{vT+2}, v{vT} offset:6144", tag="K")
    a.e(f"v_bfe_u32 v{vT}, v{vLANE}, 4, 1")
    a.e(f"v_bfe_u32 v{vT+1}, v{vLANE}, 2, 1")
    a.e(f"v_cmp_eq_u32 vcc, v{vT}, v{vT+1}")
    a.e(f"v_mov_b32 v{vT}, 0x3f803f80")
    a.e(f"v_cndmask_b32 v{vSel}, 0, v{vT}, vcc")
    for i in range(1, 4): a.e(f"v_mov_b32 v{vSel+i}, v{vSel}")
    a.wait(lg="K")
    S = vS[0]
    a.e(f"v_mfma_f32_32x32x16_bf16 {vr(S,16)}, {vr(vK,4)}, {vr(vQ,4)}, 0")
    a.e(f"v_mfma_f32_32x32x16_bf16 {vr(S,16)}, {vr(vK+4,4)}, {vr(vQ+4,4)}, {vr(S,16)}")
    a.e(f"v_readfirstlane_b32 s{sTAG}, v{vT+2}")
    a.e(f"v_mov_b32 v{vKVa2}, v{vKVa}")
    for i in range(16): a.e(f"v_mov_b32 v{vO+i}, 0")
    rd_k(a, 1)
    rd_v(a, 0, 1)
    rd_v(a, 0, 0)
    for i in range(4): a.e(f"v_mov_b32 v{vLs+i}, 0")
    for i in range(4): a.e(f"v_mov_b32 v{vP+4+i}, 0")
    a.e(f"v_max3_f32 v{vT}, v{S}, v{S+1}, v{S+2}")
    for i in range(3, 15, 2):
        a.e(f"v_max3_f32 v{vT}, v{vT}, v{S+i}, v{S+i+1}")
    a.e(f"v_max_f32 v{vT}, v{vT}, v{S+15}")
    a.e(f"v_mov_b32 v{vT+1}, v{vT}")
    a.e(f"v_permlane32_swap_b32 v{vT}, v{vT+1}")
    a.e(f"v_max_f32 v{vT}, v{vT}, v{vT+1}")
    for i in range(16): a.e(f"v_sub_f32 v{vM+i}, 0, v{vT}")
    for i in range(16): a.e(f"v_sub_f32 v{S+i}, v{S+i}, v{vT}")
    st()

vJC, vJE, vJacc, vJx, vX9, vJz, vSelS, vA0, vA1 = 136, 172, 208, 240, 24, 4, 8, 12, 13

def a_loads():
    T = vT
    steps = []
    def setup(a):
        a.e(f"s_mul_i32 s{sJ+6}, s{sArr}, {hex(XSTR)}")
        a.e(f"s_lshl_b32 s{sT0}, s{sCb}, 7")
        a.e(f"s_add_u32 s{sJ+6}, s{sJ+6}, s{sT0}")
        a.e(f"s_add_u32 s{sJ+6}, s{sJ+6}, {hex(WS_XF)}")
        a.e(f"s_lshl_b32 s{sT0}, s{sWAVE}, 16")
        a.e(f"s_add_u32 s{sJ+7}, s{sJ+6}, s{sT0}")
        a.e(f"s_lshl_b32 s{sJ+8}, s{sWAVE}, 13")
        a.e(f"v_lshrrev_b32 v{T}, 2, v{vLANE}")
        a.e(f"v_and_b32 v{T+1}, 3, v{vLANE}")
        a.e(f"v_lshlrev_b32 v{T+1}, 4, v{T+1}")
        a.e(f"v_lshl_add_u32 v{T}, v{T}, 10, v{T+1}")
    steps.append(setup)
    for p in range(8):
        def f(a, p=p):
            a.e(f"s_add_u32 m0, s{sJ+8}, {p*1024}")
            a.e(f"s_add_u32 s{sT0}, s{sJ+7}, {(p//2)*16384 + (p%2)*64}")
            a.e(f"buffer_load_dwordx4 v{T}, {sr(sWS,4)}, s{sT0} offen sc1 lds")
        steps.append(f)
    def esetup(a):
        a.e(f"v_lshrrev_b32 v{T+1}, 5, v{vLANE}")
        a.e(f"v_lshlrev_b32 v{T+1}, 4, v{T+1}")
        a.e(f"v_and_b32 v{T}, 3, v{vLANE}")
        a.e(f"v_bfe_u32 v{T+2}, v{vLANE}, 3, 1")
        a.e(f"v_lshl_add_u32 v{T}, v{T+2}, 2, v{T}")
        a.e(f"v_and_b32 v{T+2}, 3, v{T}")
        a.e(f"v_lshl_add_u32 v{T}, v{T}, 11, v{T+1}")
        a.e(f"v_cmp_eq_u32 vcc, 0, v{T+2}")
        a.e(f"v_mov_b32 v{T+2}, {hex(OOB)}")
        a.e(f"v_cndmask_b32 v{T}, v{T+2}, v{T}, vcc")
        a.e(f"v_cmp_ne_u32 vcc, 0, v{vSel}")
        a.e(f"v_cndmask_b32 v{T}, v{T+2}, v{T}, vcc")
        a.e(f"s_lshl_b32 s{sJ+7}, s{sArr}, 14")
        a.e(f"s_add_u32 s{sJ+7}, s{sJ+7}, {hex(WS_XE)}")
        a.e(f"s_lshl_b32 s{sT0}, s{sQ}, 8")
        a.e(f"s_add_u32 s{sJ+8}, s{sJ+7}, s{sT0}")
    steps.append(esetup)
    for j in range(8):
        steps.append(lambda a, j=j: a.e(f"buffer_load_dwordx4 {vr(vJE+4*j,4)}, v{T}, {sr(sWS,4)}, s{sJ+8} offen offset:{32*j} sc1"))
    def nine(a):
        a.e(f"s_cmp_lg_u32 s{sQ}, 0")
        a.e(f"s_cselect_b32 s{sT0}, {hex(OOB)}, 0")
        a.e(f"v_lshlrev_b32 v{T+1}, 26, v{T+1}")
        a.e(f"v_or_b32 v{T+1}, s{sT0}, v{T+1}")
        a.e(f"v_or_b32 v{T}, v{T}, v{T+1}")
        a.e(f"buffer_load_ushort v{vJE+32}, v{T}, {sr(sWS,4)}, s{sJ+7} offen offset:1024 sc1")
        a.e(f"v_bfrev_b32 v{T}, v{vLANE}")
        a.e(f"v_bfe_u32 v{T}, v{T}, 27, 3")
        a.e(f"v_and_b32 v{T+2}, 3, v{vLANE}")
        a.e(f"v_lshl_add_u32 v{T}, v{T}, 2, v{T+2}")
        a.e(f"v_lshl_or_b32 v{T}, v{T}, 1, v{T+1}")
        a.e(f"s_lshl_b32 s{sT0}, s{sTt}, 6")
        a.e(f"s_add_u32 s{sT1}, s{sJ+6}, {512*1024}")
        a.e(f"s_add_u32 s{sT2}, s{sT1}, s{sT0}")
        a.e(f"buffer_load_ushort v{vX9}, v{T}, {sr(sWS,4)}, s{sT2} offen sc1")
        a.e(f"s_xor_b32 s{sT2}, s{sT2}, 64")
        a.e(f"buffer_load_ushort v{vX9+4}, v{T}, {sr(sWS,4)}, s{sT2} offen sc1")
    steps.append(nine)
    return steps

def job_a(a):
    T = vT
    a.e(f"v_lshrrev_b32 v{T}, 5, v{vLANE}")
    a.e(f"v_lshlrev_b32 v{T}, 9, v{T}")
    a.e(f"v_bfe_u32 v{T+1}, v{vLANE}, 2, 2")
    a.e(f"v_lshl_add_u32 v{T}, v{T+1}, 6, v{T}")
    a.e(f"v_and_b32 v{T+1}, 1, v{vLANE}")
    a.e(f"v_lshl_add_u32 v{T}, v{T+1}, 5, v{T}")
    a.e(f"v_bfe_u32 v{T+1}, v{vLANE}, 1, 1")
    a.e(f"v_lshl_add_u32 v{T}, v{T+1}, 4, v{T}")
    a.e(f"v_bfe_u32 v{T+1}, v{vLANE}, 4, 1")
    a.e(f"v_lshl_add_u32 v{T}, v{T+1}, 3, v{T}")
    a.e(f"s_lshl_b32 s{sT0}, s{sQ}, 14")
    a.e(f"s_lshl_b32 s{sT1}, s{sTt}, 10")
    a.e(f"s_add_u32 s{sT0}, s{sT0}, s{sT1}")
    a.e(f"v_add_u32 v{vA0}, s{sT0}, v{T}")
    a.e(f"v_xor_b32 v{vA1}, 1024, v{vA0}")
    def rd(j):
        for sg in range(2):
            for t in range(2):
                a.e(f"ds_read_b64_tr_b16 {vr(vJx + (j%2)*8 + 4*sg + 2*t, 2)}, v{[vA0, vA1][sg]} offset:{j*2048 + 256*t}", tag=("xa", j))
    rd(0); rd(1)
    for r in (vX9 + 1, vX9 + 2, vX9 + 3, vX9 + 5, vX9 + 6, vX9 + 7, vJE + 33, vJE + 34, vJE + 35):
        a.e(f"v_mov_b32 v{r}, 0")
    a.e(f"v_lshlrev_b32 v{T}, 2, v{vSel}")
    a.e(f"v_and_b32 v{T}, 0x80000000, v{T}")
    for i in range(4): a.e(f"v_or_b32 v{vSelS+i}, v{T}, v{vSel}")
    a.e(f"s_xor_b32 s{sT0}, s{sR}, s{sCb}")
    a.e(f"s_bitcmp1_b32 s{sT0}, 0")
    a.e("s_cbranch_scc1 L_jaY")
    lg = list(a.lg)
    z = vr(vJz, 4)
    for ver in "XY":
        if ver == "Y":
            a.e("L_jaY:"); a.lg = list(lg)
        for sg in range(2):
            a.e(f"v_mfma_f32_32x32x16_bf16 {vr(vJacc+16*sg,16)}, {vr(vX9+4*sg,4)}, {vr(vJC+32,4)}, 0")
        if ver == "X": a.e(f"v_mfma_f32_16x16x32_bf16 {z}, {vr(vJE+32,4)}, {vr(vJC+32,4)}, 0")
        else:          a.e(f"v_mfma_f32_16x16x32_bf16 {z}, {vr(vSelS,4)}, {vr(vX9,4)}, 0")
        for j in range(8):
            a.wait(lg=("xa", j))
            x = vJx + (j % 2) * 8
            for sg in range(2):
                a.e(f"v_mfma_f32_32x32x16_bf16 {vr(vJacc+16*sg,16)}, {vr(x+4*sg,4)}, {vr(vJC+4*j,4)}, {vr(vJacc+16*sg,16)}")
            if ver == "X": a.e(f"v_mfma_f32_16x16x32_bf16 {z}, {vr(vJE+4*j,4)}, {vr(vJC+4*j,4)}, {z}")
            else:          a.e(f"v_mfma_f32_16x16x32_bf16 {z}, {vr(vSelS,4)}, {vr(x,4)}, {z}")
            if j + 2 < 8: rd(j + 2)
        a.e(f"v_and_b32 v{T}, 31, v{vLANE}")
        a.e(f"v_lshrrev_b32 v{T+1}, 5, v{vLANE}")
        if ver == "X":
            a.e(f"s_cmp_ge_u32 s{sCb}, 2")
            a.e("s_cbranch_scc1 L_jaC")
            a.e(f"v_lshlrev_b32 v{T+3}, 4, v{T+1}")
            a.e(f"v_lshl_add_u32 v{T+2}, v{T}, 6, v{T+3}")
            a.e(f"s_lshr_b32 s{sT0}, s{sArr}, 1")
            a.e(f"s_lshl_b32 s{sT0}, s{sT0}, 16")
            a.e(f"s_lshl2_add_u32 s{sT0}, s{sQ}, s{sT0}")
            a.e(f"s_add_u32 s{sT0}, s{sT0}, {hex(WS_ZC)}")
            a.e(f"s_lshl_b32 s{sT1}, s{sTrow}, 5")
            a.e(f"s_add_u32 s{sT1}, s{sT1}, s{sT0}")
            def zsum():
                a.e(f"v_add_f32 v{vJz}, v{vJz}, v{vJz+1}")
                a.e(f"v_add_f32 v{vJz+2}, v{vJz+2}, v{vJz+3}")
                a.e(f"v_add_f32 v{T+4}, v{vJz}, v{vJz+2}")
            zsum()
            a.e(f"buffer_store_dword v{T+4}, v{T+2}, {sr(sWS,4)}, s{sT1} offen sc1")
            a.e(f"s_or_b32 s{sT1}, s{sH}, s{sTrow}")
            a.e(f"s_cmp_lg_u32 s{sT1}, 0")
            a.e("s_cbranch_scc1 L_jaC")
            for i in range(4): a.e(f"v_mov_b32 v{vSelS+i}, 0xbf803f80")
            for j in range(9):
                a.e(f"v_mfma_f32_16x16x32_bf16 {z}, {vr(vJE+4*j,4)}, {vr(vSelS,4)}, {z if j else 0}")
            a.e(f"s_add_u32 s{sT1}, s{sT0}, {1024*32}")
            zsum()
            a.e(f"buffer_store_dword v{T+4}, v{T+3}, {sr(sWS,4)}, s{sT1} offen sc1")
            a.e("s_branch L_jaC")
        else:
            a.e(f"s_lshr_b32 s{sT0}, s{sR}, 1")
            a.e(f"s_or_b32 s{sT0}, s{sT0}, s{sArr}")
            a.e(f"s_cmp_lg_u32 s{sT0}, 0")
            a.e("s_cbranch_scc1 L_jaC")
            a.e(f"v_lshrrev_b32 v{T+2}, 4, v{T}")
            a.e(f"v_mul_u32_u24 v{T+2}, {hex(UVSTR)}, v{T+2}")
            a.e(f"v_bfe_u32 v{T+3}, v{T}, 2, 1")
            a.e(f"v_lshl_add_u32 v{T+2}, v{T+3}, 9, v{T+2}")
            a.e(f"v_bfe_u32 v{T+3}, v{T}, 3, 1")
            a.e(f"v_lshl_add_u32 v{T+2}, v{T+3}, 3, v{T+2}")
            a.e(f"v_and_b32 v{T+3}, 3, v{T}")
            a.e(f"v_lshl_add_u32 v{T+2}, v{T+3}, 1, v{T+2}")
            a.e(f"v_lshl_or_b32 v{T+2}, v{T+1}, 30, v{T+2}")
            a.e(f"s_lshl1_add_u32 s{sT0}, s{sCb}, s{sTt}")
            a.e(f"s_lshl_b32 s{sT0}, s{sT0}, 10")
            a.e(f"s_and_b32 s{sT1}, s{sQ}, 1")
            a.e(f"s_lshl_b32 s{sT1}, s{sT1}, 8")
            a.e(f"s_add_u32 s{sT0}, s{sT0}, s{sT1}")
            a.e(f"s_lshr_b32 s{sT1}, s{sQ}, 1")
            a.e(f"s_lshl4_add_u32 s{sT0}, s{sT1}, s{sT0}")
            a.e(f"s_add_u32 s{sT0}, s{sT0}, {hex(WS_UV + 32*16384)}")
            a.e(f"v_cvt_pk_bf16_f32 v{T+4}, v{vJz}, v{vJz}")
            a.e(f"buffer_store_short v{T+4}, v{T+2}, {sr(sWS,4)}, s{sT0} offen sc1")
    a.e("L_jaC:")
    a.e("s_barrier")
    a.e(f"s_lshl_b32 s{sT0}, s{sWAVE}, 13")
    a.e(f"v_add_u32 v{T+2}, s{sT0}, v{vL16}")
    a.e("s_nop 7")
    for c in range(8):
        a.e(f"ds_write_b128 v{T+2}, {vr(vJacc+4*c,4)} offset:{c*1024}")
    a.e(f"s_lshl_b32 s{sT0}, s{sTt}, 15")
    a.e(f"s_lshl_b32 s{sT1}, s{sQ}, 11")
    a.e(f"s_add_u32 s{sT0}, s{sT0}, s{sT1}")
    a.e(f"v_add_u32 v{T+2}, s{sT0}, v{vL16}")
    a.e(f"v_lshrrev_b32 v{T+3}, 4, v{T}")
    a.e(f"v_lshlrev_b32 v{T+3}, 14, v{T+3}")
    a.e(f"v_lshl_add_u32 v{T+3}, v{T+1}, 9, v{T+3}")
    a.e(f"v_and_b32 v{T}, 15, v{T}")
    a.e(f"v_lshl_add_u32 v{T+3}, v{T}, 4, v{T+3}")
    a.e(f"s_and_b32 s{sT0}, s{sArr}, 2")
    a.e(f"s_and_b32 s{sT1}, s{sQ}, 1")
    a.e(f"s_add_u32 s{sT0}, s{sT0}, s{sT1}")
    a.e(f"s_mul_i32 s{sT0}, s{sT0}, {hex(UVSTR)}")
    a.e(f"s_lshr_b32 s{sT1}, s{sTrow}, 6")
    a.e(f"s_lshl_b32 s{sT1}, s{sT1}, 15")
    a.e(f"s_add_u32 s{sT0}, s{sT0}, s{sT1}")
    a.e(f"s_lshr_b32 s{sT1}, s{sQ}, 1")
    a.e(f"s_xor_b32 s{sT1}, s{sT1}, s{sTt}")
    a.e(f"s_lshl1_add_u32 s{sT1}, s{sCb}, s{sT1}")
    a.e(f"s_lshl_b32 s{sT1}, s{sT1}, 10")
    a.e(f"s_add_u32 s{sT0}, s{sT0}, s{sT1}")
    a.e(f"s_and_b32 s{sT1}, s{sArr}, 1")
    a.e(f"s_lshl_b32 s{sT1}, s{sT1}, 8")
    a.e(f"s_add_u32 s{sT0}, s{sT0}, s{sT1}")
    a.e(f"s_add_u32 s{sT0}, s{sT0}, {hex(WS_UV)}")
    a.e("s_waitcnt lgkmcnt(0)")
    a.e("s_barrier")
    for w in range(4):
        for c in range(2):
            a.e(f"ds_read_b128 {vr(vJC+8*w+4*c,4)}, v{T+2} offset:{w*8192 + c*1024}", tag=("ra", w))
    for w in range(1, 4):
        a.wait(lg=("ra", w))
        for i in range(8): a.e(f"v_add_f32 v{vJC+i}, v{vJC+i}, v{vJC+8*w+i}")
    pack(a, vJC + 8, vJC, 4)
    a.e(f"buffer_store_dwordx4 {vr(vJC+8,4)}, v{T+3}, {sr(sWS,4)}, s{sT0} offen sc1")

def poll256_issue(a, off, reg):
    if isinstance(off, tuple):
        a.e(f"buffer_load_dwordx4 {vr(reg,4)}, v{off[0]}, {sr(sWS,4)}, s{off[1]} offen sc1", tag="poll")
        return
    a.e(f"s_mov_b32 s{sT0}, {hex(off)}")
    a.e(f"buffer_load_dwordx4 {vr(reg,4)}, v{vL16}, {sr(sWS,4)}, s{sT0} offen sc1", tag="poll")
def poll256_check(a, off, reg, lbl, slp=8):
    a.e(f"s_mov_b32 s{sSpin}, 0")
    a.e(f"{lbl}_spin:")
    a.e(f"v_xor_b32 v{reg}, s{sTAG}, v{reg}")
    a.e(f"v_xor_b32 v{reg+1}, s{sTAG}, v{reg+1}")
    a.e(f"v_xor_b32 v{reg+2}, s{sTAG}, v{reg+2}")
    a.e(f"v_xor_b32 v{reg+3}, s{sTAG}, v{reg+3}")
    a.e(f"v_or3_b32 v{reg}, v{reg}, v{reg+1}, v{reg+2}")
    a.e(f"v_or_b32 v{reg}, v{reg}, v{reg+3}")
    a.e(f"v_cmp_ne_u32 vcc, 0, v{reg}")
    a.e(f"s_cmp_eq_u64 vcc, 0")
    a.e(f"s_cbranch_scc1 {lbl}_ok")
    vm = list(a.vm)
    a.e(f"s_sleep {slp}")
    poll256_issue(a, off, reg)
    a.e("s_waitcnt vmcnt(0)")
    a.e(f"s_add_u32 s{sSpin}, s{sSpin}, 1")
    a.e(f"s_cmp_lt_u32 s{sSpin}, 0x40000")
    a.e(f"s_cbranch_scc1 {lbl}_spin")
    a.e(f"{lbl}_ok:")
    a.vm = vm

def rd_k(a, t):
    for f in range(2):
        a.e(f"ds_read_b128 {vr(vK+4*f,4)}, v{vKVa} offset:{t*12288 + f*1024}", tag="K")
def rd_v(a, t, f):
    a.e(f"ds_read_b128 {vr(vV+4*f,4)}, v{vKVa2} offset:{t*12288 + (2+f)*1024}", tag=f"V{f+1}")
vKVa2 = 20

def att_body(a, par, hooks):
    S = vS[par]; N = vS[1 - par]
    def ex(*idx):
        for i in idx: a.e(f"v_exp_f32 v{S+i}, v{S+i}")
    def cv(j): a.e(f"v_cvt_pk_bf16_f32 v{vP+j}, v{S+2*j}, v{S+2*j+1}")
    def hk(p):
        for f in hooks.get(p, []): f()
    a.wait(lg=["K", "V2"])
    a.e(f"v_mfma_f32_32x32x16_bf16 {vr(N,16)}, {vr(vK,4)}, {vr(vQ,4)}, {vr(vM,16)}")
    ex(0, 1)
    hk(1)
    a.e(f"v_mfma_f32_32x32x16_bf16 {vr(vO,16)}, {vr(vV+4,4)}, {vr(vP+4,4)}, {vr(vO,16)}")
    ex(2, 3)
    a.e(f"v_mfma_f32_16x16x32_bf16 {vr(vLs,4)}, {vr(vSel,4)}, {vr(vP+4,4)}, {vr(vLs,4)}")
    ex(4, 5); cv(0); cv(1)
    a.e(f"v_mfma_f32_32x32x16_bf16 {vr(N,16)}, {vr(vK+4,4)}, {vr(vQ+4,4)}, {vr(N,16)}")
    hk(2)
    ex(6, 7); cv(2); ex(8); cv(3); ex(9, 10)
    a.wait(lg="V1")
    a.e(f"v_mfma_f32_32x32x16_bf16 {vr(vO,16)}, {vr(vV,4)}, {vr(vP,4)}, {vr(vO,16)}")
    ex(11, 12)
    hk(3)
    a.e(f"v_mfma_f32_16x16x32_bf16 {vr(vLs,4)}, {vr(vSel,4)}, {vr(vP,4)}, {vr(vLs,4)}")
    hk(4)
    ex(13, 14); cv(4); ex(15); cv(5); cv(6); cv(7)

def kv_dma(a, q):
    a.e(f"buffer_load_dwordx4 v{vL16}, {sr(sWS,4)}, s{sKVsrc} offen offset:{q*1024} sc1 lds", tag="kv")

def kv_dma_setup(a):
    a.e(f"s_add_u32 s{sT0}, s{sKVsrc}, {8*4096}")
    a.e(f"s_and_b32 s{sT0}, s{sT0}, 0x3ffff")
    a.e(f"s_andn2_b32 s{sKVsrc}, s{sKVsrc}, 0x3ffff")
    a.e(f"s_or_b32 s{sKVsrc}, s{sKVsrc}, s{sT0}")
    a.e(f"s_add_u32 s{sSlot}, s{sSlot}, 4096")
    a.e(f"s_cmp_eq_u32 s{sSlot}, {3*4096}")
    a.e(f"s_cselect_b32 s{sSlot}, 0, s{sSlot}")
    a.e(f"s_add_u32 m0, s{sXl}, s{sSlot}")

def attention(a, st):
    a.e(f"s_mov_b32 s{sKVsrc}, s{sKVo}")
    a.e(f"s_mov_b32 s{sSlot}, 0")
    a.e(f"s_mov_b32 s{sKVl}, 65536")
    def adv_k(second_half_next):
        if second_half_next:
            a.e(f"v_add_u32 v{vKVa}, 49152, v{vKVa}")
        else:
            a.e(f"s_add_u32 s{sKVl}, s{sKVl}, 4096")
            a.e(f"s_cmp_eq_u32 s{sKVl}, {65536+3*4096}")
            a.e(f"s_cselect_b32 s{sKVl}, 65536, s{sKVl}")
            a.e(f"v_add_u32 v{vKVa}, s{sKVl}, v{vL16}")
    def group(extra):
        for t in range(8):
            h = {1: [], 2: [], 3: [], 4: []}
            tk = (t + 2) % 4
            if tk == 0:
                if t == 6:
                    h[2].append(lambda: (a.wait(vm="kvneed"), a.e("s_barrier")))
                h[2].append(lambda t=t: adv_k(t == 2))
            h[2].append(lambda tk=tk: rd_k(a, tk))
            h[2].append(lambda t=t: rd_v(a, t % 4, 1))
            if (t + 1) % 4 == 0:
                h[4].append(lambda: a.e(f"v_mov_b32 v{vKVa2}, v{vKVa}"))
            h[4].append(lambda t=t: rd_v(a, (t + 1) % 4, 0))
            for p in (1, 2, 3, 4):
                h[p] += extra.get((t, p), [])
            att_body(a, t % 2, h)
    def flag_store():
        a.wait(vm="kvst")
        a.e(f"v_mov_b32 v{vT}, s{sTAG}")
        a.e(f"s_lshl_b32 s{sT0}, s{sTt}, 30")
        a.e(f"v_or_b32 v{vT+1}, s{sT0}, v{vL16}")
        a.e("s_mov_b64 exec, 3")
        a.e(f"buffer_store_dword v{vT}, v{vT+1}, {sr(sWS,4)}, s{sT3} offen sc1")
        a.e("s_mov_b64 exec, -1")
    def poll_issue():
        a.e(f"v_lshlrev_b32 v{vT+3}, 2, v{vLANE}")
        a.e(f"buffer_load_dword v{vT+2}, v{vT+3}, {sr(sWS,4)}, s{sF1o} offen sc1", tag="poll")
    def poll_check():
        a.e(f"s_mov_b32 s{sSpin}, 0")
        a.e("L_kvspin:")
        a.e("s_waitcnt vmcnt(0)")
        a.e(f"v_cmp_eq_u32 vcc, s{sTAG}, v{vT+2}")
        a.e("s_cmp_eq_u64 vcc, -1")
        a.e("s_cbranch_scc1 L_kvok")
        a.e(f"buffer_load_dword v{vT+2}, v{vT+3}, {sr(sWS,4)}, s{sF1o} offen sc1")
        a.e("s_sleep 1")
        a.e(f"s_add_u32 s{sSpin}, s{sSpin}, 1")
        a.e(f"s_cmp_lt_u32 s{sSpin}, 0x40000")
        a.e("s_cbranch_scc1 L_kvspin")
        a.e("L_kvok:")
        a.vm = []
    def dma_group(tag):
        kv_dma_setup(a)
        for q in range(4):
            kv_dma(a, q); a.vm[-1] = tag
    ex0 = {(1, 1): [flag_store], (2, 3): [poll_issue, lambda: poll256_issue(a, FL_0, vJx)],
           (3, 3): [poll_check, st, lambda: dma_group("kvneed"), lambda: dma_group("kvnext")],
           (3, 4): [lambda: poll256_check(a, FL_0, vJx, "L_pf0")]}
    steps = a_loads()
    pos = [(t, p) for t in range(4, 8) for p in (1, 2, 3, 4)]
    for i, f in enumerate(steps):
        ex0.setdefault(pos[i * len(pos) // len(steps)], []).append(lambda f=f: f(a))
    group(ex0)
    st()
    a.e(f"s_mov_b32 s{sG}, 1")
    a.vm = ["kvneed"] * 4
    a.lg = ["K", "K", "V2", "V1"]
    lg0 = list(a.lg)
    a.e("L_att:")
    for g in sorted(JOBS):
        a.e(f"s_cmp_eq_u32 s{sG}, {g}")
        a.e(f"s_cbranch_scc1 L_job{g}")
    a.e("L_attb:")
    ex = {(6, 3): [lambda: kv_dma_setup(a), lambda: kv_dma(a, 0)], (6, 4): [lambda: kv_dma(a, 1)],
          (7, 1): [lambda: kv_dma(a, 2)], (7, 3): [lambda: kv_dma(a, 3)]}
    group(ex)
    assert a.lg == lg0, (a.lg, lg0)
    a.e(f"s_add_u32 s{sG}, s{sG}, 1")
    a.e(f"s_cmp_lt_u32 s{sG}, 8")
    a.e("s_cbranch_scc1 L_att")
    a.wait(lg="V2")
    a.e(f"v_mfma_f32_32x32x16_bf16 {vr(vO,16)}, {vr(vV+4,4)}, {vr(vP+4,4)}, {vr(vO,16)}")
    a.e(f"v_mfma_f32_16x16x32_bf16 {vr(vLs,4)}, {vr(vSel,4)}, {vr(vP+4,4)}, {vr(vLs,4)}")
    st()
    o_store(a)
    a.e(f"v_mfma_f32_16x16x32_bf16 {vr(vS[0],4)}, {vr(vSel,4)}, {vr(vP,4)}, 0")
    a.e(f"v_mfma_f32_16x16x32_bf16 {vr(vS[0],4)}, {vr(vSel,4)}, {vr(vP+4,4)}, {vr(vS[0],4)}")
    a.e(f"s_mov_b32 s{sT2}, {hex(f2u(2.0**(-30 if 'fb' in Cfg.x else 100)))}")
    a.e(f"v_cmp_nge_f32_e64 {sr(sT0,2)}, s{sT2}, v{vLs}")
    a.e(f"v_mov_b32 v{vT}, 0x207")
    a.e(f"v_cmp_class_f32 vcc, v{vS[0]}, v{vT}")
    a.e(f"s_or_b64 vcc, vcc, {sr(sT0,2)}")
    a.e("s_cbranch_scc1 L_fb")
    a.e("L_fbret:")
def o_store(a):
    a.e(f"v_rcp_f32 v{vT}, v{vLs}")
    for i in range(16): a.e(f"v_mul_f32 v{vO+i}, v{vT}, v{vO+i}")
    pack(a, vP, vO, 8)
    for f in range(2):
        a.e(f"buffer_store_dwordx4 {vr(vP+4*f,4)}, v{vL16}, {sr(sWS,4)}, s{sOFo} offen offset:{f*1024} sc1", tag="ost")
def fallback(a):
    S = vS[0]
    a.e("L_fb:")
    a.e("s_waitcnt vmcnt(0) lgkmcnt(0)")
    a.e(f"s_lshl_b32 s{sT0}, s{sH}, 18")
    a.e(f"s_add_u32 s{sT1}, s{sT0}, {hex(1 << 18)}")
    a.e(f"v_mov_b32 v{vT}, 0xff800000")
    a.e("L_fb1:")
    for f in range(2):
        a.e(f"buffer_load_dwordx4 {vr(vK+4*f,4)}, v{vL16}, {sr(sWS,4)}, s{sT0} offen offset:{f*1024} sc1")
    a.e("s_waitcnt vmcnt(0)")
    a.e(f"v_mfma_f32_32x32x16_bf16 {vr(S,16)}, {vr(vK,4)}, {vr(vQ,4)}, 0")
    a.e(f"v_mfma_f32_32x32x16_bf16 {vr(S,16)}, {vr(vK+4,4)}, {vr(vQ+4,4)}, {vr(S,16)}")
    for i in range(0, 16, 2):
        a.e(f"v_max3_f32 v{vT}, v{vT}, v{S+i}, v{S+i+1}")
    a.e(f"s_add_u32 s{sT0}, s{sT0}, 4096")
    a.e(f"s_cmp_lt_u32 s{sT0}, s{sT1}")
    a.e("s_cbranch_scc1 L_fb1")
    a.e(f"v_mov_b32 v{vT+1}, v{vT}")
    a.e(f"v_permlane32_swap_b32 v{vT}, v{vT+1}")
    a.e(f"v_max_f32 v{vT}, v{vT}, v{vT+1}")
    for i in range(16): a.e(f"v_sub_f32 v{vM+i}, 0, v{vT}")
    for i in range(16): a.e(f"v_mov_b32 v{vO+i}, 0")
    for i in range(4): a.e(f"v_mov_b32 v{vLs+i}, 0")
    a.e(f"s_lshl_b32 s{sT0}, s{sH}, 18")
    a.e("L_fb2:")
    for f in range(4):
        a.e(f"buffer_load_dwordx4 {vr(vK+4*f,4)}, v{vL16}, {sr(sWS,4)}, s{sT0} offen offset:{f*1024} sc1")
    a.e("s_waitcnt vmcnt(0)")
    a.e(f"v_mfma_f32_32x32x16_bf16 {vr(S,16)}, {vr(vK,4)}, {vr(vQ,4)}, {vr(vM,16)}")
    a.e(f"v_mfma_f32_32x32x16_bf16 {vr(S,16)}, {vr(vK+4,4)}, {vr(vQ+4,4)}, {vr(S,16)}")
    for i in range(16): a.e(f"v_exp_f32 v{S+i}, v{S+i}")
    pack(a, vP, S, 8)
    for f in range(2):
        a.e(f"v_mfma_f32_32x32x16_bf16 {vr(vO,16)}, {vr(vV+4*f,4)}, {vr(vP+4*f,4)}, {vr(vO,16)}")
        a.e(f"v_mfma_f32_16x16x32_bf16 {vr(vLs,4)}, {vr(vSel,4)}, {vr(vP+4*f,4)}, {vr(vLs,4)}")
    a.e(f"s_add_u32 s{sT0}, s{sT0}, 4096")
    a.e(f"s_cmp_lt_u32 s{sT0}, s{sT1}")
    a.e("s_nop 15")
    a.e("s_cbranch_scc1 L_fb2")
    o_store(a)
    a.e("s_branch L_fbret")

sTB, sWFo = sJ + 11, sJ + 12
vBD, vBU, vBacc, vBR = 136, 168, 200, 216
TS = 4352
def job3(a):
    flag_wg(a, FL_A, "L_fa")
    a.e(f"s_and_b32 s{sT0}, s2, 7")
    a.e(f"s_bfe_u32 s{sT1}, s2, 0x20003")
    a.e(f"s_lshl2_add_u32 s{sTB}, s{sT0}, s{sT1}")
    a.e(f"s_lshr_b32 s{sT0}, s{sWAVE}, 1")
    a.e(f"s_lshl3_add_u32 s{sT0}, s{sT0}, s{sCb}")
    a.e(f"s_and_b32 s{sT1}, s{sWAVE}, 1")
    a.e(f"s_lshl1_add_u32 s{sT0}, s{sT0}, s{sT1}")
    a.e(f"s_lshl_b32 s{sT0}, s{sT0}, 13")
    a.e(f"s_add_u32 s{sT0}, s{sT0}, {hex(WS_DF)}")
    a.e(f"s_add_u32 s{sT1}, s{sT0}, 4096")
    for j in range(8):
        a.e(f"buffer_load_dwordx4 {vr(vBD+4*j,4)}, v{vL16}, {sr(sWS,4)}, s{sT0+j//4} offen offset:{1024*(j%4)} sc1")
def job4(a):
    poll256_issue(a, FL_A, vJx)
def job5(a):
    T = vT
    poll256_check(a, FL_A, vJx, "L_pa")
    a.e(f"v_lshrrev_b32 v{T}, 5, v{vLANE}")
    a.e(f"v_lshlrev_b32 v{T}, 9, v{T}")
    a.e(f"v_and_b32 v{T+1}, 1, v{vLANE}")
    a.e(f"v_lshl_add_u32 v{T}, v{T+1}, 8, v{T}")
    a.e(f"v_bfe_u32 v{T+1}, v{vLANE}, 1, 4")
    a.e(f"v_lshl_add_u32 v{T}, v{T+1}, 4, v{T}")
    a.e(f"s_lshr_b32 s{sT0}, s{sWAVE}, 1")
    a.e(f"s_mul_i32 s{sT0}, s{sT0}, {hex(UVSTR)}")
    a.e(f"s_and_b32 s{sT1}, s{sWAVE}, 1")
    a.e(f"s_lshl1_add_u32 s{sT1}, s{sTB}, s{sT1}")
    a.e(f"s_lshl_b32 s{sT1}, s{sT1}, 13")
    a.e(f"s_add_u32 s{sT0}, s{sT0}, s{sT1}")
    a.e(f"s_add_u32 s{sT0}, s{sT0}, {hex(WS_UV)}")
    a.e(f"s_add_u32 s{sT1}, s{sT0}, 4096")
    for j in range(8):
        a.e(f"buffer_load_dwordx4 {vr(vBU+4*j,4)}, v{T}, {sr(sWS,4)}, s{sT0+j//4} offen offset:{1024*(j%4)} sc1")
    a.e(f"s_or_b32 s{sT2}, s{sTB}, s{sTt}")
    a.e(f"s_cmp_lg_u32 s{sT2}, 0")
    a.e("s_cbranch_scc1 L_j5e")
    a.e(f"s_add_u32 s{sT0}, s{sT0}, {32*16384}")
    a.e(f"s_add_u32 s{sT1}, s{sT1}, {32*16384}")
    for j in range(8):
        a.e(f"buffer_load_dwordx4 {vr(vBR+4*j,4)}, v{T}, {sr(sWS,4)}, s{sT0+j//4} offen offset:{1024*(j%4)} sc1")
    a.e("L_j5e:")
def wfreg(n): return 136 + 4 * n if n < 30 else 24 + 4 * (n - 30)
def wf_frag_loads(a, lo, hi):
    for n in range(lo, hi):
        if n % 4 == 0: a.e(f"s_add_u32 s{sT0}, s{sWFo}, {(n//4)*4096}")
        a.e(f"buffer_load_dwordx4 {vr(wfreg(n),4)}, v{vL16}, {sr(sWS,4)}, s{sT0} offen offset:{1024*(n%4)} sc1")
def tile_waddr(a, dst, T):
    a.e(f"v_lshrrev_b32 v{T}, 5, v{vLANE}")
    a.e(f"v_lshl_add_u32 v{dst}, v{T}, 5, v{vL16}")
def job6(a):
    T = vT
    for j in range(8):
        a.e(f"v_mfma_f32_32x32x16_bf16 {vr(vBacc,16)}, {vr(vBD+4*j,4)}, {vr(vBU+4*j,4)}, {vr(vBacc,16) if j else 0}")
    tile_waddr(a, T, T + 1)
    a.e(f"s_mul_i32 s{sT0}, s{sWAVE}, {TS}")
    a.e(f"v_add_u32 v{T}, s{sT0}, v{T}")
    a.e(f"s_lshl2_add_u32 s{sT0}, s{sCb}, s{sQ}")
    a.e(f"s_lshl1_add_u32 s{sT0}, s{sT0}, s{sTt}")
    a.e(f"s_lshl_b32 s{sT0}, s{sT0}, 15")
    a.e(f"s_add_u32 s{sWFo}, s{sT0}, {hex(WS_WF)}")
    a.e(f"s_or_b32 s{sT2}, s{sTB}, s{sTt}")
    a.e(f"s_cmp_lg_u32 s{sT2}, 0")
    a.e("s_cbranch_scc1 L_j6b")
    for j in range(8):
        a.e(f"v_mfma_f32_32x32x16_bf16 {vr(vBU,16)}, {vr(vBD+4*j,4)}, {vr(vBR+4*j,4)}, {vr(vBU,16) if j else 0}")
    for q in range(4):
        a.e(f"ds_write_b128 v{T}, {vr(vBU+4*q,4)} offset:{8*TS + q*1088}")
    a.e("s_waitcnt lgkmcnt(0)")
    a.e("L_j6b:")
    wf_frag_loads(a, 0, 16)
    for q in range(4):
        a.e(f"ds_write_b128 v{T}, {vr(vBacc+4*q,4)} offset:{q*1088}")
def job7(a):
    wf_frag_loads(a, 16, 32)

vAcc, vGY, vOmg, vFr = 32, 64, 80, 88
vOd0, vOd1, vFl, vRa, vRow, vSt = 81, 82, 83, 84, 85, 86
def rbf(a, r):
    a.e(f"v_cvt_pk_bf16_f32 v{r}, v{r}, v{r}")
    a.e(f"v_and_b32 v{r}, 0xffff0000, v{r}")
def phase3(a, st):
    T = vT
    a.e(f"v_lshrrev_b32 v{T}, 3, v{vLANE}")
    a.e(f"s_lshl_b32 s{sT0}, s{sQ}, 3")
    a.e(f"v_add_u32 v{T}, s{sT0}, v{T}")
    a.e(f"v_and_b32 v{T+1}, 7, v{vLANE}")
    a.e(f"v_mul_u32_u24 v{vRa}, 544, v{T+1}")
    a.e(f"v_mov_b32 v{T+5}, v{vRa}")
    a.e(f"v_lshl_add_u32 v{vRa}, v{T}, 4, v{vRa}")
    for t in range(8):
        a.e(f"ds_read_b128 {vr(vFr+4*t,4)}, v{vRa} offset:{t*TS}", tag=("pm", t))
    a.e(f"s_lshl_b32 s{sT0}, s{sTB}, 5")
    a.e(f"v_add_u32 v{T}, s{sT0}, v{T}")
    a.e(f"v_sub_u32 v{T+2}, 2048, v{T}")
    a.e(f"v_cmp_eq_u32 vcc, 0, v{T}")
    a.e(f"v_mov_b32 v{T+3}, 1024")
    a.e(f"v_cndmask_b32 v{T+2}, v{T+2}, v{T+3}, vcc")
    a.e(f"v_cndmask_b32 v{T+3}, v{T}, v{T+3}, vcc")
    a.e(f"s_cmp_lg_u32 s{sTt}, 0")
    a.e(f"s_cselect_b64 vcc, -1, 0")
    a.e(f"v_cndmask_b32 v{vRow}, v{T}, v{T+2}, vcc")
    a.e(f"v_cndmask_b32 v{T+3}, v{T}, v{T+3}, vcc")
    a.e(f"v_lshlrev_b32 v{T+2}, 2, v{vRow}")
    a.e(f"v_lshlrev_b32 v{T+3}, 5, v{T+3}")
    a.e(f"v_lshlrev_b32 v{T}, 5, v{T}")
    a.e(f"s_mov_b32 s{sT0}, {hex(WS_GP)}")
    a.e(f"s_mov_b32 s{sT1}, {hex(WS_ZC)}")
    a.e(f"s_mov_b32 s{sT2}, {hex(WS_ZC+ZSTR)}")
    G, ZC, ZW, ZS = 32, 36, 40, 44
    a.e(f"buffer_load_dword v{G}, v{T+2}, {sr(sWS,4)}, s{sT0} offen sc1", tag="sm")
    a.e(f"buffer_load_dwordx4 {vr(ZC,4)}, v{T+3}, {sr(sWS,4)}, s{sT1} offen sc1", tag="sm")
    a.e(f"buffer_load_dwordx4 {vr(ZW,4)}, v{T+3}, {sr(sWS,4)}, s{sT1} offen offset:16 sc1", tag="sm")
    a.e(f"buffer_load_dwordx4 {vr(ZS,4)}, v{T}, {sr(sWS,4)}, s{sT2} offen sc1", tag="sm")
    a.e(f"s_lshl_b32 s{sT0}, s{sTB}, 16")
    a.e(f"v_add_u32 v{vOd0}, s{sT0}, v{vL16}")
    a.e(f"s_sub_u32 s{sT0}, 63, s{sTB}")
    a.e(f"s_sub_u32 s{sT1}, 64, s{sTB}")
    a.e(f"s_cmp_eq_u32 s{sTB}, 0")
    a.e(f"s_cselect_b32 s{sT1}, 32, s{sT1}")
    a.e(f"v_and_b32 v{T}, 31, v{vLANE}")
    a.e(f"v_cmp_eq_u32 vcc, 0, v{T}")
    a.e(f"v_mov_b32 v{T+2}, s{sT0}")
    a.e(f"v_mov_b32 v{T+3}, s{sT1}")
    a.e(f"v_cndmask_b32 v{T+2}, v{T+2}, v{T+3}, vcc")
    a.e(f"v_sub_u32 v{T}, 32, v{T}")
    a.e(f"v_and_b32 v{T}, 31, v{T}")
    a.e(f"v_and_b32 v{T+3}, 32, v{vLANE}")
    a.e(f"v_add_u32 v{T}, v{T}, v{T+3}")
    a.e(f"v_lshlrev_b32 v{T}, 4, v{T}")
    a.e(f"v_lshl_add_u32 v{vOd1}, v{T+2}, 16, v{T}")
    a.e(f"v_cmp_eq_u32 vcc, 0, v{T+3}")
    a.e(f"v_mov_b32 v{T}, s{sTB}")
    a.e(f"v_cndmask_b32 v{T+2}, v{T+2}, v{T}, vcc")
    a.e(f"v_lshlrev_b32 v{vFl}, 7, v{T+2}")
    for t in range(0, 8, 2):
        a.wait(lg=("pm", t + 1))
        for i in range(4): a.e(f"v_add_f32 v{vFr+4*t+i}, v{vFr+4*t+i}, v{vFr+4*t+4+i}")
    a.e(f"s_xor_b32 s{sT0}, s{sWAVE}, 4")
    a.e(f"s_or_b32 s{sT0}, s{sT0}, s{sTB}")
    a.e(f"s_cmp_lg_u32 s{sT0}, 0")
    a.e("s_cbranch_scc1 L_norow")
    a.e("s_mov_b64 exec, 0xff")
    for pe in range(2):
        for k in range(8):
            d = vFr + 8 * pe if k == 0 else 48
            a.e(f"ds_read_b128 {vr(d,4)}, v{T+5} offset:{(8+2*pe+k//4)*TS + (k%4)*16}")
            a.e("s_waitcnt lgkmcnt(0)")
            if k:
                for i in range(4): a.e(f"v_add_f32 v{vFr+8*pe+i}, v{vFr+8*pe+i}, v{48+i}")
    a.e("s_mov_b64 exec, -1")
    a.e("L_norow:")
    a.wait(vm="ost")
    a.e(f"s_sub_u32 s{sT0}, s{sOFo}, {hex(WS_OF)}")
    a.e(f"s_lshr_b32 s{sT0}, s{sT0}, 9")
    a.e(f"s_add_u32 s{sT0}, s{sT0}, {hex(FL_O)}")
    a.e(f"v_mov_b32 v{T+4}, s{sTAG}")
    a.e(f"buffer_store_dword v{T+4}, v{vLz}, {sr(sWS,4)}, s{sT0} offen sc1")
    st()
    a.e(f"s_lshl_b32 s{sJ+6}, s{sWAVE}, 4")
    a.e(f"s_add_u32 s{sJ+6}, s{sJ+6}, {hex(FL_O)}")
    poll256_issue(a, (vFl, sJ + 6), 48)
    a.wait(vm="sm")
    for r in (ZC, ZW, ZS):
        a.e(f"v_add_f32 v{r}, v{r}, v{r+1}")
        a.e(f"v_add_f32 v{r+2}, v{r+2}, v{r+3}")
        a.e(f"v_add_f32 v{r}, v{r}, v{r+2}")
    rbf(a, G)
    a.e(f"v_mul_f32 v{G}, {hex(f2u(-math.log2(math.e)))}, v{G}")
    a.e(f"v_exp_f32 v{G}, v{G}")
    a.e(f"v_add_f32 v{ZW}, v{ZW}, v{ZC}")
    a.e(f"v_add_f32 v{G}, 1.0, v{G}")
    a.e(f"v_rcp_f32 v{G}, v{G}")
    for i in range(4):
        a.e(f"v_{'sub' if i % 2 else 'add'}_f32 v{vFr+i}, v{vFr+i}, v{ZC}")
        a.e(f"v_{'add' if i % 2 else 'sub'}_f32 v{vFr+24+i}, v{vFr+24+i}, v{ZS}")
    rbf(a, G)
    a.e(f"v_sub_f32 v{vOmg}, 1.0, v{G}")
    rbf(a, vOmg)
    a.e(f"s_cmp_lg_u32 s{sTt}, 0")
    a.e(f"s_cselect_b32 s{sT0}, 1.0, -1.0")
    for pe in range(2):
        for i in range(4):
            P, Q = vFr + 8 * pe + i, vFr + 16 + 8 * pe + i
            a.e(f"v_fma_f32 v{vGY+4*pe+i}, v{Q}, s{sT0}, v{P}")
            a.e(f"v_fma_f32 v{vGY+8+4*pe+i}, v{Q}, -s{sT0}, v{P}")
    a.e(f"v_or_b32 v{T}, s{sCb}, v{T+1}")
    a.e(f"v_cmp_eq_u32 vcc, 0, v{T}")
    a.e(f"v_cndmask_b32 v{vGY+8}, v{vGY+8}, v{ZW}, vcc")
    for i in range(16): a.e(f"v_mul_f32 v{vGY+i}, v{G}, v{vGY+i}")
    a.e(f"s_lshl_b32 s{sT0}, s{sCb}, 7")
    a.e(f"v_lshl_add_u32 v{T}, v{T+1}, 4, s{sT0}")
    a.e(f"v_lshlrev_b32 v{vRow}, 11, v{vRow}")
    a.e(f"v_add_u32 v{vSt}, v{vRow}, v{T}")
    a.e(f"v_sub_u32 v{T}, {2048-16}, v{T}")
    a.e(f"v_add_u32 v{vSt+1}, v{vRow}, v{T}")
    a.e(f"v_add_u32 v{vRow}, {1024-16}, v{vRow}")
    a.e(f"v_cndmask_b32 v{vRow}, v{vSt+1}, v{vRow}, vcc")
    a.e(f"s_lshl_b32 s{sT0}, s{sTt}, 14")
    a.e(f"v_add_u32 v{T}, s{sT0}, v{vL16}")
    a.e(f"v_add_u32 v{T+1}, 65536, v{T}")
    a.e("s_waitcnt vmcnt(0) lgkmcnt(0)")
    a.e("s_barrier")
    poll256_check(a, (vFl, sJ + 6), 48, "L_po", slp=1)
    st()
    base = [65536, 98304, 0, 32768]
    a.e(f"s_lshl_b32 s{sT0}, s{sWAVE}, 12")
    a.e(f"s_lshl_b32 s{sT1}, s{sWAVE}, 13")
    a.e(f"s_add_u32 s{sT1}, s{sT1}, {hex(WS_OF)}")
    for j in range(4):
        for rs in range(2):
            a.e(f"s_add_u32 m0, s{sT0}, {base[j] + rs*2048}")
            for f in range(2):
                a.e(f"buffer_load_dwordx4 v{[vOd0, vOd1][rs]}, {sr(sWS,4)}, s{sT1} offen offset:{f*1024} sc1 lds", tag=("O", j))
        if j < 3: a.e(f"s_add_u32 s{sT1}, s{sT1}, 2048")
    D = 3
    def rd(n):
        j, k = divmod(n, 8)
        if k == 0:
            a.wait(vm=("O", j)); a.e("s_barrier")
        for rs in range(2):
            a.e(f"ds_read_b128 {vr(vFr + (n % 6)*8 + 4*rs, 4)}, v{T+1 if j < 2 else T} offset:{(j%2)*32768 + (k//2)*4096 + rs*2048 + (k%2)*1024}", tag=("o", n))
    for n in range(D): rd(n)
    for n in range(32):
        j, k = divmod(n, 8)
        a.wait(lg=("o", n))
        wf = wfreg(8 * (k // 2) + 2 * j + k % 2)
        for rs in range(2):
            acc = vr(vAcc + 16 * rs, 16)
            a.e(f"v_mfma_f32_32x32x16_bf16 {acc}, {vr(wf,4)}, {vr(vFr + (n%6)*8 + 4*rs, 4)}, {acc if n else 0}")
        if n + D < 32: rd(n + D)
        if n == 2: st()
    st()
    tile_waddr(a, T, T + 1)
    a.e(f"s_lshl1_add_u32 s{sT0}, s{sQ}, s{sTt}")
    a.e(f"s_mul_i32 s{sT0}, s{sT0}, {TS}")
    a.e(f"s_add_u32 s{sT0}, s{sT0}, 65536")
    a.e(f"v_add_u32 v{T}, s{sT0}, v{T}")
    a.e(f"s_mul_i32 s{sT0}, s{sTt}, {8*TS}")
    a.e(f"s_add_u32 s{sT0}, s{sT0}, 65536")
    a.e(f"v_add_u32 v{vRa}, s{sT0}, v{vRa}")
    for rs in range(2):
        for q in range(4):
            a.e(f"ds_write_b128 v{T}, {vr(vAcc+16*rs+4*q,4)} offset:{rs*8*TS + q*1088}")
    a.e("s_waitcnt lgkmcnt(0)")
    a.e("s_barrier")
    for t in range(8):
        a.e(f"ds_read_b128 {vr(vFr+4*t,4)}, v{vRa} offset:{t*TS}", tag=("fb", t))
    for c in range(4):
        a.wait(lg=("fb", 2 * c + 1))
        for i in range(4):
            a.e(f"v_add_f32 v{vFr+8*c+i}, v{vFr+8*c+i}, v{vFr+8*c+4+i}")
        for i in range(4):
            a.e(f"v_fma_f32 v{vGY+4*c+i}, v{vFr+8*c+i}, v{vOmg}, v{vGY+4*c+i}")
        if c == 1:
            for i in range(4): a.e(f"v_cvt_pk_bf16_f32 v{32+i}, v{vGY+i}, v{vGY+4+i}")
            a.e(f"buffer_store_dwordx4 {vr(32,4)}, v{vSt}, {sr(sOUT,4)}, 0 offen")
    E, Od = vGY + 8, vGY + 12
    for i in range(3): a.e(f"v_cvt_pk_bf16_f32 v{36+i}, v{E+3-i}, v{Od+2-i}")
    a.e(f"v_cvt_pk_bf16_f32 v40, v{Od+3}, v{E}")
    a.e(f"buffer_store_dwordx3 {vr(36,3)}, v{vSt+1}, {sr(sOUT,4)}, 0 offen offset:4")
    a.e(f"buffer_store_short v40, v{vSt+1}, {sr(sOUT,4)}, 0 offen offset:2")
    a.e(f"buffer_store_short_d16_hi v40, v{vRow}, {sr(sOUT,4)}, 0 offen offset:16")

JOBS = {2: job_a, 3: job3, 4: job4, 5: job5, 6: job6, 7: job7}

def kernel_a():
    a = Asm(); st = Stamper(a)
    if Cfg.stamps: a.e("s_memrealtime s[96:97]")
    st()
    prologue(a, st)
    phase1(a, st)
    epilogue1(a, st)
    attention(a, st)
    phase3(a, st)
    a.e("s_waitcnt vmcnt(0) lgkmcnt(0)")
    st()
    st.dump()
    a.e("s_waitcnt vmcnt(0)")
    a.e("L_end:")
    a.e("s_endpgm")
    n0 = st.n
    st.n = 1; loader(a, st)
    st.n = 1; p0wave(a, st)
    for g in sorted(JOBS):
        a.e(f"L_job{g}:")
        a.lg = ["K", "K", "V2", "V1"]; a.vm = []
        JOBS[g](a)
        a.e("s_waitcnt lgkmcnt(0)")
        a.e("s_branch L_attb")
    fallback(a)
    a.verify_edges()
    return a

HEADER = open("cdna_kernels/" + NAME + ".s.ref").read().split("; Override launch")[0]

def wrap(kernels):
    out = HEADER
    if len(kernels) == 1:
        l, a, g, b, lds, nv = kernels[0]
        out += f"; @launch grid=({g},1,1) block=({b},1,1) lds={lds}\n"
    else:
        for l, a, g, b, lds, nv in kernels:
            out += f"; @launch kernel={l} grid=({g},1,1) block=({b},1,1) lds={lds}\n"
    out += '.amdgcn_target "amdgcn-amd-amdhsa--gfx950"\n.text\n'
    for l, a, g, b, lds, nv in kernels:
        out += f".globl {l}\n.p2align 8\n.type {l},@function\n{l}:\n" + a.text()
    out += '.section .rodata,"a"\n'
    for l, a, g, b, lds, nv in kernels:
        acc = (nv + 3) // 4 * 4
        out += f""".p2align 6
.amdhsa_kernel {l}
  .amdhsa_next_free_vgpr {nv}
  .amdhsa_next_free_sgpr 102
  .amdhsa_accum_offset {acc}
  .amdhsa_group_segment_fixed_size 0
  .amdhsa_kernarg_size 96
  .amdhsa_user_sgpr_count 2
  .amdhsa_user_sgpr_kernarg_segment_ptr 1
  .amdhsa_system_sgpr_workgroup_id_x 1
.end_amdhsa_kernel
"""
    return out

if __name__ == "__main__":
    outp = sys.argv[1] if len(sys.argv) > 1 else "dev.s"
    Cfg.stamps = "--stamps" in sys.argv
    Cfg.pf = "--nopf" not in sys.argv
    Cfg.x = {t[2:] for t in sys.argv if t.startswith("-x")}
    a = kernel_a()
    open(outp, "w").write(wrap([(NAME + "_kernel", a, 256, 512, 163840, NVGPR)]))
    print("instrs", len(a.ins), "auto nops", a.nops)
```

```python
import sys, math, struct
from asmlib import Asm, vr, sr

NAME = "gated_mix__spectral_fnet__mha_block__prompt"
MB = 1 << 20
WS_KV = 0
WS_OF = 8 * MB
WS_XF = 12 * MB
XSTR = 0x84000
WS_UV = 15 * MB
UVSTR = 33 * 16384
WS_WF = 18 * MB
WS_SM = 20 * MB
WS_GP = WS_SM
WS_XE = WS_SM + 0x10000
WS_ZC = WS_SM + 0x20000
ZSTR = 0x10000
OOB = 0x40000000
WS_FL = 21 * MB
WS_ST = 22 * MB
WS_CF = 24 * MB
WS_DF = 26 * MB
WS_SIZE = 28 * MB
FL_KV = WS_FL
FL_0 = WS_FL + 0x8000
FL_O = WS_FL + 0x10000
FL_A = WS_FL + 0xC000

def f2u(x): return struct.unpack("<I", struct.pack("<f", x))[0]

class Cfg:
    stamps = False
    pf = True
    wl = 4
    x = set()

def srd(a, d, koff, size):
    a.e(f"s_load_dwordx2 {sr(d,2)}, s[0:1], {koff}")
    a.e(f"s_mov_b32 s{d+2}, {hex(size)}")
    a.e(f"s_mov_b32 s{d+3}, 0x20000")

sX, sW, sWS, sDBG = 8, 12, 16, 20
sWAVE, sR, sH, sTAG = 3, 4, 5, 6
sT0, sT1, sT2, sT3 = 24, 25, 26, 27
sWo = 28
sWl, sXl, sXs = 31, 32, 33
sKVo, sF1o, sOFo = 34, 35, 36
sKVl = 37
sG = 38
sSpin = 39
sKVsrc = 40
sSlot = 41
sC1, sC2 = 42, 43
sGW, sWO, sMS, sMD, sOUT = 44, 48, 52, 56, 60
sRow = 98
sS = 7
sSTAMP = 78
sJ = 64
vLANE, vL16 = 1, 2
vXd = 4
vWd = 8
vWr = 9
vXr = 10
vT = 14
vAQ, vAK, vAV = 32, 48, 64
vXf = 80
vWf = 112
vS = [32, 48]
vO = 64
vM = 80
vQ = 96
vK = 104
vV = 112
vP = 120
vLs = 128
vSel = 132
vKVa = 3
NVGPR = 256

class Stamper:
    def __init__(self, a): self.a = a; self.n = 0
    def __call__(self):
        if not Cfg.stamps or self.n >= 16: return
        self.a.e("s_memrealtime s[94:95]" if "rt" in Cfg.x else "s_memtime s[94:95]")
        self.a.e("s_waitcnt lgkmcnt(0)")
        self.a.e(f"s_mov_b32 s{sSTAMP + self.n}, s94")
        self.n += 1
    def dump(self):
        if not Cfg.stamps: return
        a = self.a
        a.e(f"s_memrealtime {sr(sT0,2)}")
        a.e("s_waitcnt lgkmcnt(0)")
        a.e(f"s_lshl_b32 s{sT2}, s2, 3")
        a.e(f"s_add_u32 s{sT2}, s{sT2}, s{sWAVE}")
        a.e(f"s_lshl_b32 s{sT2}, s{sT2}, 7")
        a.e(f"s_add_u32 s{sT2}, s{sT2}, {hex(WS_ST)}")
        a.e(f"v_mov_b32 v{vT+1}, 0")
        for i in range(self.n):
            a.e(f"v_mov_b32 v{vT}, s{sSTAMP+i}")
            a.e(f"buffer_store_dword v{vT}, v{vT+1}, {sr(sWS,4)}, s{sT2} offen offset:{4*i}")
        a.e(f"v_mov_b32 v{vT}, s{sT0}")
        a.e(f"buffer_store_dword v{vT}, v{vT+1}, {sr(sWS,4)}, s{sT2} offen offset:{4*31}")
        a.e(f"v_mov_b32 v{vT}, s96")
        a.e(f"buffer_store_dword v{vT}, v{vT+1}, {sr(sWS,4)}, s{sT2} offen offset:{4*30}")


sPh, sOff, sXb, sLl, sWb, sK = 54, 55, 28, 29, 30, 31
sArr, sCb, sQ, sTt, sTrow = sJ, sJ + 1, sJ + 2, sJ + 3, sJ + 5
vLz = 21
LD_TAG = 61440
def prologue(a, st):
    a.e("s_cmp_ge_u32 s2, 256")
    a.e("s_cbranch_scc1 L_end")
    srd(a, sX, 0, 4 * MB)
    srd(a, sW, 48, 6 * MB)
    srd(a, sWS, 88, WS_SIZE)
    srd(a, sDBG, 80, 256)
    srd(a, sGW, 64, 2048)
    srd(a, sWO, 56, 2 * MB)
    srd(a, sOUT, 72, 4 * MB)
    a.e(f"v_and_b32 v{vLANE}, 63, v0")
    a.e(f"v_lshrrev_b32 v{vT}, 6, v0")
    a.e(f"v_lshlrev_b32 v{vL16}, 4, v{vLANE}")
    a.e(f"v_readfirstlane_b32 s{sWAVE}, v{vT}")
    a.e(f"s_bfe_u32 s{sT1}, s2, 0x20003")
    a.e(f"s_xor_b32 s{sT0}, s2, s{sT1}")
    a.e(f"s_and_b32 s{sT0}, s{sT0}, 1")
    a.e(f"s_lshl1_add_u32 s{sR}, s{sT1}, s{sT0}")
    a.e(f"s_bfe_u32 s{sT0}, s2, 0x20001")
    a.e(f"s_lshr_b32 s{sT1}, s2, 5")
    if "hx" in Cfg.x: a.e(f"s_xor_b32 s{sT1}, s{sT1}, 7")
    a.e(f"s_lshl3_add_u32 s{sH}, s{sT0}, s{sT1}")
    a.e(f"s_lshr_b32 s{sT0}, s{sWAVE}, 1")
    a.e(f"s_cmp_eq_u32 s{sT0}, 2")
    a.e("s_cbranch_scc1 L_load")
    common(a)
    a.e(f"s_cmp_ge_u32 s{sWAVE}, 6")
    a.e("s_cbranch_scc1 L_p0")
def common(a):
    a.e(f"s_mul_i32 s{sXl}, s{sWAVE}, 12288")
    a.e(f"s_add_u32 s{sXl}, s{sXl}, 65536")
    a.e(f"s_lshr_b32 s{sArr}, s{sH}, 3")
    a.e(f"s_and_b32 s{sCb}, s{sH}, 7")
    a.e(f"s_and_b32 s{sQ}, s{sWAVE}, 3")
    a.e(f"s_lshr_b32 s{sTt}, s{sWAVE}, 2")
    a.e(f"s_lshl1_add_u32 s{sT0}, s{sR}, s{sTt}")
    a.e(f"s_lshl_b32 s{sT0}, s{sT0}, 6")
    a.e(f"s_and_b32 s{sT1}, s{sArr}, 1")
    a.e(f"s_add_u32 s{sTrow}, s{sT0}, s{sT1}")
    a.e(f"v_mov_b32 v{vT}, {hex(OOB)}")
    a.e(f"v_cmp_eq_u32 vcc, 63, v{vLANE}")
    a.e(f"v_cndmask_b32_e64 v{vLz}, v{vT}, 0, vcc")

vWd3 = 8
def issue_x(a, i):
    a.e(f"s_add_u32 s{sK}, s{sOff}, {i}")
    a.e(f"s_and_b32 s{sK}, s{sK}, 15")
    a.e(f"s_lshl_b32 s{sK}, s{sK}, 7")
    a.e(f"s_add_u32 s{sK}, s{sK}, s{sXb}")
    for t in range(4):
        a.e(f"s_add_u32 m0, s{sLl}, {t*12288 + (i % 3)*4096}")
        if t: a.e(f"s_add_u32 s{sK}, s{sK}, 65536")
        for q in range(4):
            a.e(f"buffer_load_dwordx4 v{vXd+q}, {sr(sX,4)}, s{sK} offen offset:{q*1024} lds", tag=("X", i))
def issue_w(a, i):
    a.e(f"s_add_u32 s{sK}, s{sOff}, {i}")
    a.e(f"s_and_b32 s{sK}, s{sK}, 15")
    a.e(f"s_mul_i32 s{sK}, s{sK}, {64*6144}")
    a.e(f"s_add_u32 s{sK}, s{sK}, s{sWb}")
    for j in range(2):
        a.e(f"s_add_u32 m0, s{sXs}, {(i % 5)*12288 + j*3072}")
        if j: a.e(f"s_add_u32 s{sK}, s{sK}, {16*6144}")
        for m in range(3):
            a.e(f"buffer_load_dwordx4 v{vWd3+m}, {sr(sW,4)}, s{sK} offen offset:{m*1024} lds", tag=("W", i))
def loader_start(a):
    if "o1" in Cfg.x:
        a.e(f"s_and_b32 s{sOff}, s2, 7"); a.e(f"s_lshl_b32 s{sOff}, s{sOff}, 1")
    elif "o8" in Cfg.x:
        a.e(f"s_andn2_b32 s{sOff}, s{sR}, 1"); a.e(f"s_add_u32 s{sOff}, s{sOff}, s{sH}"); a.e(f"s_and_b32 s{sOff}, s{sOff}, 7")
        a.e(f"s_bfe_u32 s{sT0}, s2, 0x10001"); a.e(f"s_lshl1_add_u32 s{sOff}, s{sOff}, s{sT0}")
    elif "o0" in Cfg.x:
        a.e(f"s_mov_b32 s{sOff}, 0")
    elif "o4" in Cfg.x:
        a.e(f"s_add_u32 s{sOff}, s{sR}, s{sH}"); a.e(f"s_and_b32 s{sOff}, s{sOff}, 2"); a.e(f"s_and_b32 s{sT0}, s{sH}, 1")
        a.e(f"s_add_u32 s{sOff}, s{sOff}, s{sT0}"); a.e(f"s_lshl_b32 s{sOff}, s{sOff}, 2")
        a.e(f"s_bfe_u32 s{sT0}, s2, 0x20001"); a.e(f"s_add_u32 s{sOff}, s{sOff}, s{sT0}")
    else:
        a.e(f"s_and_b32 s{sOff}, s{sH}, 1"); a.e(f"s_lshl_b32 s{sOff}, s{sOff}, 3")
        a.e(f"s_and_b32 s{sT0}, s2, 7"); a.e(f"s_add_u32 s{sOff}, s{sOff}, s{sT0}")
    a.e(f"s_and_b32 s{sT2}, s{sWAVE}, 1")
    a.e(f"s_lshl1_add_u32 s{sT0}, s{sR}, s{sT2}")
    a.e(f"s_lshl_b32 s{sXb}, s{sT0}, 18")
    a.e(f"s_mul_i32 s{sLl}, s{sT2}, {4*12288}")
    a.e(f"s_add_u32 s{sLl}, s{sLl}, 65536")
    a.e(f"s_mul_i32 s{sWb}, s{sT2}, {32*6144}")
    a.e(f"s_lshl_b32 s{sT0}, s{sH}, 6")
    a.e(f"s_add_u32 s{sWb}, s{sWb}, s{sT0}")
    a.e(f"s_mul_i32 s{sXs}, s{sT2}, 6144")
    a.e(f"v_lshrrev_b32 v{vT}, 3, v{vLANE}")
    a.e(f"v_lshlrev_b32 v{vT}, 11, v{vT}")
    a.e(f"v_and_b32 v{vT+1}, 7, v{vLANE}")
    a.e(f"v_lshrrev_b32 v{vT+2}, 4, v{vLANE}")
    a.e(f"v_xor_b32 v{vT+1}, v{vT+1}, v{vT+2}")
    a.e(f"v_lshlrev_b32 v{vT+1}, 4, v{vT+1}")
    a.e(f"v_add_u32 v{vXd}, v{vT}, v{vT+1}")
    a.e(f"v_xor_b32 v{vT+1}, 64, v{vT+1}")
    a.e(f"v_add_u32 v{vT}, v{vT}, v{vT+1}")
    a.e(f"v_add_u32 v{vXd+1}, {16384-1024}, v{vT}")
    a.e(f"v_add_u32 v{vXd+2}, {2*(16384-1024)}, v{vXd}")
    a.e(f"v_add_u32 v{vXd+3}, {3*(16384-1024)}, v{vT}")
    a.e(f"v_lshrrev_b32 v{vT}, 2, v{vLANE}")
    a.e(f"v_mul_u32_u24 v{vT}, 6144, v{vT}")
    a.e(f"v_and_b32 v{vT+1}, 3, v{vLANE}")
    a.e(f"v_lshl_add_u32 v{vWd3}, v{vT+1}, 4, v{vT}")
    a.e(f"v_add_u32 v{vWd3+1}, 1024, v{vWd3}")
    a.e(f"v_add_u32 v{vWd3+2}, 2048, v{vWd3}")
    a.e("s_waitcnt lgkmcnt(0)")
    issue_w(a, 0); issue_x(a, 0); issue_w(a, 1); issue_x(a, 1)

def c_stream():
    return [f"s_lshl_b32 s{sJ+7}, s{sQ}, 7", f"s_lshr_b32 s{sJ+8}, s{sArr}, 1"] + \
        cos_stream(vJC, 8, sTrow, sJ + 7, sJ + 8, 1.0 / 2048, 24, nine=True)

def loader(a, st):
    a.e("L_load:")
    a.vm = []; a.lg = []
    loader_start(a)
    common(a)
    side = c_stream()
    nw = 2
    for i in range(16):
        a.wait(vm=[("X", i), ("W", i)])
        a.e("s_barrier")
        if i in ((0,) if 'gs' in Cfg.x else (0, 4, 8, 12)): st()
        if i + 2 < 16: issue_x(a, i + 2)
        k = 0
        while nw < 16 and nw <= i + Cfg.wl and k < 2:
            issue_w(a, nw); nw += 1; k += 1
        if i >= 13:
            for _ in range(70 if i < 15 else 1000):
                if side: a.e(side.pop(0))
    st()
    a.e("s_branch L_epi")

vX0 = 32
vG = 96
vF = 112
vGp = 128
vU = 174
vPa, vPb, vMk, vL0 = range(192, 196)
vWa = 202
vWG = 208
vCd = 112

def cos_stream(dst, nfr, srow, scol, smat, inv, T, nine=False):
    q = []
    A, tf, t9, t0 = T, T + 1, T + 2, T + 3
    q.append(f"s_cmp_lg_u32 s{smat}, 0")
    q.append(f"s_cselect_b32 s{sPh}, 0x3e800000, 0")
    q.append(f"v_and_b32 v{tf}, 31, v{vLANE}")
    q.append(f"v_lshl_add_u32 v{tf}, v{tf}, 1, s{srow}")
    q.append(f"v_cvt_f32_u32 v{tf}, v{tf}")
    q.append(f"v_mul_f32 v{tf}, {hex(f2u(inv))}, v{tf}")
    q.append(f"v_lshrrev_b32 v{t0}, 5, v{vLANE}")
    q.append(f"v_lshl_add_u32 v{t0}, v{t0}, 3, s{scol}")
    q.append(f"v_cvt_f32_u32 v{t0}, v{t0}")
    q.append(f"v_fma_f32 v{A}, v{tf}, v{t0}, s{sPh}")
    q.append(f"v_fract_f32 v{A}, v{A}")
    q.append(f"v_mul_f32 v{t9}, {hex(f2u(9.0))}, v{tf}")
    if nine:
        q.append(f"v_mul_f32 v{t0}, {hex(f2u(512.0))}, v{tf}")
        q.append(f"v_add_f32 v{t0}, s{sPh}, v{t0}")
        q.append(f"v_fract_f32 v{t0}, v{t0}")
        q.append(f"v_cos_f32 v{t0}, v{t0}")
        for i in range(1, 4): q.append(f"v_mov_b32 v{dst+4*nfr+i}, 0")
        q.append(f"v_cvt_pk_bf16_f32 v{dst+4*nfr}, v{t0}, v{t0}")
    for k in range(4 * nfr):
        t = t0 + 2 * (k % 2)
        q.append(f"v_cos_f32 v{t}, v{A}")
        q.append(f"v_add_f32 v{A}, v{A}, v{tf}")
        q.append(f"v_cos_f32 v{t+1}, v{A}")
        q.append(f"v_add_f32 v{A}, v{A}, v{t9 if k % 4 == 3 else tf}")
        q.append(f"v_cvt_pk_bf16_f32 v{dst+k}, v{t}, v{t+1}")
    return q

def p0_setup(a):
    a.e(f"s_and_b32 s{sT0}, s2, 1")
    a.e(f"s_lshl_b32 s{sT0}, s{sT0}, 8")
    a.e(f"s_bfe_u32 s{sT1}, s2, 0x20001")
    a.e(f"s_lshl_b32 s{sT1}, s{sT1}, 6")
    a.e(f"s_add_u32 s{sT0}, s{sT0}, s{sT1}")
    a.e(f"s_lshr_b32 s{sT1}, s2, 3")
    a.e(f"s_lshl1_add_u32 s{sT0}, s{sT1}, s{sT0}")
    a.e(f"s_and_b32 s{sT3}, s{sWAVE}, 1")
    a.e(f"s_add_u32 s{sS}, s{sT0}, s{sT3}")
    a.e(f"s_lshl_b32 s{sRow}, s{sS}, 11")
    a.e(f"s_sub_u32 s{sRow+1}, {hex(2048*2048)}, s{sRow}")
    a.e(f"s_sub_u32 s{sRow+2}, {hex(1024*2048)}, s{sRow}")
    a.e(f"s_add_u32 s{sRow+3}, {hex(1024*2048)}, s{sRow}")
    a.e(f"s_cmp_eq_u32 s{sS}, 0")
    a.e(f"s_cselect_b32 s{sRow+1}, {hex(512*2048)}, s{sRow+1}")
    a.e(f"s_cselect_b32 s{sRow+2}, {hex(1536*2048)}, s{sRow+2}")
    a.e(f"s_cselect_b32 s{sC1}, 0, 1.0")
    a.e(f"v_lshlrev_b32 v{vPa}, 3, v{vLANE}")
    a.e(f"v_sub_u32 v{vPb}, {1024-8}, v{vPa}")
    a.e("s_waitcnt lgkmcnt(0)")
    p0_loads(a)
    a.e(f"v_cmp_eq_u32 vcc, 0, v{vLANE}")
    a.e(f"v_cndmask_b32_e64 v{vMk}, 1.0, 0, vcc")
    a.e(f"v_mov_b32 v{vU+1}, {hex(OOB)}")
    a.e(f"v_cndmask_b32_e64 v{vL0}, v{vU+1}, 0, vcc")
    a.e(f"s_mov_b32 s{sC2}, 0x3f803f80")
    a.e(f"s_and_b32 s{sT0}, s2, 7")
    a.e(f"s_lshr_b32 s{sT1}, s2, 7")
    a.e(f"s_bfe_u32 s{sT2}, s2, 0x40003")
    a.e(f"s_lshl_b32 s{sJ+7}, s{sT0}, 6")
    a.e(f"s_add_u32 s{sJ+7}, s{sJ+7}, s{sT1}")
    a.e(f"s_lshl_b32 s{sJ+8}, s{sT2}, 4")
    a.e(f"s_lshl1_add_u32 s{sT1}, s{sT3}, s{sT1}")
    a.e(f"s_lshl3_add_u32 s{sT1}, s{sT1}, s{sT0}")
    a.e(f"s_lshl4_add_u32 s{sT1}, s{sT1}, s{sT2}")
    a.e(f"s_lshl_b32 s{sT1}, s{sT1}, 10")
    a.e(f"s_add_u32 s{sJ+9}, s{sT1}, {hex(WS_DF)}")
    a.e(f"s_mov_b32 s{sJ+10}, s{sT3}")
    a.e(f"s_lshl_b32 s{sT1}, s{sT0}, 6")
    a.e(f"v_and_b32 v{vU}, 31, v{vLANE}")
    a.e(f"v_lshl_add_u32 v{vU}, v{vU}, 1, s{sT1}")
    a.e(f"v_sub_u32 v{vU+1}, 1024, v{vU}")
    a.e(f"v_cmp_eq_u32 vcc, 0, v{vU}")
    a.e(f"v_mov_b32 v{vU+2}, 512")
    a.e(f"v_cndmask_b32 v{vU+2}, v{vU+1}, v{vU+2}, vcc")
    a.e(f"v_lshrrev_b32 v{vU+3}, 5, v{vLANE}")
    a.e(f"v_lshlrev_b32 v{vU+3}, 13, v{vU+3}")
    a.e(f"v_lshl_add_u32 v{vWa}, v{vU}, 1, v{vU+3}")
    a.e(f"v_lshl_add_u32 v{vWa+2}, v{vU+2}, 1, v{vU+3}")
    a.e(f"v_lshl_add_u32 v{vWa+3}, v{vU+1}, 1, v{vU+3}")
    a.e(f"v_add_u32 v{vWa+3}, -2, v{vWa+3}")
    a.e(f"s_lshr_b32 s{sT1}, s2, 3")
    a.e(f"s_lshl1_add_u32 s{sT1}, s{sT1}, s{sT3}")
    a.e(f"s_lshl_b32 s{sT0}, s{sT0}, 8")
    a.e(f"s_add_u32 s{sT0}, s{sT0}, s{sT1}")
    a.e(f"s_lshl_b32 s{sT0}, s{sT0}, 10")
    a.e(f"s_add_u32 s{sJ+4}, s{sT0}, {hex(WS_WF)}")
    a.e(f"s_lshl_b32 s{sJ+6}, s{sT1}, 15")

def xr(row, slot, i): return vX0 + 16 * row + 4 * slot + (i if slot in (0, 3) else (4 - i) % 4)
def p0_loads(a):
    addr = [(vPa, 0), (vPb, 1024), (vPb, 0), (vPa, 1024)]
    for k in range(4):
        a.e(f"buffer_load_dwordx2 {vr(vG+4*k,2)}, v{addr[k][0]}, {sr(sGW,4)}, 0 offen offset:{addr[k][1]}", tag=("p0", 4))
    for r in range(4):
        for k in range(4):
            a.e(f"buffer_load_dwordx2 {vr(vX0+16*r+4*k,2)}, v{addr[k][0]}, {sr(sX,4)}, s{sRow+r} offen offset:{addr[k][1]}", tag=("p0", r))
def wf_loads(a, ct, ps=range(4)):
    op = "dword" if ct == 0 else "ushort"
    for p in ps:
        row = (0, 2, 8, 10)[p]
        a.e(f"s_add_u32 s{sT2}, s{sJ+6}, {row*2048}")
        a.e(f"buffer_load_{op} v{vWG+8*ct+p}, v{vWa+ct}, {sr(sWO,4)}, s{sT2} offen", tag=("wg", ct))
        a.e(f"buffer_load_{op} v{vWG+8*ct+4+p}, v{vWa+ct}, {sr(sWO,4)}, s{sT2} offen offset:2048", tag=("wg", ct))
def wf_store(a, ct):
    if ct < 2:
        a.e(f"s_mov_b32 s{sT1}, {['0x05040100', '0x07060302'][ct]}")
        D = vWG + 8 + 4 * ct
        for p in range(4): a.e(f"v_perm_b32 v{D+p}, v{vWG+4+p}, v{vWG+p}, s{sT1}")
    else:
        D = vWG + 8 * ct
        for p in range(4): a.e(f"v_lshl_or_b32 v{D+p}, v{D+4+p}, 16, v{D+p}")
    a.e(f"s_add_u32 s{sT2}, s{sJ+4}, {ct*65536}")
    a.e(f"buffer_store_dwordx4 {vr(D,4)}, v{vL16}, {sr(sWS,4)}, s{sT2} offen sc1")

def wf_stores(a):
    vm = list(a.vm)
    a.e(f"s_cmp_lt_u32 s{sWAVE}, 6")
    a.e("s_cbranch_scc1 L_nowf")
    for ct in range(4): wf_store(a, ct)
    a.e("L_nowf:")
    a.vm = vm

DPP = ["row_shr:1 row_mask:0xf bank_mask:0xf", "row_shr:2 row_mask:0xf bank_mask:0xf", "row_shr:4 row_mask:0xf bank_mask:0xf",
       "row_shr:8 row_mask:0xf bank_mask:0xf", "row_bcast:15 row_mask:0xa bank_mask:0xf", "row_bcast:31 row_mask:0xc bank_mask:0xf"]

vR = 240
def p0_dfold(a, i):
    H = vU + 8
    for ar in range(4):
        f = vF + 4 * ar
        if i == 0:
            ng = "" if ar < 2 else "-"
            a.e(f"v_fma_f32 v{vU}, v{f+1}, {ng}v{vMk}, v{f}")
            a.e(f"v_fma_f32 v{vU+1}, v{f+2}, {ng}v{vMk}, v{f+3}")
            a.e(f"v_{'add' if ar < 2 else 'sub'}_f32 v{vU+4+ar}, v{f+2}, v{f+1}")
        else:
            op = "add" if ar < 2 else "sub"
            a.e(f"v_{op}_f32 v{vU}, v{f}, v{f+1}")
            a.e(f"v_{op}_f32 v{vU+1}, v{f+3}, v{f+2}")
        E = H + 2 * ar if i % 2 == 0 else vU + 2
        a.e(f"v_add_f32 v{E}, v{vU}, v{vU+1}")
        a.e(f"v_sub_f32 v{E+1}, v{vU}, v{vU+1}")
        if ar < 2:
            if i == 0: a.e(f"v_mov_b32 v{vGp+4+ar}, v{E}")
            else:      a.e(f"v_{'sub' if i % 2 else 'add'}_f32 v{vGp+4+ar}, v{vGp+4+ar}, v{E}")
        if i % 2:
            a.e(f"v_cvt_pk_bf16_f32 v{vR+4*ar+i//2}, v{H+2*ar}, v{E}")
            a.e(f"v_cvt_pk_bf16_f32 v{vR+4*ar+2+i//2}, v{H+2*ar+1}, v{E+1}")
        if i == 3:
            if ar == 0: a.e(f"s_lshl_b32 s{sT0}, s{sS}, 10")
            a.e(f"s_add_u32 s{sT1}, s{sT0}, {hex(WS_XF + ar*XSTR)}")
            a.e(f"buffer_store_dwordx4 {vr(vR+4*ar,4)}, v{vL16}, {sr(sWS,4)}, s{sT1} offen sc1")
    if i == 0:
        a.e(f"v_cvt_pk_bf16_f32 v{vU+16}, v{vU+4}, v{vU+5}")
        a.e(f"v_cvt_pk_bf16_f32 v{vU+17}, v{vU+6}, v{vU+7}")
        a.e(f"s_lshl_b32 s{sT0}, s{sS}, 1")
        for ar in range(4):
            a.e(f"s_add_u32 s{sT1}, s{sT0}, {hex(WS_XE + ar*16384)}")
            a.e(f"buffer_store_short{'_d16_hi' if ar % 2 else ''} v{vU+16+ar//2}, v{vL0}, {sr(sWS,4)}, s{sT1} offen sc1")
def p0_reduce(a, red):
    for d in DPP:
        for r in red: a.e(f"v_add_f32_dpp v{r}, v{r}, v{r} {d}")
    a.e(f"v_cvt_pk_bf16_f32 v{vGp+4}, v{vGp+4}, v{vGp+5}")
    a.e(f"s_lshl_b32 s{sT0}, s{sS}, 1")
    for ar in range(2):
        a.e(f"s_add_u32 s{sT2}, s{sT0}, {hex(WS_XE + ar*16384 + 4*2048)}")
        a.e(f"buffer_store_short{'_d16_hi' if ar % 2 else ''} v{vGp+4}, v{vLz}, {sr(sWS,4)}, s{sT2} offen sc1")

def unpack4(a, b):
    a.e(f"v_and_b32 v{b+3}, 0xffff0000, v{b+1}")
    a.e(f"v_lshlrev_b32 v{b+2}, 16, v{b+1}")
    a.e(f"v_and_b32 v{b+1}, 0xffff0000, v{b}")
    a.e(f"v_lshlrev_b32 v{b}, 16, v{b}")
vOne, vGa = 196, 224
def p0_row(a, r):
    a.wait(vm=[("p0", 4), ("p0", r)])
    if r == 0:
        for k in range(4): unpack4(a, vG + 4 * k)
        for i in range(4): a.e(f"v_mov_b32 v{vOne+i}, s{sC2}")
    for k in range(4):
        x = vX0 + 16 * r + 4 * k
        unpack4(a, x)
        for i in range(4): a.e(f"v_mul_f32 v{vU+i}, v{x+i}, v{vG+4*k+i}")
        P = vU + 6 + 4 * (k // 2)
        a.e(f"v_cvt_pk_bf16_f32 v{P+2*(k%2)}, v{vU}, v{vU+1}")
        a.e(f"v_cvt_pk_bf16_f32 v{P+2*(k%2)+1}, v{vU+2}, v{vU+3}")
        if k in (1, 2): a.e(f"v_mov_b32_dpp v{x}, v{x} wave_ror:1 row_mask:0xf bank_mask:0xf")
        if k % 2: a.e(f"v_mfma_f32_16x16x32_bf16 {vr(vR+4*r,4)}, {vr(vOne,4)}, {vr(P,4)}, {vr(vR+4*r,4) if k == 3 else 0}")
    if r == 3:
        for d in DPP[:4]:
            for q in range(4): a.e(f"v_add_f32_dpp v{vR+4*q}, v{vR+4*q}, v{vR+4*q} {d}")
        for q in range(4):
            a.e(f"s_lshr_b32 s{sT2}, s{sRow+q}, 9")
            a.e(f"s_add_u32 s{sT2}, s{sT2}, {hex(WS_GP)}")
            a.e(f"buffer_store_dword v{vR+4*q}, v{vLz}, {sr(sWS,4)}, s{sT2} offen sc1")
def p0_quarter(a, i):
    for k in range(4):
        A, B, C, D = [xr(r, k, i) for r in range(4)]
        a.e(f"v_fma_f32 v{vU}, v{B}, s{sC1}, v{A}")
        a.e(f"v_fma_f32 v{vU+1}, v{C}, s{sC1}, v{D}")
        a.e(f"v_fma_f32 v{vU+2}, v{B}, -s{sC1}, v{A}")
        a.e(f"v_fma_f32 v{vU+3}, v{C}, -s{sC1}, v{D}")
        a.e(f"v_add_f32 v{vF+k}, v{vU}, v{vU+1}")
        a.e(f"v_sub_f32 v{vF+4+k}, v{vU}, v{vU+1}")
        a.e(f"v_add_f32 v{vF+8+k}, v{vU+2}, v{vU+3}")
        a.e(f"v_sub_f32 v{vF+12+k}, v{vU+2}, v{vU+3}")
    p0_dfold(a, i)
def p0_finish(a):
    p0_reduce(a, [vGp + 4, vGp + 5])

def p0_special(a, half):
    vm = list(a.vm)
    a.e(f"s_and_b32 s{sT0}, s{sS}, 511")
    a.e(f"s_cbranch_scc1 L_p0done{half}")
    a.e(f"s_mov_b32 s{sS}, 512")
    for i in (2 * half, 2 * half + 1):
        for k in range(4):
            B, C = xr(1, k, i), xr(2, k, i)
            a.e(f"v_add_f32 v{vF+k}, v{B}, v{C}")
            a.e(f"v_add_f32 v{vF+4+k}, v{B}, v{C}")
            a.e(f"v_sub_f32 v{vF+8+k}, v{B}, v{C}")
            a.e(f"v_sub_f32 v{vF+12+k}, v{B}, v{C}")
        p0_dfold(a, i)
    if half: p0_reduce(a, [vGp + 4, vGp + 5])
    a.e(f"L_p0done{half}:")
    a.vm = vm

def flag_wg(a, off, lbl, wave=0):
    vm = list(a.vm)
    a.e(f"s_cmp_lg_u32 s{sWAVE}, {wave}")
    a.e(f"s_cbranch_scc1 {lbl}")
    a.e(f"s_and_b32 s{sT0}, s2, 7")
    a.e(f"s_lshl_b32 s{sT0}, s{sT0}, 7")
    a.e(f"s_lshr_b32 s{sT1}, s2, 3")
    a.e(f"s_lshl2_add_u32 s{sT0}, s{sT1}, s{sT0}")
    a.e(f"s_add_u32 s{sT0}, s{sT0}, {hex(off)}")
    a.e(f"v_mov_b32 v{vT+4}, s{sTAG}")
    a.e(f"buffer_store_dword v{vT+4}, v{vLz}, {sr(sWS,4)}, s{sT0} offen sc1")
    a.e(f"{lbl}:")
    a.vm = vm

def p0wave(a, st):
    a.e("L_p0:")
    a.vm = []; a.lg = []
    p0_setup(a)
    a.e(f"s_cmp_lg_u32 s{sS}, 0")
    a.e("s_cbranch_scc1 L_notag")
    a.e(f"s_memrealtime {sr(sT0,2)}")
    a.e("s_waitcnt lgkmcnt(0)")
    a.e(f"s_or_b32 s{sT0}, s{sT0}, 1")
    a.e(f"v_mov_b32 v{vT}, s{sT0}")
    a.e(f"v_mov_b32 v{vT+1}, 0")
    a.e(f"buffer_store_dword v{vT}, v{vT+1}, {sr(sDBG,4)}, 0 offen sc1")
    a.vm.pop()
    a.e("L_notag:")
    def dfrag():
        for t in cos_stream(vCd, 1, sJ + 7, sJ + 8, sJ + 10, 1.0 / 1024, 24): a.e(t)
        a.e(f"buffer_store_dwordx4 {vr(vCd,4)}, v{vL16}, {sr(sWS,4)}, s{sJ+9} offen sc1")
    def tag_issue():
        a.e(f"v_mov_b32 v{vT+1}, 0")
        a.e(f"buffer_load_dword v{vT}, v{vT+1}, {sr(sDBG,4)}, 0 offen sc1", tag="tag")
    def tag_lds():
        a.e(f"v_mov_b32 v{vT}, s{sTAG}")
        a.e(f"v_and_b32 v{vT+1}, 7, v{vLANE}")
        a.e(f"v_mul_u32_u24 v{vT+1}, 12288, v{vT+1}")
        a.e(f"v_add_u32 v{vT+1}, 65536, v{vT+1}")
        a.e(f"ds_write_b32 v{vT+1}, v{vT} offset:6144")
    side = c_stream()
    def cs(n):
        for _ in range(n):
            if side: a.e(side.pop(0))
    L = lambda f, *x: (lambda: f(a, *x))
    seg = {-1: [dfrag, lambda: cs(1000)],
           0: [tag_issue, L(p0_row, 0)], 1: [L(p0_row, 1), L(p0_row, 2)],
           2: [L(p0_row, 3), L(p0_quarter, 0)], 3: [L(p0_quarter, 1), L(p0_quarter, 2)], 4: [L(p0_quarter, 3), L(p0_finish)],
           5: [L(p0_special, 0), L(get_tag)], 6: [L(p0_special, 1), lambda: a.e("s_waitcnt vmcnt(0)")],
           7: [L(flag_wg, FL_0, "L_f0", 6)], 14: [tag_lds, L(wf_loads, 0), L(wf_loads, 2)], 15: [L(wf_loads, 3)]}
    for i in range(-1, 16):
        if i >= 0: a.e("s_barrier")
        if i in ((0,) if 'gs' in Cfg.x else (0, 4, 8, 12)): st()
        for f in seg.get(i, []): f()
    assert not side
    st()
    a.e("s_branch L_epi")

vA2, vXf2 = 172, 220
def phase1(a, st):
    a.vm = []; a.lg = []
    a.e(f"v_lshrrev_b32 v{vT}, 5, v{vLANE}")
    a.e(f"v_lshlrev_b32 v{vT}, 9, v{vT}")
    a.e(f"v_bfe_u32 v{vT+1}, v{vLANE}, 2, 2")
    a.e(f"v_lshl_add_u32 v{vT}, v{vT+1}, 6, v{vT}")
    a.e(f"v_bfe_u32 v{vT+1}, v{vLANE}, 4, 1")
    a.e(f"v_lshl_add_u32 v{vT}, v{vT+1}, 5, v{vT}")
    a.e(f"v_and_b32 v{vT+1}, 3, v{vLANE}")
    a.e(f"v_lshl_add_u32 v{vWr}, v{vT+1}, 3, v{vT}")
    a.e(f"v_and_b32 v{vT}, 31, v{vLANE}")
    a.e(f"v_bfe_u32 v{vT+1}, v{vLANE}, 1, 3")
    a.e(f"v_lshrrev_b32 v{vT+2}, 5, v{vLANE}")
    a.e(f"v_xor_b32 v{vT+1}, v{vT+1}, v{vT+2}")
    a.e(f"v_lshlrev_b32 v{vT+1}, 4, v{vT+1}")
    a.e(f"v_lshl_add_u32 v{vT}, v{vT}, 7, v{vT+1}")
    for s in range(4):
        a.e(f"v_xor_b32 v{vT+1}, {32*s}, v{vT}")
        a.e(f"v_add_u32 v{vXr+s}, s{sXl}, v{vT+1}")
    for t in c_stream(): a.e(t)
    a.e("s_waitcnt lgkmcnt(0)")
    def rd_w(n, m):
        i, s = divmod(n, 4)
        for t in range(2):
            a.e(f"ds_read_b64_tr_b16 {vr(vWf + (n % 2) * 12 + 4 * m + 2 * t, 2)}, v{vWr} offset:{((i % 5)*12 + 3*s + m) * 1024 + 256 * t}", tag=("w", n, m))
    def xreg(i, s, b): return [vXf, vXf2][b] + (i % 2) * 16 + 4 * s
    def rd_x(i, s, b):
        a.e(f"ds_read_b128 {vr(xreg(i,s,b), 4)}, v{vXr+s} offset:{(i % 3) * 4096 + b*49152}", tag=("x", i, s, b))
    a.e("s_barrier")
    st()
    rd_x(0, 0, 0); rd_w(0, 0); rd_x(0, 0, 1); rd_w(0, 1); rd_w(0, 2)
    for s in range(1, 4): rd_x(0, s, 0); rd_x(0, s, 1)
    for n in range(64):
        i, s = divmod(n, 4)
        fill = [[] for _ in range(6)]
        if s == 3 and i < 15:
            a.wait(lg=[("w", n, 2)])
            a.e("s_barrier")
            if (i + 1) % 4 == 0 and 'gs' not in Cfg.x: st()
        if n < 63:
            for m in range(3): fill[m].append(lambda m=m: rd_w(n + 1, m))
            if s == 3:
                fill[0].insert(0, lambda: rd_x(i + 1, 0, 0)); fill[1].insert(0, lambda: rd_x(i + 1, 0, 1))
                for s2 in range(1, 4):
                    for b in range(2): fill[2 + s2].append(lambda s2=s2, b=b: rd_x(i + 1, s2, b))
        for m in range(3):
            for b in range(2):
                a.wait(lg=[("w", n, m), ("x", i, s, b)])
                xf = vr(xreg(i, s, b), 4); wf = vr(vWf + (n % 2) * 12 + 4 * m, 4)
                acc = vr([vAQ, vA2][b] + 16 * m, 16)
                c = "0" if n == 0 else acc
                if m < 2: a.e(f"v_mfma_f32_32x32x16_bf16 {acc}, {wf}, {xf}, {c}")
                else:     a.e(f"v_mfma_f32_32x32x16_bf16 {acc}, {xf}, {wf}, {c}")
                for f in fill[2 * m + b]: f()
    st()

def get_tag(a):
    a.e(f"s_mov_b32 s{sSpin}, 0")
    a.wait(vm="tag")
    vm = list(a.vm)
    a.e("L_tagspin:")
    a.e(f"v_readfirstlane_b32 s{sTAG}, v{vT}")
    a.e(f"s_cmp_lg_u32 s{sTAG}, 0")
    a.e("s_cbranch_scc1 L_tagok")
    a.e(f"buffer_load_dword v{vT}, v{vT+1}, {sr(sDBG,4)}, 0 offen sc1")
    a.e("s_waitcnt vmcnt(0)")
    a.e(f"s_add_u32 s{sSpin}, s{sSpin}, 1")
    a.e(f"s_cmp_lt_u32 s{sSpin}, 0x40000")
    a.e("s_cbranch_scc1 L_tagspin")
    a.e("L_tagok:")
    a.vm = vm

def pack(a, dst, src, n):
    for i in range(n):
        a.e(f"v_cvt_pk_bf16_f32 v{dst+i}, v{src+2*i}, v{src+2*i+1}")

def epilogue1(a, st):
    a.e(f"s_lshl3_add_u32 s{sT0}, s{sR}, s{sWAVE}")
    a.e(f"s_lshl_b32 s{sT1}, s{sH}, 6")
    a.e(f"s_add_u32 s{sT1}, s{sT1}, s{sT0}")
    a.e(f"s_lshl_b32 s{sT1}, s{sT1}, 12")
    a.e(f"s_add_u32 s{sT2}, s{sT1}, {4*4096}")
    a.e(f"v_add_u32 v{vT}, s{sXl}, v{vL16}")
    for b in range(2):
        A = [vAQ, vA2][b]; P = vXf + 16 * b
        for f in range(4):
            pack(a, P + 4 * f, A + 16 + 8 * f, 4)
            a.e(f"buffer_store_dwordx4 {vr(P+4*f,4)}, v{vL16}, {sr(sWS,4)}, s{sT1+b} offen offset:{f*1024} sc1", tag="kvst")
            a.e(f"ds_write_b128 v{vT}, {vr(P+4*f,4)} offset:{b*49152 + f*1024}")
    a.e(f"s_mov_b32 s{sT0}, {hex(f2u(math.log2(math.e) / math.sqrt(32.0)))}")
    for b in range(2):
        A = [vAQ, vA2][b]; P = vWf + 8 * b
        for f in range(2):
            for i in range(8): a.e(f"v_mul_f32 v{A+8*f+i}, s{sT0}, v{A+8*f+i}")
            pack(a, P + 4 * f, A + 8 * f, 4)
            a.e(f"ds_write_b128 v{vT}, {vr(P+4*f,4)} offset:{b*49152 + 4096 + f*1024}")
    a.e("L_epi:")
    poll256_issue(a, FL_0, vJx)
    a.e(f"s_lshl3_add_u32 s{sT0}, s{sR}, s{sWAVE}")
    a.e(f"s_lshl_b32 s{sT1}, s{sH}, 6")
    a.e(f"s_add_u32 s{sT1}, s{sT1}, s{sT0}")
    a.e(f"s_lshl_b32 s{sKVo}, s{sT1}, 12")
    a.e(f"s_lshl3_add_u32 s{sF1o}, s{sH}, s{sWAVE}")
    a.e(f"s_lshl_b32 s{sF1o}, s{sF1o}, 7")
    a.e(f"s_add_u32 s{sF1o}, s{sF1o}, {hex(FL_KV)}")
    a.e(f"s_lshl2_add_u32 s{sT3}, s{sR}, s{sF1o}")
    a.e(f"s_lshl_b32 s{sT0}, s{sT0}, 5")
    a.e(f"s_add_u32 s{sT0}, s{sT0}, s{sH}")
    a.e(f"s_lshl_b32 s{sT0}, s{sT0}, 11")
    a.e(f"s_add_u32 s{sOFo}, s{sT0}, {hex(WS_OF)}")
    a.e(f"v_add_u32 v{vKVa}, 65536, v{vL16}")
    a.e(f"v_add_u32 v{vT}, s{sXl}, v{vL16}")
    a.e("s_waitcnt lgkmcnt(0)")
    a.e("s_barrier")
    for f in range(2):
        a.e(f"ds_read_b128 {vr(vQ+4*f,4)}, v{vT} offset:{4096 + f*1024}", tag="K")
        a.e(f"ds_read_b128 {vr(vK+4*f,4)}, v{vKVa} offset:{f*1024}", tag="K")
    a.e(f"ds_read_b32 v{vT+2}, v{vT} offset:6144", tag="K")
    a.e(f"v_bfe_u32 v{vT}, v{vLANE}, 4, 1")
    a.e(f"v_bfe_u32 v{vT+1}, v{vLANE}, 2, 1")
    a.e(f"v_cmp_eq_u32 vcc, v{vT}, v{vT+1}")
    a.e(f"v_mov_b32 v{vT}, 0x3f803f80")
    a.e(f"v_cndmask_b32 v{vSel}, 0, v{vT}, vcc")
    for i in range(1, 4): a.e(f"v_mov_b32 v{vSel+i}, v{vSel}")
    a.wait(lg="K")
    S = vS[0]
    a.e(f"v_mfma_f32_32x32x16_bf16 {vr(S,16)}, {vr(vK,4)}, {vr(vQ,4)}, 0")
    a.e(f"v_mfma_f32_32x32x16_bf16 {vr(S,16)}, {vr(vK+4,4)}, {vr(vQ+4,4)}, {vr(S,16)}")
    a.e(f"v_readfirstlane_b32 s{sTAG}, v{vT+2}")
    a.e(f"v_mov_b32 v{vKVa2}, v{vKVa}")
    for i in range(16): a.e(f"v_mov_b32 v{vO+i}, 0")
    rd_k(a, 1)
    rd_v(a, 0, 1)
    rd_v(a, 0, 0)
    for i in range(4): a.e(f"v_mov_b32 v{vLs+i}, 0")
    for i in range(4): a.e(f"v_mov_b32 v{vP+4+i}, 0")
    a.e(f"v_max3_f32 v{vT}, v{S}, v{S+1}, v{S+2}")
    for i in range(3, 15, 2):
        a.e(f"v_max3_f32 v{vT}, v{vT}, v{S+i}, v{S+i+1}")
    a.e(f"v_max_f32 v{vT}, v{vT}, v{S+15}")
    a.e(f"v_mov_b32 v{vT+1}, v{vT}")
    a.e(f"v_permlane32_swap_b32 v{vT}, v{vT+1}")
    a.e(f"v_max_f32 v{vT}, v{vT}, v{vT+1}")
    for i in range(16): a.e(f"v_sub_f32 v{vM+i}, 0, v{vT}")
    for i in range(16): a.e(f"v_sub_f32 v{S+i}, v{S+i}, v{vT}")
    st()

vJC, vJE, vJacc, vJx, vX9, vJz, vSelS, vA0, vA1 = 136, 172, 208, 240, 24, 4, 8, 12, 13

def a_loads():
    T = vT
    steps = []
    def setup(a):
        a.e(f"s_mul_i32 s{sJ+6}, s{sArr}, {hex(XSTR)}")
        a.e(f"s_lshl_b32 s{sT0}, s{sCb}, 7")
        a.e(f"s_add_u32 s{sJ+6}, s{sJ+6}, s{sT0}")
        a.e(f"s_add_u32 s{sJ+6}, s{sJ+6}, {hex(WS_XF)}")
        a.e(f"s_lshl_b32 s{sT0}, s{sWAVE}, 16")
        a.e(f"s_add_u32 s{sJ+7}, s{sJ+6}, s{sT0}")
        a.e(f"s_lshl_b32 s{sJ+8}, s{sWAVE}, 13")
        a.e(f"v_lshrrev_b32 v{T}, 2, v{vLANE}")
        a.e(f"v_and_b32 v{T+1}, 3, v{vLANE}")
        a.e(f"v_lshlrev_b32 v{T+1}, 4, v{T+1}")
        a.e(f"v_lshl_add_u32 v{T}, v{T}, 10, v{T+1}")
    steps.append(setup)
    for p in range(8):
        def f(a, p=p):
            a.e(f"s_add_u32 m0, s{sJ+8}, {p*1024}")
            a.e(f"s_add_u32 s{sT0}, s{sJ+7}, {(p//2)*16384 + (p%2)*64}")
            a.e(f"buffer_load_dwordx4 v{T}, {sr(sWS,4)}, s{sT0} offen sc1 lds", tag="al")
        steps.append(f)
    def esetup(a):
        a.e(f"v_lshrrev_b32 v{T+1}, 5, v{vLANE}")
        a.e(f"v_lshlrev_b32 v{T+1}, 4, v{T+1}")
        a.e(f"v_and_b32 v{T}, 3, v{vLANE}")
        a.e(f"v_bfe_u32 v{T+2}, v{vLANE}, 3, 1")
        a.e(f"v_lshl_add_u32 v{T}, v{T+2}, 2, v{T}")
        a.e(f"v_and_b32 v{T+2}, 3, v{T}")
        a.e(f"v_lshl_add_u32 v{T}, v{T}, 11, v{T+1}")
        a.e(f"v_cmp_eq_u32 vcc, 0, v{T+2}")
        a.e(f"v_mov_b32 v{T+2}, {hex(OOB)}")
        a.e(f"v_cndmask_b32 v{T}, v{T+2}, v{T}, vcc")
        a.e(f"v_cmp_ne_u32 vcc, 0, v{vSel}")
        a.e(f"v_cndmask_b32 v{T}, v{T+2}, v{T}, vcc")
        a.e(f"s_lshl_b32 s{sJ+7}, s{sArr}, 14")
        a.e(f"s_add_u32 s{sJ+7}, s{sJ+7}, {hex(WS_XE)}")
        a.e(f"s_lshl_b32 s{sT0}, s{sQ}, 8")
        a.e(f"s_add_u32 s{sJ+8}, s{sJ+7}, s{sT0}")
    steps.append(esetup)
    for j in range(8):
        steps.append(lambda a, j=j: a.e(f"buffer_load_dwordx4 {vr(vJE+4*j,4)}, v{T}, {sr(sWS,4)}, s{sJ+8} offen offset:{32*j} sc1", tag="al"))
    def nine(a):
        a.e(f"s_cmp_lg_u32 s{sQ}, 0")
        a.e(f"s_cselect_b32 s{sT0}, {hex(OOB)}, 0")
        a.e(f"v_lshlrev_b32 v{T+1}, 26, v{T+1}")
        a.e(f"v_or_b32 v{T+1}, s{sT0}, v{T+1}")
        a.e(f"v_or_b32 v{T}, v{T}, v{T+1}")
        a.e(f"buffer_load_ushort v{vJE+32}, v{T}, {sr(sWS,4)}, s{sJ+7} offen offset:1024 sc1")
        a.e(f"v_bfrev_b32 v{T}, v{vLANE}")
        a.e(f"v_bfe_u32 v{T}, v{T}, 27, 3")
        a.e(f"v_and_b32 v{T+2}, 3, v{vLANE}")
        a.e(f"v_lshl_add_u32 v{T}, v{T}, 2, v{T+2}")
        a.e(f"v_lshl_or_b32 v{T}, v{T}, 1, v{T+1}")
        a.e(f"s_lshl_b32 s{sT0}, s{sTt}, 6")
        a.e(f"s_add_u32 s{sT1}, s{sJ+6}, {512*1024}")
        a.e(f"s_add_u32 s{sT2}, s{sT1}, s{sT0}")
        a.e(f"buffer_load_ushort v{vX9}, v{T}, {sr(sWS,4)}, s{sT2} offen sc1")
        a.e(f"s_xor_b32 s{sT2}, s{sT2}, 64")
        a.e(f"buffer_load_ushort v{vX9+4}, v{T}, {sr(sWS,4)}, s{sT2} offen sc1", tag="al")
    steps.append(nine)
    return steps

def job_a(a):
    T = vT
    a.e(f"v_lshrrev_b32 v{T}, 5, v{vLANE}")
    a.e(f"v_lshlrev_b32 v{T}, 9, v{T}")
    a.e(f"v_bfe_u32 v{T+1}, v{vLANE}, 2, 2")
    a.e(f"v_lshl_add_u32 v{T}, v{T+1}, 6, v{T}")
    a.e(f"v_and_b32 v{T+1}, 1, v{vLANE}")
    a.e(f"v_lshl_add_u32 v{T}, v{T+1}, 5, v{T}")
    a.e(f"v_bfe_u32 v{T+1}, v{vLANE}, 1, 1")
    a.e(f"v_lshl_add_u32 v{T}, v{T+1}, 4, v{T}")
    a.e(f"v_bfe_u32 v{T+1}, v{vLANE}, 4, 1")
    a.e(f"v_lshl_add_u32 v{T}, v{T+1}, 3, v{T}")
    a.e(f"s_lshl_b32 s{sT0}, s{sQ}, 14")
    a.e(f"s_lshl_b32 s{sT1}, s{sTt}, 10")
    a.e(f"s_add_u32 s{sT0}, s{sT0}, s{sT1}")
    a.e(f"v_add_u32 v{vA0}, s{sT0}, v{T}")
    a.e(f"v_xor_b32 v{vA1}, 1024, v{vA0}")
    def rd(j):
        for sg in range(2):
            for t in range(2):
                a.e(f"ds_read_b64_tr_b16 {vr(vJx + (j%2)*8 + 4*sg + 2*t, 2)}, v{[vA0, vA1][sg]} offset:{j*2048 + 256*t}", tag=("xa", j))
    a.wait(vm="al")
    a.e("s_barrier")
    Cfg.s0()
    vm0 = list(a.vm)
    rd(0); rd(1)
    for r in (vX9 + 1, vX9 + 2, vX9 + 3, vX9 + 5, vX9 + 6, vX9 + 7, vJE + 33, vJE + 34, vJE + 35):
        a.e(f"v_mov_b32 v{r}, 0")
    a.e(f"v_lshlrev_b32 v{T}, 2, v{vSel}")
    a.e(f"v_and_b32 v{T}, 0x80000000, v{T}")
    for i in range(4): a.e(f"v_or_b32 v{vSelS+i}, v{T}, v{vSel}")
    a.e(f"s_xor_b32 s{sT0}, s{sR}, s{sCb}")
    a.e(f"s_bitcmp1_b32 s{sT0}, 0")
    a.e("s_cbranch_scc1 L_jaY")
    lg = list(a.lg)
    z = vr(vJz, 4)
    for ver in "XY":
        if ver == "Y":
            a.e("L_jaY:"); a.lg = list(lg)
        for sg in range(2):
            a.e(f"v_mfma_f32_32x32x16_bf16 {vr(vJacc+16*sg,16)}, {vr(vX9+4*sg,4)}, {vr(vJC+32,4)}, 0")
        if ver == "X": a.e(f"v_mfma_f32_16x16x32_bf16 {z}, {vr(vJE+32,4)}, {vr(vJC+32,4)}, 0")
        else:          a.e(f"v_mfma_f32_16x16x32_bf16 {z}, {vr(vSelS,4)}, {vr(vX9,4)}, 0")
        for j in range(8):
            a.wait(lg=("xa", j))
            x = vJx + (j % 2) * 8
            for sg in range(2):
                a.e(f"v_mfma_f32_32x32x16_bf16 {vr(vJacc+16*sg,16)}, {vr(x+4*sg,4)}, {vr(vJC+4*j,4)}, {vr(vJacc+16*sg,16)}")
            if ver == "X": a.e(f"v_mfma_f32_16x16x32_bf16 {z}, {vr(vJE+4*j,4)}, {vr(vJC+4*j,4)}, {z}")
            else:          a.e(f"v_mfma_f32_16x16x32_bf16 {z}, {vr(vSelS,4)}, {vr(x,4)}, {z}")
            if j + 2 < 8: rd(j + 2)
        a.e(f"v_and_b32 v{T}, 31, v{vLANE}")
        a.e(f"v_lshrrev_b32 v{T+1}, 5, v{vLANE}")
        if ver == "X":
            a.e(f"s_cmp_ge_u32 s{sCb}, 2")
            a.e("s_cbranch_scc1 L_jaC")
            a.e(f"v_lshlrev_b32 v{T+3}, 4, v{T+1}")
            a.e(f"v_lshl_add_u32 v{T+2}, v{T}, 6, v{T+3}")
            a.e(f"s_lshr_b32 s{sT0}, s{sArr}, 1")
            a.e(f"s_lshl_b32 s{sT0}, s{sT0}, 16")
            a.e(f"s_lshl2_add_u32 s{sT0}, s{sQ}, s{sT0}")
            a.e(f"s_add_u32 s{sT0}, s{sT0}, {hex(WS_ZC)}")
            a.e(f"s_lshl_b32 s{sT1}, s{sTrow}, 5")
            a.e(f"s_add_u32 s{sT1}, s{sT1}, s{sT0}")
            def zsum():
                a.e(f"v_add_f32 v{vJz}, v{vJz}, v{vJz+1}")
                a.e(f"v_add_f32 v{vJz+2}, v{vJz+2}, v{vJz+3}")
                a.e(f"v_add_f32 v{T+4}, v{vJz}, v{vJz+2}")
            zsum()
            a.e(f"buffer_store_dword v{T+4}, v{T+2}, {sr(sWS,4)}, s{sT1} offen sc1")
            a.e(f"s_or_b32 s{sT1}, s{sH}, s{sTrow}")
            a.e(f"s_cmp_lg_u32 s{sT1}, 0")
            a.e("s_cbranch_scc1 L_jaC")
            for i in range(4): a.e(f"v_mov_b32 v{vSelS+i}, 0xbf803f80")
            for j in range(9):
                a.e(f"v_mfma_f32_16x16x32_bf16 {z}, {vr(vJE+4*j,4)}, {vr(vSelS,4)}, {z if j else 0}")
            a.e(f"s_add_u32 s{sT1}, s{sT0}, {1024*32}")
            zsum()
            a.e(f"buffer_store_dword v{T+4}, v{T+3}, {sr(sWS,4)}, s{sT1} offen sc1")
            a.e("s_branch L_jaC")
        else:
            a.e(f"s_lshr_b32 s{sT0}, s{sR}, 1")
            a.e(f"s_or_b32 s{sT0}, s{sT0}, s{sArr}")
            a.e(f"s_cmp_lg_u32 s{sT0}, 0")
            a.e("s_cbranch_scc1 L_jaC")
            a.e(f"v_lshrrev_b32 v{T+2}, 4, v{T}")
            a.e(f"v_mul_u32_u24 v{T+2}, {hex(UVSTR)}, v{T+2}")
            a.e(f"v_bfe_u32 v{T+3}, v{T}, 2, 1")
            a.e(f"v_lshl_add_u32 v{T+2}, v{T+3}, 9, v{T+2}")
            a.e(f"v_bfe_u32 v{T+3}, v{T}, 3, 1")
            a.e(f"v_lshl_add_u32 v{T+2}, v{T+3}, 3, v{T+2}")
            a.e(f"v_and_b32 v{T+3}, 3, v{T}")
            a.e(f"v_lshl_add_u32 v{T+2}, v{T+3}, 1, v{T+2}")
            a.e(f"v_lshl_or_b32 v{T+2}, v{T+1}, 30, v{T+2}")
            a.e(f"s_lshl1_add_u32 s{sT0}, s{sCb}, s{sTt}")
            a.e(f"s_lshl_b32 s{sT0}, s{sT0}, 10")
            a.e(f"s_and_b32 s{sT1}, s{sQ}, 1")
            a.e(f"s_lshl_b32 s{sT1}, s{sT1}, 8")
            a.e(f"s_add_u32 s{sT0}, s{sT0}, s{sT1}")
            a.e(f"s_lshr_b32 s{sT1}, s{sQ}, 1")
            a.e(f"s_lshl4_add_u32 s{sT0}, s{sT1}, s{sT0}")
            a.e(f"s_add_u32 s{sT0}, s{sT0}, {hex(WS_UV + 32*16384)}")
            a.e(f"v_cvt_pk_bf16_f32 v{T+4}, v{vJz}, v{vJz}")
            a.e(f"buffer_store_short v{T+4}, v{T+2}, {sr(sWS,4)}, s{sT0} offen sc1")
    a.e("L_jaC:")
    a.vm = vm0
    Cfg.s0()
    a.e("s_barrier")
    a.e(f"s_lshl_b32 s{sT0}, s{sWAVE}, 13")
    a.e(f"v_add_u32 v{T+2}, s{sT0}, v{vL16}")
    a.e("s_nop 7")
    for c in range(8):
        a.e(f"ds_write_b128 v{T+2}, {vr(vJacc+4*c,4)} offset:{c*1024}")
    a.e(f"s_lshl_b32 s{sT0}, s{sTt}, 15")
    a.e(f"s_lshl_b32 s{sT1}, s{sQ}, 11")
    a.e(f"s_add_u32 s{sT0}, s{sT0}, s{sT1}")
    a.e(f"v_add_u32 v{T+2}, s{sT0}, v{vL16}")
    a.e(f"v_lshrrev_b32 v{T+3}, 4, v{T}")
    a.e(f"v_lshlrev_b32 v{T+3}, 14, v{T+3}")
    a.e(f"v_lshl_add_u32 v{T+3}, v{T+1}, 9, v{T+3}")
    a.e(f"v_and_b32 v{T}, 15, v{T}")
    a.e(f"v_lshl_add_u32 v{T+3}, v{T}, 4, v{T+3}")
    a.e(f"s_and_b32 s{sT0}, s{sArr}, 2")
    a.e(f"s_and_b32 s{sT1}, s{sQ}, 1")
    a.e(f"s_add_u32 s{sT0}, s{sT0}, s{sT1}")
    a.e(f"s_mul_i32 s{sT0}, s{sT0}, {hex(UVSTR)}")
    a.e(f"s_lshr_b32 s{sT1}, s{sTrow}, 6")
    a.e(f"s_lshl_b32 s{sT1}, s{sT1}, 15")
    a.e(f"s_add_u32 s{sT0}, s{sT0}, s{sT1}")
    a.e(f"s_lshr_b32 s{sT1}, s{sQ}, 1")
    a.e(f"s_xor_b32 s{sT1}, s{sT1}, s{sTt}")
    a.e(f"s_lshl1_add_u32 s{sT1}, s{sCb}, s{sT1}")
    a.e(f"s_lshl_b32 s{sT1}, s{sT1}, 10")
    a.e(f"s_add_u32 s{sT0}, s{sT0}, s{sT1}")
    a.e(f"s_and_b32 s{sT1}, s{sArr}, 1")
    a.e(f"s_lshl_b32 s{sT1}, s{sT1}, 8")
    a.e(f"s_add_u32 s{sT0}, s{sT0}, s{sT1}")
    a.e(f"s_add_u32 s{sT0}, s{sT0}, {hex(WS_UV)}")
    a.e("s_waitcnt lgkmcnt(0)")
    a.e("s_barrier")
    for w in range(4):
        for c in range(2):
            a.e(f"ds_read_b128 {vr(vJC+8*w+4*c,4)}, v{T+2} offset:{w*8192 + c*1024}", tag=("ra", w))
    for w in range(1, 4):
        a.wait(lg=("ra", w))
        for i in range(8): a.e(f"v_add_f32 v{vJC+i}, v{vJC+i}, v{vJC+8*w+i}")
    pack(a, vJC + 8, vJC, 4)
    a.e(f"buffer_store_dwordx4 {vr(vJC+8,4)}, v{T+3}, {sr(sWS,4)}, s{sT0} offen sc1", tag="uv")

def poll256_issue(a, off, reg):
    if isinstance(off, tuple):
        a.e(f"buffer_load_dwordx4 {vr(reg,4)}, v{off[0]}, {sr(sWS,4)}, s{off[1]} offen sc1", tag="poll")
        return
    a.e(f"s_mov_b32 s{sT0}, {hex(off)}")
    a.e(f"buffer_load_dwordx4 {vr(reg,4)}, v{vL16}, {sr(sWS,4)}, s{sT0} offen sc1", tag="poll")
def poll256_check(a, off, reg, lbl, slp=8):
    a.e(f"s_mov_b32 s{sSpin}, 0")
    a.e(f"{lbl}_spin:")
    a.e(f"v_xor_b32 v{reg}, s{sTAG}, v{reg}")
    a.e(f"v_xor_b32 v{reg+1}, s{sTAG}, v{reg+1}")
    a.e(f"v_xor_b32 v{reg+2}, s{sTAG}, v{reg+2}")
    a.e(f"v_xor_b32 v{reg+3}, s{sTAG}, v{reg+3}")
    a.e(f"v_or3_b32 v{reg}, v{reg}, v{reg+1}, v{reg+2}")
    a.e(f"v_or_b32 v{reg}, v{reg}, v{reg+3}")
    a.e(f"v_cmp_ne_u32 vcc, 0, v{reg}")
    a.e(f"s_cmp_eq_u64 vcc, 0")
    a.e(f"s_cbranch_scc1 {lbl}_ok")
    vm = list(a.vm)
    a.e(f"s_sleep {slp}")
    poll256_issue(a, off, reg)
    a.e("s_waitcnt vmcnt(0)")
    a.e(f"s_add_u32 s{sSpin}, s{sSpin}, 1")
    a.e(f"s_cmp_lt_u32 s{sSpin}, 0x40000")
    a.e(f"s_cbranch_scc1 {lbl}_spin")
    a.e(f"{lbl}_ok:")
    a.vm = vm

def rd_k(a, t):
    for f in range(2):
        a.e(f"ds_read_b128 {vr(vK+4*f,4)}, v{vKVa} offset:{t*12288 + f*1024}", tag="K")
def rd_v(a, t, f):
    a.e(f"ds_read_b128 {vr(vV+4*f,4)}, v{vKVa2} offset:{t*12288 + (2+f)*1024}", tag=f"V{f+1}")
vKVa2 = 20

def att_body(a, par, hooks, last=False):
    S = vS[par]; N = vS[1 - par]
    def ex(*idx):
        for i in idx: a.e(f"v_exp_f32 v{S+i}, v{S+i}")
    def cv(j): a.e(f"v_cvt_pk_bf16_f32 v{vP+j}, v{S+2*j}, v{S+2*j+1}")
    def hk(p):
        for f in hooks.get(p, []): f()
    S1 = lambda: last or a.e(f"v_mfma_f32_32x32x16_bf16 {vr(N,16)}, {vr(vK,4)}, {vr(vQ,4)}, {vr(vM,16)}")
    S2 = lambda: last or a.e(f"v_mfma_f32_32x32x16_bf16 {vr(N,16)}, {vr(vK+4,4)}, {vr(vQ+4,4)}, {vr(N,16)}")
    PV = lambda f: a.e(f"v_mfma_f32_32x32x16_bf16 {vr(vO,16)}, {vr(vV+4*f,4)}, {vr(vP+4*f,4)}, {vr(vO,16)}")
    LS = lambda f: a.e(f"v_mfma_f32_16x16x32_bf16 {vr(vLs,4)}, {vr(vSel,4)}, {vr(vP+4*f,4)}, {vr(vLs,4)}")
    if "b2" in Cfg.x:
        a.wait(lg=["K", "V2"])
        S1(); ex(0, 1); hk(1); ex(2, 3); cv(0); cv(1)
        PV(1); ex(4, 5); LS(1); ex(6, 7); cv(2); cv(3)
        S2(); hk(2); ex(8, 9, 10, 11); cv(4); cv(5)
        a.wait(lg="V1")
        PV(0); ex(12, 13); hk(3); LS(0); hk(4); ex(14, 15); cv(6); cv(7)
        return
    if "b3" in Cfg.x:
        a.wait(lg=["K", "V2"])
        S1(); ex(0, 1); hk(1); ex(2, 3); LS(1); cv(0); cv(1); ex(4)
        PV(1); ex(5, 6, 7); cv(2); cv(3)
        S2(); hk(2); ex(8, 9, 10, 11); LS(0); cv(4); cv(5); ex(12)
        a.wait(lg="V1")
        PV(0); hk(3); ex(13); hk(4); ex(14, 15); cv(6); cv(7)
        return
    a.wait(lg=["K", "V2"])
    if not last: a.e(f"v_mfma_f32_32x32x16_bf16 {vr(N,16)}, {vr(vK,4)}, {vr(vQ,4)}, {vr(vM,16)}")
    ex(0, 1)
    hk(1)
    a.e(f"v_mfma_f32_32x32x16_bf16 {vr(vO,16)}, {vr(vV+4,4)}, {vr(vP+4,4)}, {vr(vO,16)}")
    ex(2, 3)
    a.e(f"v_mfma_f32_16x16x32_bf16 {vr(vLs,4)}, {vr(vSel,4)}, {vr(vP+4,4)}, {vr(vLs,4)}")
    ex(4, 5); cv(0); cv(1)
    if not last: a.e(f"v_mfma_f32_32x32x16_bf16 {vr(N,16)}, {vr(vK+4,4)}, {vr(vQ+4,4)}, {vr(N,16)}")
    hk(2)
    ex(6, 7); cv(2); ex(8); cv(3); ex(9, 10)
    a.wait(lg="V1")
    a.e(f"v_mfma_f32_32x32x16_bf16 {vr(vO,16)}, {vr(vV,4)}, {vr(vP,4)}, {vr(vO,16)}")
    ex(11, 12)
    hk(3)
    a.e(f"v_mfma_f32_16x16x32_bf16 {vr(vLs,4)}, {vr(vSel,4)}, {vr(vP,4)}, {vr(vLs,4)}")
    hk(4)
    ex(13, 14); cv(4); ex(15); cv(5); cv(6); cv(7)

def kv_dma(a, q):
    a.e(f"buffer_load_dwordx4 v{vL16}, {sr(sWS,4)}, s{sKVsrc} offen offset:{q*1024} sc1 lds", tag="kv")

def kv_dma_setup(a):
    a.e(f"s_add_u32 s{sT0}, s{sKVsrc}, {8*4096}")
    a.e(f"s_and_b32 s{sT0}, s{sT0}, 0x3ffff")
    a.e(f"s_andn2_b32 s{sKVsrc}, s{sKVsrc}, 0x3ffff")
    a.e(f"s_or_b32 s{sKVsrc}, s{sKVsrc}, s{sT0}")
    a.e(f"s_add_u32 s{sSlot}, s{sSlot}, 4096")
    a.e(f"s_cmp_eq_u32 s{sSlot}, {3*4096}")
    a.e(f"s_cselect_b32 s{sSlot}, 0, s{sSlot}")
    a.e(f"s_add_u32 m0, s{sXl}, s{sSlot}")

def attention(a, st):
    a.e(f"s_mov_b32 s{sKVsrc}, s{sKVo}")
    a.e(f"s_mov_b32 s{sSlot}, 0")
    a.e(f"s_mov_b32 s{sKVl}, 65536")
    def adv_k(second_half_next):
        if second_half_next:
            a.e(f"v_add_u32 v{vKVa}, 49152, v{vKVa}")
        else:
            a.e(f"s_add_u32 s{sKVl}, s{sKVl}, 4096")
            a.e(f"s_cmp_eq_u32 s{sKVl}, {65536+3*4096}")
            a.e(f"s_cselect_b32 s{sKVl}, 65536, s{sKVl}")
            a.e(f"v_add_u32 v{vKVa}, s{sKVl}, v{vL16}")
    def group(g, extra):
        for t in range(8):
            h = {1: [], 2: [], 3: [], 4: []}
            tk = (t + 2) % 4
            last = g == 7 and t >= 6
            for f in extra.get((t, 0), []): f()
            if tk == 0 and not last:
                if t == 6:
                    h[2].append(lambda: (a.wait(vm=[("kv", g + 1)] + (["uv"] if g == 1 else [])), a.e("s_barrier")))
                h[2].append(lambda t=t: adv_k(t == 2))
            if not last: h[2].append(lambda tk=tk: rd_k(a, tk))
            h[2].append(lambda t=t: rd_v(a, t % 4, 1))
            if not (g == 7 and t == 7):
                if (t + 1) % 4 == 0:
                    h[4].append(lambda: a.e(f"v_mov_b32 v{vKVa2}, v{vKVa}"))
                h[4].append(lambda t=t: rd_v(a, (t + 1) % 4, 0))
            for p in (1, 2, 3, 4):
                h[p] += extra.get((t, p), [])
            att_body(a, t % 2, h, g == 7 and t == 7)
    def flag_store():
        a.wait(vm="kvst")
        a.e(f"v_mov_b32 v{vT}, s{sTAG}")
        a.e(f"s_lshl_b32 s{sT0}, s{sTt}, 30")
        a.e(f"v_lshl_or_b32 v{vT+1}, v{vL16}, 5, s{sT0}")
        a.e("s_mov_b64 exec, 3")
        a.e(f"buffer_store_dword v{vT}, v{vT+1}, {sr(sWS,4)}, s{sT3} offen sc1")
        a.e("s_mov_b64 exec, -1")
    def poll_issue():
        a.e(f"v_and_b32 v{vT+4}, 7, v{vLANE}")
        a.e(f"v_lshlrev_b32 v{vT+4}, 2, v{vT+4}")
        a.e(f"buffer_load_dword v{vT+5}, v{vT+4}, {sr(sWS,4)}, s{sF1o} offen sc1", tag="kpoll")
    def poll_check():
        a.e(f"s_mov_b32 s{sSpin}, 0")
        a.wait(vm="kpoll")
        vm = list(a.vm)
        a.e("L_kvspin:")
        a.e(f"v_cmp_eq_u32 vcc, s{sTAG}, v{vT+5}")
        a.e("s_cmp_eq_u64 vcc, -1")
        a.e("s_cbranch_scc1 L_kvok")
        a.e(f"buffer_load_dword v{vT+5}, v{vT+4}, {sr(sWS,4)}, s{sF1o} offen sc1")
        a.e("s_waitcnt vmcnt(0)")
        a.e(f"s_add_u32 s{sSpin}, s{sSpin}, 1")
        a.e(f"s_cmp_lt_u32 s{sSpin}, 0x40000")
        a.e("s_cbranch_scc1 L_kvspin")
        a.e("L_kvok:")
        a.vm = vm
    def dma(g, q):
        if q == 0: kv_dma_setup(a)
        kv_dma(a, q); a.vm[-1] = ("kv", g)
    def chk(off, lbl):
        a.wait(vm="poll"); poll256_check(a, off, vJx, lbl)
    EX = [dict() for _ in range(8)]
    def at(g, t, p, f, *x): EX[g].setdefault((t, p), []).append(lambda: f(*x))
    def spread(items, n0, per=2):
        for i, (f, *x) in enumerate(items):
            n = n0 + i // per
            at(n // 8, n % 8, {1: [1], 2: [1, 3], 4: [1, 2, 3, 4]}[per][i % per], f, *x)
    steps = a_loads()
    s0 = st if "g0" in Cfg.x else (lambda: None)
    Cfg.s0 = s0
    at(0, 1, 1, s0); at(0, 1, 1, flag_store); at(0, 1, 1, s0); at(0, 1, 1, chk, FL_0, "L_pf0"); at(0, 1, 1, s0); at(0, 4, 3, s0); at(0, 6, 0, s0); at(0, 1, 1, wf_stores, a); at(0, 1, 1, steps[0], a)
    for i in range(8): at(0, 1 + (i + 1) // 4, 1 + (i + 1) % 4, steps[1 + i], a)
    at(0, 3, 1, poll_issue); at(0, 3, 1, steps[9], a)
    for i in range(9): at(0, 3 + (i // 2 + 1) // 4, 1 + (i // 2 + 1) % 4, steps[10 + i], a)
    at(0, 4, 3, poll_check); at(0, 4, 3, st)
    for q in range(4): at(0, 4, 3, dma, 1, q)
    for q in range(4): at(0, 5, 1 + q, dma, 2, q)
    at(0, 6, 0, job_a, a); at(0, 6, 0, s0); at(0, 6, 3, s0)
    for g in range(1, 6):
        for q, (t, p) in enumerate([(6, 3), (6, 4), (7, 1), (7, 3)]): at(g, t, p, dma, g + 2, q)
    at(1, 0, 1, b_setup, a)
    spread([(df_load, a, j) for j in range(8)], 16, 1)
    spread([(wf_load, a, n) for n in range(28, 32)], 36, 2)
    at(1, 6, 3, flag_wg, a, FL_A, "L_fa")
    at(3, 5, 1, poll256_issue, a, FL_A, vJx)
    at(4, 0, 1, chk, FL_A, "L_pa"); at(4, 0, 1, uv_setup, a)
    spread([(uv_load, a, j) for j in range(8)], 32, 2)
    at(4, 4, 1, uv_extra, a)
    spread([(b_mfma, a, j) for j in range(8)], 40, 2)
    at(5, 4, 1, b_extra, a); at(5, 5, 1, b_write, a)
    spread([(wf_load, a, n) for n in range(0, 4)], 44, 2)
    spread([(wf_load, a, n) for n in range(4, 28)], 48, 2)
    for g in range(8):
        group(g, EX[g])
        if g == 0 or (g < 7 and 'gs' in Cfg.x and 'g0' not in Cfg.x): st()
    a.wait(lg="V2")
    a.e(f"v_mfma_f32_32x32x16_bf16 {vr(vO,16)}, {vr(vV+4,4)}, {vr(vP+4,4)}, {vr(vO,16)}")
    a.e(f"v_mfma_f32_16x16x32_bf16 {vr(vLs,4)}, {vr(vSel,4)}, {vr(vP+4,4)}, {vr(vLs,4)}")
    st()
    o_store(a)
    a.e(f"v_mfma_f32_16x16x32_bf16 {vr(vS[0],4)}, {vr(vSel,4)}, {vr(vP,4)}, 0")
    a.e(f"v_mfma_f32_16x16x32_bf16 {vr(vS[0],4)}, {vr(vSel,4)}, {vr(vP+4,4)}, {vr(vS[0],4)}")
    a.e(f"s_mov_b32 s{sT2}, {hex(f2u(2.0**(-30 if 'fb' in Cfg.x else 100)))}")
    a.e(f"v_cmp_nge_f32_e64 {sr(sT0,2)}, s{sT2}, v{vLs}")
    a.e(f"v_mov_b32 v{vT}, 0x207")
    a.e(f"v_cmp_class_f32 vcc, v{vS[0]}, v{vT}")
    a.e(f"s_or_b64 vcc, vcc, {sr(sT0,2)}")
    a.e("s_cbranch_scc1 L_fb")
    a.e("L_fbret:")
def o_store(a):
    a.e(f"v_rcp_f32 v{vT}, v{vLs}")
    for i in range(16): a.e(f"v_mul_f32 v{vO+i}, v{vT}, v{vO+i}")
    pack(a, vP, vO, 8)
    for f in range(2):
        a.e(f"buffer_store_dwordx4 {vr(vP+4*f,4)}, v{vL16}, {sr(sWS,4)}, s{sOFo} offen offset:{f*1024} sc1", tag="ost")
def fallback(a):
    S = vS[0]
    a.e("L_fb:")
    a.e("s_waitcnt vmcnt(0) lgkmcnt(0)")
    a.e(f"s_lshl_b32 s{sT0}, s{sH}, 18")
    a.e(f"s_add_u32 s{sT1}, s{sT0}, {hex(1 << 18)}")
    a.e(f"v_mov_b32 v{vT}, 0xff800000")
    a.e("L_fb1:")
    for f in range(2):
        a.e(f"buffer_load_dwordx4 {vr(vK+4*f,4)}, v{vL16}, {sr(sWS,4)}, s{sT0} offen offset:{f*1024} sc1")
    a.e("s_waitcnt vmcnt(0)")
    a.e(f"v_mfma_f32_32x32x16_bf16 {vr(S,16)}, {vr(vK,4)}, {vr(vQ,4)}, 0")
    a.e(f"v_mfma_f32_32x32x16_bf16 {vr(S,16)}, {vr(vK+4,4)}, {vr(vQ+4,4)}, {vr(S,16)}")
    for i in range(0, 16, 2):
        a.e(f"v_max3_f32 v{vT}, v{vT}, v{S+i}, v{S+i+1}")
    a.e(f"s_add_u32 s{sT0}, s{sT0}, 4096")
    a.e(f"s_cmp_lt_u32 s{sT0}, s{sT1}")
    a.e("s_cbranch_scc1 L_fb1")
    a.e(f"v_mov_b32 v{vT+1}, v{vT}")
    a.e(f"v_permlane32_swap_b32 v{vT}, v{vT+1}")
    a.e(f"v_max_f32 v{vT}, v{vT}, v{vT+1}")
    for i in range(16): a.e(f"v_sub_f32 v{vM+i}, 0, v{vT}")
    for i in range(16): a.e(f"v_mov_b32 v{vO+i}, 0")
    for i in range(4): a.e(f"v_mov_b32 v{vLs+i}, 0")
    a.e(f"s_lshl_b32 s{sT0}, s{sH}, 18")
    a.e("L_fb2:")
    for f in range(4):
        a.e(f"buffer_load_dwordx4 {vr(vK+4*f,4)}, v{vL16}, {sr(sWS,4)}, s{sT0} offen offset:{f*1024} sc1")
    a.e("s_waitcnt vmcnt(0)")
    a.e(f"v_mfma_f32_32x32x16_bf16 {vr(S,16)}, {vr(vK,4)}, {vr(vQ,4)}, {vr(vM,16)}")
    a.e(f"v_mfma_f32_32x32x16_bf16 {vr(S,16)}, {vr(vK+4,4)}, {vr(vQ+4,4)}, {vr(S,16)}")
    for i in range(16): a.e(f"v_exp_f32 v{S+i}, v{S+i}")
    pack(a, vP, S, 8)
    for f in range(2):
        a.e(f"v_mfma_f32_32x32x16_bf16 {vr(vO,16)}, {vr(vV+4*f,4)}, {vr(vP+4*f,4)}, {vr(vO,16)}")
        a.e(f"v_mfma_f32_16x16x32_bf16 {vr(vLs,4)}, {vr(vSel,4)}, {vr(vP+4*f,4)}, {vr(vLs,4)}")
    a.e(f"s_add_u32 s{sT0}, s{sT0}, 4096")
    a.e(f"s_cmp_lt_u32 s{sT0}, s{sT1}")
    a.e("s_nop 15")
    a.e("s_cbranch_scc1 L_fb2")
    o_store(a)
    a.e("s_branch L_fbret")

sTB, sWFo = sJ + 11, sJ + 12
vBD, vBU, vBacc, vBR = 136, 168, 200, 216
TS = 4352
sDo, sUo, vUa = sJ + 6, sJ + 8, 22
def b_setup(a):
    a.e(f"s_and_b32 s{sT0}, s2, 7")
    a.e(f"s_bfe_u32 s{sT1}, s2, 0x20003")
    a.e(f"s_lshl2_add_u32 s{sTB}, s{sT0}, s{sT1}")
    a.e(f"s_lshr_b32 s{sT0}, s{sWAVE}, 1")
    a.e(f"s_lshl3_add_u32 s{sT0}, s{sT0}, s{sCb}")
    a.e(f"s_and_b32 s{sT1}, s{sWAVE}, 1")
    a.e(f"s_lshl1_add_u32 s{sT0}, s{sT0}, s{sT1}")
    a.e(f"s_lshl_b32 s{sT0}, s{sT0}, 13")
    a.e(f"s_add_u32 s{sDo}, s{sT0}, {hex(WS_DF)}")
    a.e(f"s_add_u32 s{sDo+1}, s{sDo}, 4096")
    a.e(f"s_lshl2_add_u32 s{sT0}, s{sCb}, s{sQ}")
    a.e(f"s_lshl1_add_u32 s{sT0}, s{sT0}, s{sTt}")
    a.e(f"s_lshl_b32 s{sT0}, s{sT0}, 15")
    a.e(f"s_add_u32 s{sWFo}, s{sT0}, {hex(WS_WF)}")
    a.e(f"s_lshr_b32 s{sT0}, s{sWAVE}, 1")
    a.e(f"s_mul_i32 s{sT0}, s{sT0}, {hex(UVSTR)}")
    a.e(f"s_lshl1_add_u32 s{sT1}, s{sTB}, s{sT1}")
    a.e(f"s_lshl_b32 s{sT1}, s{sT1}, 13")
    a.e(f"s_add_u32 s{sT0}, s{sT0}, s{sT1}")
    a.e(f"s_add_u32 s{sUo}, s{sT0}, {hex(WS_UV)}")
    a.e(f"s_add_u32 s{sUo+1}, s{sUo}, 4096")
def df_load(a, j):
    a.e(f"buffer_load_dwordx4 {vr(vBD+4*j,4)}, v{vL16}, {sr(sWS,4)}, s{sDo+j//4} offen offset:{1024*(j%4)} sc1", tag="df")
def uv_setup(a):
    T = vT
    a.e(f"v_lshrrev_b32 v{T}, 5, v{vLANE}")
    a.e(f"v_lshlrev_b32 v{T}, 9, v{T}")
    a.e(f"v_and_b32 v{T+1}, 1, v{vLANE}")
    a.e(f"v_lshl_add_u32 v{T}, v{T+1}, 8, v{T}")
    a.e(f"v_bfe_u32 v{T+1}, v{vLANE}, 1, 4")
    a.e(f"v_lshl_add_u32 v{vUa}, v{T+1}, 4, v{T}")
def uv_load(a, j):
    a.e(f"buffer_load_dwordx4 {vr(vBU+4*j,4)}, v{vUa}, {sr(sWS,4)}, s{sUo+j//4} offen offset:{1024*(j%4)} sc1", tag=("u", j))
def uv_extra(a):
    vm = list(a.vm)
    a.e(f"s_or_b32 s{sT2}, s{sTB}, s{sTt}")
    a.e("s_cbranch_scc1 L_j5e")
    a.e(f"s_add_u32 s{sT0}, s{sUo}, {32*16384}")
    a.e(f"s_add_u32 s{sT1}, s{sUo+1}, {32*16384}")
    for j in range(8):
        a.e(f"buffer_load_dwordx4 {vr(vBR+4*j,4)}, v{vUa}, {sr(sWS,4)}, s{sT0+j//4} offen offset:{1024*(j%4)} sc1")
    a.e("L_j5e:")
    a.vm = vm
def wfreg(n): return 136 + 4 * n if n < 30 else 24 + 4 * (n - 30)
def wf_load(a, n):
    if n % 4 == 0: a.e(f"s_add_u32 s{sJ+10}, s{sWFo}, {(n//4)*4096}")
    a.e(f"buffer_load_dwordx4 {vr(wfreg(n),4)}, v{vL16}, {sr(sWS,4)}, s{sJ+10} offen offset:{1024*(n%4)} sc1")
def tile_waddr(a, dst, T):
    a.e(f"v_lshrrev_b32 v{T}, 5, v{vLANE}")
    a.e(f"v_lshl_add_u32 v{dst}, v{T}, 5, v{vL16}")
def b_mfma(a, j):
    a.wait(vm=["df", ("u", j)])
    a.e(f"v_mfma_f32_32x32x16_bf16 {vr(vBacc,16)}, {vr(vBD+4*j,4)}, {vr(vBU+4*j,4)}, {vr(vBacc,16) if j else 0}")
def b_extra(a):
    tile_waddr(a, vUa, vT + 1)
    a.e(f"s_mul_i32 s{sT0}, s{sWAVE}, {TS}")
    a.e(f"v_add_u32 v{vUa}, s{sT0}, v{vUa}")
    vm = list(a.vm); lg = list(a.lg)
    a.e(f"s_or_b32 s{sT2}, s{sTB}, s{sTt}")
    a.e("s_cbranch_scc1 L_j6b")
    a.e("s_waitcnt vmcnt(0)")
    for j in range(8):
        a.e(f"v_mfma_f32_32x32x16_bf16 {vr(vBU,16)}, {vr(vBD+4*j,4)}, {vr(vBR+4*j,4)}, {vr(vBU,16) if j else 0}")
    for q in range(4):
        a.e(f"ds_write_b128 v{vUa}, {vr(vBU+4*q,4)} offset:{8*TS + q*1088}")
    a.e("s_waitcnt lgkmcnt(0)")
    a.e("L_j6b:")
    a.vm = vm; a.lg = lg
def b_write(a):
    for q in range(4):
        a.e(f"ds_write_b128 v{vUa}, {vr(vBacc+4*q,4)} offset:{q*1088}", tag="bw")

vAcc, vGY, vOmg, vFr = 32, 64, 80, 88
vOd0, vOd1, vFl, vRa, vRow, vSt = 81, 82, 83, 84, 85, 86
def rbf(a, r):
    a.e(f"v_cvt_pk_bf16_f32 v{r}, v{r}, v{r}")
    a.e(f"v_and_b32 v{r}, 0xffff0000, v{r}")
def phase3(a, st):
    T = vT
    a.e(f"v_lshrrev_b32 v{T}, 3, v{vLANE}")
    a.e(f"s_lshl_b32 s{sT0}, s{sQ}, 3")
    a.e(f"v_add_u32 v{T}, s{sT0}, v{T}")
    a.e(f"v_and_b32 v{T+1}, 7, v{vLANE}")
    a.e(f"v_mul_u32_u24 v{vRa}, 544, v{T+1}")
    a.e(f"v_mov_b32 v{T+5}, v{vRa}")
    a.e(f"v_lshl_add_u32 v{vRa}, v{T}, 4, v{vRa}")
    for t in range(8):
        a.e(f"ds_read_b128 {vr(vFr+4*t,4)}, v{vRa} offset:{t*TS}", tag=("pm", t))
    a.e(f"s_lshl_b32 s{sT0}, s{sTB}, 5")
    a.e(f"v_add_u32 v{T}, s{sT0}, v{T}")
    a.e(f"v_sub_u32 v{T+2}, 2048, v{T}")
    a.e(f"v_cmp_eq_u32 vcc, 0, v{T}")
    a.e(f"v_mov_b32 v{T+3}, 1024")
    a.e(f"v_cndmask_b32 v{T+2}, v{T+2}, v{T+3}, vcc")
    a.e(f"v_cndmask_b32 v{T+3}, v{T}, v{T+3}, vcc")
    a.e(f"s_cmp_lg_u32 s{sTt}, 0")
    a.e(f"s_cselect_b64 vcc, -1, 0")
    a.e(f"v_cndmask_b32 v{vRow}, v{T}, v{T+2}, vcc")
    a.e(f"v_cndmask_b32 v{T+3}, v{T}, v{T+3}, vcc")
    a.e(f"v_lshlrev_b32 v{T+2}, 2, v{vRow}")
    a.e(f"v_lshlrev_b32 v{T+3}, 5, v{T+3}")
    a.e(f"v_lshlrev_b32 v{T}, 5, v{T}")
    a.e(f"s_mov_b32 s{sT0}, {hex(WS_GP)}")
    a.e(f"s_mov_b32 s{sT1}, {hex(WS_ZC)}")
    a.e(f"s_mov_b32 s{sT2}, {hex(WS_ZC+ZSTR)}")
    G, ZC, ZW, ZS = 32, 36, 40, 44
    a.e(f"buffer_load_dword v{G}, v{T+2}, {sr(sWS,4)}, s{sT0} offen sc1", tag="sm")
    a.e(f"buffer_load_dwordx4 {vr(ZC,4)}, v{T+3}, {sr(sWS,4)}, s{sT1} offen sc1", tag="sm")
    a.e(f"buffer_load_dwordx4 {vr(ZW,4)}, v{T+3}, {sr(sWS,4)}, s{sT1} offen offset:16 sc1", tag="sm")
    a.e(f"buffer_load_dwordx4 {vr(ZS,4)}, v{T}, {sr(sWS,4)}, s{sT2} offen sc1", tag="sm")
    a.e(f"s_lshl_b32 s{sT0}, s{sTB}, 16")
    a.e(f"v_add_u32 v{vOd0}, s{sT0}, v{vL16}")
    a.e(f"s_sub_u32 s{sT0}, 63, s{sTB}")
    a.e(f"s_sub_u32 s{sT1}, 64, s{sTB}")
    a.e(f"s_cmp_eq_u32 s{sTB}, 0")
    a.e(f"s_cselect_b32 s{sT1}, 32, s{sT1}")
    a.e(f"v_and_b32 v{T}, 31, v{vLANE}")
    a.e(f"v_cmp_eq_u32 vcc, 0, v{T}")
    a.e(f"v_mov_b32 v{T+2}, s{sT0}")
    a.e(f"v_mov_b32 v{T+3}, s{sT1}")
    a.e(f"v_cndmask_b32 v{T+2}, v{T+2}, v{T+3}, vcc")
    a.e(f"v_sub_u32 v{T}, 32, v{T}")
    a.e(f"v_and_b32 v{T}, 31, v{T}")
    a.e(f"v_and_b32 v{T+3}, 32, v{vLANE}")
    a.e(f"v_add_u32 v{T}, v{T}, v{T+3}")
    a.e(f"v_lshlrev_b32 v{T}, 4, v{T}")
    a.e(f"v_lshl_add_u32 v{vOd1}, v{T+2}, 16, v{T}")
    a.e(f"v_cmp_eq_u32 vcc, 0, v{T+3}")
    a.e(f"v_mov_b32 v{T}, s{sTB}")
    a.e(f"v_cndmask_b32 v{T+2}, v{T+2}, v{T}, vcc")
    a.e(f"v_lshlrev_b32 v{vFl}, 10, v{T+2}")
    for t in range(0, 8, 2):
        a.wait(lg=("pm", t + 1))
        for i in range(4): a.e(f"v_add_f32 v{vFr+4*t+i}, v{vFr+4*t+i}, v{vFr+4*t+4+i}")
    a.e(f"s_xor_b32 s{sT0}, s{sWAVE}, 4")
    a.e(f"s_or_b32 s{sT0}, s{sT0}, s{sTB}")
    a.e(f"s_cmp_lg_u32 s{sT0}, 0")
    a.e("s_cbranch_scc1 L_norow")
    a.e("s_mov_b64 exec, 0xff")
    for pe in range(2):
        for k in range(8):
            d = vFr + 8 * pe if k == 0 else 48
            a.e(f"ds_read_b128 {vr(d,4)}, v{T+5} offset:{(8+2*pe+k//4)*TS + (k%4)*16}")
            a.e("s_waitcnt lgkmcnt(0)")
            if k:
                for i in range(4): a.e(f"v_add_f32 v{vFr+8*pe+i}, v{vFr+8*pe+i}, v{48+i}")
    a.e("s_mov_b64 exec, -1")
    a.e("L_norow:")
    a.wait(vm="ost")
    a.e(f"s_sub_u32 s{sT0}, s{sOFo}, {hex(WS_OF)}")
    a.e(f"s_lshr_b32 s{sT0}, s{sT0}, 13")
    a.e(f"s_lshl_b32 s{sT0}, s{sT0}, 7")
    a.e(f"s_and_b32 s{sT1}, s{sH}, 3")
    a.e(f"s_lshl2_add_u32 s{sT0}, s{sT1}, s{sT0}")
    a.e(f"s_add_u32 s{sT0}, s{sT0}, {hex(FL_O)}")
    a.e(f"v_mov_b32 v{T+4}, s{sTAG}")
    a.e(f"buffer_store_dword v{T+4}, v{vLz}, {sr(sWS,4)}, s{sT0} offen sc1")
    st()
    a.e(f"s_lshl_b32 s{sJ+6}, s{sWAVE}, 7")
    a.e(f"s_add_u32 s{sJ+6}, s{sJ+6}, {hex(FL_O)}")
    a.e("s_mov_b32 exec_lo, 1"); a.e("s_mov_b32 exec_hi, 3")
    poll256_issue(a, (vFl, sJ + 6), 48)
    a.e("s_mov_b64 exec, -1")
    a.wait(vm="sm")
    for r in (ZC, ZW, ZS):
        a.e(f"v_add_f32 v{r}, v{r}, v{r+1}")
        a.e(f"v_add_f32 v{r+2}, v{r+2}, v{r+3}")
        a.e(f"v_add_f32 v{r}, v{r}, v{r+2}")
    rbf(a, G)
    a.e(f"v_mul_f32 v{G}, {hex(f2u(-math.log2(math.e)))}, v{G}")
    a.e(f"v_exp_f32 v{G}, v{G}")
    a.e(f"v_add_f32 v{ZW}, v{ZW}, v{ZC}")
    a.e(f"v_add_f32 v{G}, 1.0, v{G}")
    a.e(f"v_rcp_f32 v{G}, v{G}")
    for i in range(4):
        a.e(f"v_{'sub' if i % 2 else 'add'}_f32 v{vFr+i}, v{vFr+i}, v{ZC}")
        a.e(f"v_{'add' if i % 2 else 'sub'}_f32 v{vFr+24+i}, v{vFr+24+i}, v{ZS}")
    rbf(a, G)
    a.e(f"v_sub_f32 v{vOmg}, 1.0, v{G}")
    rbf(a, vOmg)
    a.e(f"s_cmp_lg_u32 s{sTt}, 0")
    a.e(f"s_cselect_b32 s{sT0}, 1.0, -1.0")
    for pe in range(2):
        for i in range(4):
            P, Q = vFr + 8 * pe + i, vFr + 16 + 8 * pe + i
            a.e(f"v_fma_f32 v{vGY+4*pe+i}, v{Q}, s{sT0}, v{P}")
            a.e(f"v_fma_f32 v{vGY+8+4*pe+i}, v{Q}, -s{sT0}, v{P}")
    a.e(f"v_or_b32 v{T}, s{sCb}, v{T+1}")
    a.e(f"v_cmp_eq_u32 vcc, 0, v{T}")
    a.e(f"v_cndmask_b32 v{vGY+8}, v{vGY+8}, v{ZW}, vcc")
    for i in range(16): a.e(f"v_mul_f32 v{vGY+i}, v{G}, v{vGY+i}")
    a.e(f"s_lshl_b32 s{sT0}, s{sCb}, 7")
    a.e(f"v_lshl_add_u32 v{T}, v{T+1}, 4, s{sT0}")
    a.e(f"v_lshlrev_b32 v{vRow}, 11, v{vRow}")
    a.e(f"v_add_u32 v{vSt}, v{vRow}, v{T}")
    a.e(f"v_sub_u32 v{T}, {2048-16}, v{T}")
    a.e(f"v_add_u32 v{vSt+1}, v{vRow}, v{T}")
    a.e(f"v_add_u32 v{vRow}, {1024-16}, v{vRow}")
    a.e(f"v_cndmask_b32 v{vRow}, v{vSt+1}, v{vRow}, vcc")
    a.e(f"s_lshl_b32 s{sT0}, s{sTt}, 14")
    a.e(f"v_add_u32 v{T}, s{sT0}, v{vL16}")
    a.e(f"v_add_u32 v{T+1}, 65536, v{T}")
    a.e("s_waitcnt vmcnt(0) lgkmcnt(0)")
    a.e("s_barrier")
    a.e("s_mov_b32 exec_lo, 1"); a.e("s_mov_b32 exec_hi, 3")
    poll256_check(a, (vFl, sJ + 6), 48, "L_po", slp=8 if "s8" in Cfg.x else 1)
    a.e("s_mov_b64 exec, -1")
    st()
    base = [65536, 98304, 0, 32768]
    a.e(f"s_lshl_b32 s{sT0}, s{sWAVE}, 12")
    a.e(f"s_lshl_b32 s{sT1}, s{sWAVE}, 13")
    a.e(f"s_add_u32 s{sT1}, s{sT1}, {hex(WS_OF)}")
    for j in range(4):
        for rs in range(2):
            a.e(f"s_add_u32 m0, s{sT0}, {base[j] + rs*2048}")
            for f in range(2):
                a.e(f"buffer_load_dwordx4 v{[vOd0, vOd1][rs]}, {sr(sWS,4)}, s{sT1} offen offset:{f*1024} sc1 lds", tag=("O", j))
        if j < 3: a.e(f"s_add_u32 s{sT1}, s{sT1}, 2048")
    D = 3
    def rd(n):
        j, k = divmod(n, 8)
        if k == 0:
            a.wait(vm=("O", j)); a.e("s_barrier")
        for rs in range(2):
            a.e(f"ds_read_b128 {vr(vFr + (n % 6)*8 + 4*rs, 4)}, v{T+1 if j < 2 else T} offset:{(j%2)*32768 + (k//2)*4096 + rs*2048 + (k%2)*1024}", tag=("o", n))
    for n in range(D): rd(n)
    for n in range(32):
        j, k = divmod(n, 8)
        a.wait(lg=("o", n))
        wf = wfreg(8 * (k // 2) + 2 * j + k % 2)
        for rs in range(2):
            acc = vr(vAcc + 16 * rs, 16)
            a.e(f"v_mfma_f32_32x32x16_bf16 {acc}, {vr(wf,4)}, {vr(vFr + (n%6)*8 + 4*rs, 4)}, {acc if n else 0}")
        if n + D < 32: rd(n + D)
        if n == 2 and 'gs' not in Cfg.x: st()
    if 'gs' not in Cfg.x: st()
    tile_waddr(a, T, T + 1)
    a.e(f"s_lshl1_add_u32 s{sT0}, s{sQ}, s{sTt}")
    a.e(f"s_mul_i32 s{sT0}, s{sT0}, {TS}")
    a.e(f"s_add_u32 s{sT0}, s{sT0}, 65536")
    a.e(f"v_add_u32 v{T}, s{sT0}, v{T}")
    a.e(f"s_mul_i32 s{sT0}, s{sTt}, {8*TS}")
    a.e(f"s_add_u32 s{sT0}, s{sT0}, 65536")
    a.e(f"v_add_u32 v{vRa}, s{sT0}, v{vRa}")
    for rs in range(2):
        for q in range(4):
            a.e(f"ds_write_b128 v{T}, {vr(vAcc+16*rs+4*q,4)} offset:{rs*8*TS + q*1088}")
    a.e("s_waitcnt lgkmcnt(0)")
    a.e("s_barrier")
    for t in range(8):
        a.e(f"ds_read_b128 {vr(vFr+4*t,4)}, v{vRa} offset:{t*TS}", tag=("fb", t))
    for c in range(4):
        a.wait(lg=("fb", 2 * c + 1))
        for i in range(4):
            a.e(f"v_add_f32 v{vFr+8*c+i}, v{vFr+8*c+i}, v{vFr+8*c+4+i}")
        for i in range(4):
            a.e(f"v_fma_f32 v{vGY+4*c+i}, v{vFr+8*c+i}, v{vOmg}, v{vGY+4*c+i}")
        if c == 1:
            for i in range(4): a.e(f"v_cvt_pk_bf16_f32 v{32+i}, v{vGY+i}, v{vGY+4+i}")
            a.e(f"buffer_store_dwordx4 {vr(32,4)}, v{vSt}, {sr(sOUT,4)}, 0 offen")
    E, Od = vGY + 8, vGY + 12
    for i in range(3): a.e(f"v_cvt_pk_bf16_f32 v{36+i}, v{E+3-i}, v{Od+2-i}")
    a.e(f"v_cvt_pk_bf16_f32 v40, v{Od+3}, v{E}")
    a.e(f"buffer_store_dwordx3 {vr(36,3)}, v{vSt+1}, {sr(sOUT,4)}, 0 offen offset:4")
    a.e(f"buffer_store_short v40, v{vSt+1}, {sr(sOUT,4)}, 0 offen offset:2")
    a.e(f"buffer_store_short_d16_hi v40, v{vRow}, {sr(sOUT,4)}, 0 offen offset:16")


def kernel_a():
    a = Asm(); st = Stamper(a)
    if Cfg.stamps: a.e("s_memrealtime s[96:97]")
    st()
    prologue(a, st)
    phase1(a, st)
    epilogue1(a, st)
    attention(a, st)
    phase3(a, st)
    a.e("s_waitcnt vmcnt(0) lgkmcnt(0)")
    st()
    st.dump()
    a.e("s_waitcnt vmcnt(0)")
    a.e("L_end:")
    a.e("s_endpgm")
    n0 = st.n
    st.n = 1; loader(a, st)
    st.n = 1; p0wave(a, st)
    fallback(a)
    a.verify_edges()
    return a

HEADER = open("cdna_kernels/" + NAME + ".s.ref").read().split("; Override launch")[0]

def wrap(kernels):
    out = HEADER
    if len(kernels) == 1:
        l, a, g, b, lds, nv = kernels[0]
        out += f"; @launch grid=({g},1,1) block=({b},1,1) lds={lds}\n"
    else:
        for l, a, g, b, lds, nv in kernels:
            out += f"; @launch kernel={l} grid=({g},1,1) block=({b},1,1) lds={lds}\n"
    out += '.amdgcn_target "amdgcn-amd-amdhsa--gfx950"\n.text\n'
    for l, a, g, b, lds, nv in kernels:
        out += f".globl {l}\n.p2align 8\n.type {l},@function\n{l}:\n" + a.text()
    out += '.section .rodata,"a"\n'
    for l, a, g, b, lds, nv in kernels:
        acc = (nv + 3) // 4 * 4
        out += f""".p2align 6
.amdhsa_kernel {l}
  .amdhsa_next_free_vgpr {nv}
  .amdhsa_next_free_sgpr 102
  .amdhsa_accum_offset {acc}
  .amdhsa_group_segment_fixed_size 0
  .amdhsa_kernarg_size 96
  .amdhsa_user_sgpr_count 2
  .amdhsa_user_sgpr_kernarg_segment_ptr 1
  .amdhsa_system_sgpr_workgroup_id_x 1
.end_amdhsa_kernel
"""
    return out

if __name__ == "__main__":
    outp = sys.argv[1] if len(sys.argv) > 1 else "dev.s"
    Cfg.stamps = "--stamps" in sys.argv
    Cfg.pf = "--nopf" not in sys.argv
    Cfg.x = {t[2:] for t in sys.argv if t.startswith("-x")}
    a = kernel_a()
    open(outp, "w").write(wrap([(NAME + "_kernel", a, 256, 512, 163840, NVGPR)]))
    print("instrs", len(a.ins), "auto nops", a.nops)
```

```python
import sys, math, struct
from asmlib import Asm, vr, sr

NAME = "gated_mix__spectral_fnet__mha_block__prompt"
MB = 1 << 20
WS_KV = 0
WS_OF = 8 * MB
WS_XF = 12 * MB
XSTR = 0x84000
WS_UV = 15 * MB
UVSTR = 33 * 16384
WS_WF = 18 * MB
WS_SM = 20 * MB
WS_GP = WS_SM
WS_XE = WS_SM + 0x10000
WS_ZC = WS_SM + 0x20000
ZSTR = 0x10000
OOB = 0x40000000
WS_FL = 21 * MB
WS_ST = 22 * MB
WS_CF = 24 * MB
WS_DF = 26 * MB
WS_SIZE = 28 * MB
FL_KV = WS_FL
FL_0 = WS_FL + 0x8000
FL_O = WS_FL + 0x10000
FL_A = WS_FL + 0xC000

def f2u(x): return struct.unpack("<I", struct.pack("<f", x))[0]

class Cfg:
    stamps = False
    pf = True
    wl = 4
    x = set()

def srd(a, d, koff, size):
    a.e(f"s_load_dwordx2 {sr(d,2)}, s[0:1], {koff}")
    a.e(f"s_mov_b32 s{d+2}, {hex(size)}")
    a.e(f"s_mov_b32 s{d+3}, 0x20000")

sX, sW, sWS, sDBG = 8, 12, 16, 20
sWAVE, sR, sH, sTAG = 3, 4, 5, 6
sT0, sT1, sT2, sT3 = 24, 25, 26, 27
sWo = 28
sWl, sXl, sXs = 31, 32, 33
sKVo, sF1o, sOFo = 34, 35, 36
sKVl = 37
sG = 38
sSpin = 39
sKVsrc = 40
sSlot = 41
sC1, sC2 = 42, 43
sGW, sWO, sMS, sMD, sOUT = 44, 48, 52, 56, 60
sRow = 98
sS = 7
sSTAMP = 78
sJ = 64
vLANE, vL16 = 1, 2
vXd = 4
vWd = 8
vWr = 9
vXr = 10
vT = 14
vAQ, vAK, vAV = 32, 48, 64
vXf = 80
vWf = 112
vS = [32, 48]
vO = 64
vM = 80
vQ = 96
vK = 104
vV = 112
vP = 120
vLs = 128
vSel = 132
vKVa = 3
NVGPR = 256

class Stamper:
    def __init__(self, a): self.a = a; self.n = 0
    def __call__(self):
        if not Cfg.stamps or self.n >= 16: return
        self.a.e("s_memrealtime s[94:95]" if "rt" in Cfg.x else "s_memtime s[94:95]")
        self.a.e("s_waitcnt lgkmcnt(0)")
        self.a.e(f"s_mov_b32 s{sSTAMP + self.n}, s94")
        self.n += 1
    def dump(self):
        if not Cfg.stamps: return
        a = self.a
        a.e(f"s_memrealtime {sr(sT0,2)}")
        a.e("s_waitcnt lgkmcnt(0)")
        a.e(f"s_lshl_b32 s{sT2}, s2, 3")
        a.e(f"s_add_u32 s{sT2}, s{sT2}, s{sWAVE}")
        a.e(f"s_lshl_b32 s{sT2}, s{sT2}, 7")
        a.e(f"s_add_u32 s{sT2}, s{sT2}, {hex(WS_ST)}")
        a.e(f"v_mov_b32 v{vT+1}, 0")
        for i in range(self.n):
            a.e(f"v_mov_b32 v{vT}, s{sSTAMP+i}")
            a.e(f"buffer_store_dword v{vT}, v{vT+1}, {sr(sWS,4)}, s{sT2} offen offset:{4*i}")
        a.e(f"v_mov_b32 v{vT}, s{sT0}")
        a.e(f"buffer_store_dword v{vT}, v{vT+1}, {sr(sWS,4)}, s{sT2} offen offset:{4*31}")
        a.e(f"v_mov_b32 v{vT}, s96")
        a.e(f"buffer_store_dword v{vT}, v{vT+1}, {sr(sWS,4)}, s{sT2} offen offset:{4*30}")


sPh, sOff, sXb, sLl, sWb, sK = 54, 55, 28, 29, 30, 31
sArr, sCb, sQ, sTt, sTrow = sJ, sJ + 1, sJ + 2, sJ + 3, sJ + 5
vLz = 21
LD_TAG = 61440
def prologue(a, st):
    a.e("s_cmp_ge_u32 s2, 256")
    a.e("s_cbranch_scc1 L_end")
    srd(a, sX, 0, 4 * MB)
    srd(a, sW, 48, 6 * MB)
    srd(a, sWS, 88, WS_SIZE)
    srd(a, sDBG, 80, 256)
    srd(a, sGW, 64, 2048)
    srd(a, sWO, 56, 2 * MB)
    srd(a, sOUT, 72, 4 * MB)
    a.e(f"v_and_b32 v{vLANE}, 63, v0")
    a.e(f"v_lshrrev_b32 v{vT}, 6, v0")
    a.e(f"v_lshlrev_b32 v{vL16}, 4, v{vLANE}")
    a.e(f"v_readfirstlane_b32 s{sWAVE}, v{vT}")
    a.e(f"s_bfe_u32 s{sT1}, s2, 0x20003")
    a.e(f"s_xor_b32 s{sT0}, s2, s{sT1}")
    a.e(f"s_and_b32 s{sT0}, s{sT0}, 1")
    a.e(f"s_lshl1_add_u32 s{sR}, s{sT1}, s{sT0}")
    a.e(f"s_bfe_u32 s{sT0}, s2, 0x20001")
    a.e(f"s_lshr_b32 s{sT1}, s2, 5")
    if "hx" in Cfg.x: a.e(f"s_xor_b32 s{sT1}, s{sT1}, 7")
    a.e(f"s_lshl3_add_u32 s{sH}, s{sT0}, s{sT1}")
    a.e(f"s_lshr_b32 s{sT0}, s{sWAVE}, 1")
    a.e(f"s_cmp_eq_u32 s{sT0}, 2")
    a.e("s_cbranch_scc1 L_load")
    common(a)
    a.e(f"s_cmp_ge_u32 s{sWAVE}, 6")
    a.e("s_cbranch_scc1 L_p0")
def common(a):
    a.e(f"s_mul_i32 s{sXl}, s{sWAVE}, 12288")
    a.e(f"s_add_u32 s{sXl}, s{sXl}, 65536")
    a.e(f"s_lshr_b32 s{sArr}, s{sH}, 3")
    a.e(f"s_and_b32 s{sCb}, s{sH}, 7")
    a.e(f"s_and_b32 s{sQ}, s{sWAVE}, 3")
    a.e(f"s_lshr_b32 s{sTt}, s{sWAVE}, 2")
    a.e(f"s_lshl1_add_u32 s{sT0}, s{sR}, s{sTt}")
    a.e(f"s_lshl_b32 s{sT0}, s{sT0}, 6")
    a.e(f"s_and_b32 s{sT1}, s{sArr}, 1")
    a.e(f"s_add_u32 s{sTrow}, s{sT0}, s{sT1}")
    a.e(f"v_mov_b32 v{vT}, {hex(OOB)}")
    a.e(f"v_cmp_eq_u32 vcc, 63, v{vLANE}")
    a.e(f"v_cndmask_b32_e64 v{vLz}, v{vT}, 0, vcc")

vWd3 = 8
def issue_x(a, i):
    a.e(f"s_add_u32 s{sK}, s{sOff}, {i}")
    a.e(f"s_and_b32 s{sK}, s{sK}, 15")
    a.e(f"s_lshl_b32 s{sK}, s{sK}, 7")
    a.e(f"s_add_u32 s{sK}, s{sK}, s{sXb}")
    for t in range(4):
        a.e(f"s_add_u32 m0, s{sLl}, {t*12288 + (i % 3)*4096}")
        if t: a.e(f"s_add_u32 s{sK}, s{sK}, 65536")
        for q in range(4):
            a.e(f"buffer_load_dwordx4 v{vXd+q}, {sr(sX,4)}, s{sK} offen offset:{q*1024} lds", tag=("X", i))
def issue_w(a, i):
    a.e(f"s_add_u32 s{sK}, s{sOff}, {i}")
    a.e(f"s_and_b32 s{sK}, s{sK}, 15")
    a.e(f"s_mul_i32 s{sK}, s{sK}, {64*6144}")
    a.e(f"s_add_u32 s{sK}, s{sK}, s{sWb}")
    for j in range(2):
        a.e(f"s_add_u32 m0, s{sXs}, {(i % 5)*12288 + j*3072}")
        if j: a.e(f"s_add_u32 s{sK}, s{sK}, {16*6144}")
        for m in range(3):
            a.e(f"buffer_load_dwordx4 v{vWd3+m}, {sr(sW,4)}, s{sK} offen offset:{m*1024} lds", tag=("W", i))
def loader_start(a):
    if "o1" in Cfg.x:
        a.e(f"s_and_b32 s{sOff}, s2, 7"); a.e(f"s_lshl_b32 s{sOff}, s{sOff}, 1")
    elif "o8" in Cfg.x:
        a.e(f"s_andn2_b32 s{sOff}, s{sR}, 1"); a.e(f"s_add_u32 s{sOff}, s{sOff}, s{sH}"); a.e(f"s_and_b32 s{sOff}, s{sOff}, 7")
        a.e(f"s_bfe_u32 s{sT0}, s2, 0x10001"); a.e(f"s_lshl1_add_u32 s{sOff}, s{sOff}, s{sT0}")
    elif "o0" in Cfg.x:
        a.e(f"s_mov_b32 s{sOff}, 0")
    elif "o4" in Cfg.x:
        a.e(f"s_add_u32 s{sOff}, s{sR}, s{sH}"); a.e(f"s_and_b32 s{sOff}, s{sOff}, 2"); a.e(f"s_and_b32 s{sT0}, s{sH}, 1")
        a.e(f"s_add_u32 s{sOff}, s{sOff}, s{sT0}"); a.e(f"s_lshl_b32 s{sOff}, s{sOff}, 2")
        a.e(f"s_bfe_u32 s{sT0}, s2, 0x20001"); a.e(f"s_add_u32 s{sOff}, s{sOff}, s{sT0}")
    else:
        a.e(f"s_and_b32 s{sOff}, s{sH}, 1"); a.e(f"s_lshl_b32 s{sOff}, s{sOff}, 3")
        a.e(f"s_and_b32 s{sT0}, s2, 7"); a.e(f"s_add_u32 s{sOff}, s{sOff}, s{sT0}")
    a.e(f"s_and_b32 s{sT2}, s{sWAVE}, 1")
    a.e(f"s_lshl1_add_u32 s{sT0}, s{sR}, s{sT2}")
    a.e(f"s_lshl_b32 s{sXb}, s{sT0}, 18")
    a.e(f"s_mul_i32 s{sLl}, s{sT2}, {4*12288}")
    a.e(f"s_add_u32 s{sLl}, s{sLl}, 65536")
    a.e(f"s_mul_i32 s{sWb}, s{sT2}, {32*6144}")
    a.e(f"s_lshl_b32 s{sT0}, s{sH}, 6")
    a.e(f"s_add_u32 s{sWb}, s{sWb}, s{sT0}")
    a.e(f"s_mul_i32 s{sXs}, s{sT2}, 6144")
    a.e(f"v_lshrrev_b32 v{vT}, 3, v{vLANE}")
    a.e(f"v_lshlrev_b32 v{vT}, 11, v{vT}")
    a.e(f"v_and_b32 v{vT+1}, 7, v{vLANE}")
    a.e(f"v_lshrrev_b32 v{vT+2}, 4, v{vLANE}")
    a.e(f"v_xor_b32 v{vT+1}, v{vT+1}, v{vT+2}")
    a.e(f"v_lshlrev_b32 v{vT+1}, 4, v{vT+1}")
    a.e(f"v_add_u32 v{vXd}, v{vT}, v{vT+1}")
    a.e(f"v_xor_b32 v{vT+1}, 64, v{vT+1}")
    a.e(f"v_add_u32 v{vT}, v{vT}, v{vT+1}")
    a.e(f"v_add_u32 v{vXd+1}, {16384-1024}, v{vT}")
    a.e(f"v_add_u32 v{vXd+2}, {2*(16384-1024)}, v{vXd}")
    a.e(f"v_add_u32 v{vXd+3}, {3*(16384-1024)}, v{vT}")
    a.e(f"v_lshrrev_b32 v{vT}, 2, v{vLANE}")
    a.e(f"v_mul_u32_u24 v{vT}, 6144, v{vT}")
    a.e(f"v_and_b32 v{vT+1}, 3, v{vLANE}")
    a.e(f"v_lshl_add_u32 v{vWd3}, v{vT+1}, 4, v{vT}")
    a.e(f"v_add_u32 v{vWd3+1}, 1024, v{vWd3}")
    a.e(f"v_add_u32 v{vWd3+2}, 2048, v{vWd3}")
    a.e("s_waitcnt lgkmcnt(0)")
    issue_w(a, 0); issue_x(a, 0); issue_w(a, 1); issue_x(a, 1)

def c_stream():
    return [f"s_lshl_b32 s{sJ+7}, s{sQ}, 7", f"s_lshr_b32 s{sJ+8}, s{sArr}, 1"] + \
        cos_stream(vJC, 8, sTrow, sJ + 7, sJ + 8, 1.0 / 2048, 24, nine=True)

def loader(a, st):
    a.e("L_load:")
    a.vm = []; a.lg = []
    loader_start(a)
    common(a)
    side = c_stream()
    nw = 2
    for i in range(16):
        a.wait(vm=[("X", i), ("W", i)])
        a.e("s_barrier")
        if i in ((0,) if 'gs' in Cfg.x else (0, 4, 8, 12)): st()
        if i + 2 < 16: issue_x(a, i + 2)
        k = 0
        while nw < 16 and nw <= i + Cfg.wl and k < 2:
            issue_w(a, nw); nw += 1; k += 1
        if i >= 13:
            for _ in range(70 if i < 15 else 1000):
                if side: a.e(side.pop(0))
    st()
    a.e("s_branch L_epi")

vX0 = 32
vG = 96
vF = 112
vGp = 128
vU = 174
vPa, vPb, vMk, vL0 = range(192, 196)
vWa = 202
vWG = 208
vCd = 112

def cos_stream(dst, nfr, srow, scol, smat, inv, T, nine=False):
    q = []
    A, tf, t9, t0 = T, T + 1, T + 2, T + 3
    q.append(f"s_cmp_lg_u32 s{smat}, 0")
    q.append(f"s_cselect_b32 s{sPh}, 0x3e800000, 0")
    q.append(f"v_and_b32 v{tf}, 31, v{vLANE}")
    q.append(f"v_lshl_add_u32 v{tf}, v{tf}, 1, s{srow}")
    q.append(f"v_cvt_f32_u32 v{tf}, v{tf}")
    q.append(f"v_mul_f32 v{tf}, {hex(f2u(inv))}, v{tf}")
    q.append(f"v_lshrrev_b32 v{t0}, 5, v{vLANE}")
    q.append(f"v_lshl_add_u32 v{t0}, v{t0}, 3, s{scol}")
    q.append(f"v_cvt_f32_u32 v{t0}, v{t0}")
    q.append(f"v_fma_f32 v{A}, v{tf}, v{t0}, s{sPh}")
    q.append(f"v_fract_f32 v{A}, v{A}")
    q.append(f"v_mul_f32 v{t9}, {hex(f2u(9.0))}, v{tf}")
    if nine:
        q.append(f"v_mul_f32 v{t0}, {hex(f2u(512.0))}, v{tf}")
        q.append(f"v_add_f32 v{t0}, s{sPh}, v{t0}")
        q.append(f"v_fract_f32 v{t0}, v{t0}")
        q.append(f"v_cos_f32 v{t0}, v{t0}")
        for i in range(1, 4): q.append(f"v_mov_b32 v{dst+4*nfr+i}, 0")
        q.append(f"v_cvt_pk_bf16_f32 v{dst+4*nfr}, v{t0}, v{t0}")
    for k in range(4 * nfr):
        t = t0 + 2 * (k % 2)
        q.append(f"v_cos_f32 v{t}, v{A}")
        q.append(f"v_add_f32 v{A}, v{A}, v{tf}")
        q.append(f"v_cos_f32 v{t+1}, v{A}")
        q.append(f"v_add_f32 v{A}, v{A}, v{t9 if k % 4 == 3 else tf}")
        q.append(f"v_cvt_pk_bf16_f32 v{dst+k}, v{t}, v{t+1}")
    return q

def p0_setup(a):
    a.e(f"s_and_b32 s{sT0}, s2, 1")
    a.e(f"s_lshl_b32 s{sT0}, s{sT0}, 8")
    a.e(f"s_bfe_u32 s{sT1}, s2, 0x20001")
    a.e(f"s_lshl_b32 s{sT1}, s{sT1}, 6")
    a.e(f"s_add_u32 s{sT0}, s{sT0}, s{sT1}")
    a.e(f"s_lshr_b32 s{sT1}, s2, 3")
    a.e(f"s_lshl1_add_u32 s{sT0}, s{sT1}, s{sT0}")
    a.e(f"s_and_b32 s{sT3}, s{sWAVE}, 1")
    a.e(f"s_add_u32 s{sS}, s{sT0}, s{sT3}")
    a.e(f"s_lshl_b32 s{sRow}, s{sS}, 11")
    a.e(f"s_sub_u32 s{sRow+1}, {hex(2048*2048)}, s{sRow}")
    a.e(f"s_sub_u32 s{sRow+2}, {hex(1024*2048)}, s{sRow}")
    a.e(f"s_add_u32 s{sRow+3}, {hex(1024*2048)}, s{sRow}")
    a.e(f"s_cmp_eq_u32 s{sS}, 0")
    a.e(f"s_cselect_b32 s{sRow+1}, {hex(512*2048)}, s{sRow+1}")
    a.e(f"s_cselect_b32 s{sRow+2}, {hex(1536*2048)}, s{sRow+2}")
    a.e(f"s_cselect_b32 s{sC1}, 0, 1.0")
    a.e(f"v_lshlrev_b32 v{vPa}, 3, v{vLANE}")
    a.e(f"v_sub_u32 v{vPb}, {1024-8}, v{vPa}")
    a.e("s_waitcnt lgkmcnt(0)")
    p0_loads(a)
    a.e(f"v_cmp_eq_u32 vcc, 0, v{vLANE}")
    a.e(f"v_cndmask_b32_e64 v{vMk}, 1.0, 0, vcc")
    a.e(f"v_mov_b32 v{vU+1}, {hex(OOB)}")
    a.e(f"v_cndmask_b32_e64 v{vL0}, v{vU+1}, 0, vcc")
    a.e(f"s_mov_b32 s{sC2}, 0x3f803f80")
    a.e(f"s_and_b32 s{sT0}, s2, 7")
    a.e(f"s_lshr_b32 s{sT1}, s2, 7")
    a.e(f"s_bfe_u32 s{sT2}, s2, 0x40003")
    a.e(f"s_lshl_b32 s{sJ+7}, s{sT0}, 6")
    a.e(f"s_add_u32 s{sJ+7}, s{sJ+7}, s{sT1}")
    a.e(f"s_lshl_b32 s{sJ+8}, s{sT2}, 4")
    a.e(f"s_lshl1_add_u32 s{sT1}, s{sT3}, s{sT1}")
    a.e(f"s_lshl3_add_u32 s{sT1}, s{sT1}, s{sT0}")
    a.e(f"s_lshl4_add_u32 s{sT1}, s{sT1}, s{sT2}")
    a.e(f"s_lshl_b32 s{sT1}, s{sT1}, 10")
    a.e(f"s_add_u32 s{sJ+9}, s{sT1}, {hex(WS_DF)}")
    a.e(f"s_mov_b32 s{sJ+10}, s{sT3}")
    a.e(f"s_lshl_b32 s{sT1}, s{sT0}, 6")
    a.e(f"v_and_b32 v{vU}, 31, v{vLANE}")
    a.e(f"v_lshl_add_u32 v{vU}, v{vU}, 1, s{sT1}")
    a.e(f"v_sub_u32 v{vU+1}, 1024, v{vU}")
    a.e(f"v_cmp_eq_u32 vcc, 0, v{vU}")
    a.e(f"v_mov_b32 v{vU+2}, 512")
    a.e(f"v_cndmask_b32 v{vU+2}, v{vU+1}, v{vU+2}, vcc")
    a.e(f"v_lshrrev_b32 v{vU+3}, 5, v{vLANE}")
    a.e(f"v_lshlrev_b32 v{vU+3}, 13, v{vU+3}")
    a.e(f"v_lshl_add_u32 v{vWa}, v{vU}, 1, v{vU+3}")
    a.e(f"v_lshl_add_u32 v{vWa+2}, v{vU+2}, 1, v{vU+3}")
    a.e(f"v_lshl_add_u32 v{vWa+3}, v{vU+1}, 1, v{vU+3}")
    a.e(f"v_add_u32 v{vWa+3}, -2, v{vWa+3}")
    a.e(f"s_lshr_b32 s{sT1}, s2, 3")
    a.e(f"s_lshl1_add_u32 s{sT1}, s{sT1}, s{sT3}")
    a.e(f"s_lshl_b32 s{sT0}, s{sT0}, 8")
    a.e(f"s_add_u32 s{sT0}, s{sT0}, s{sT1}")
    a.e(f"s_lshl_b32 s{sT0}, s{sT0}, 10")
    a.e(f"s_add_u32 s{sJ+4}, s{sT0}, {hex(WS_WF)}")
    a.e(f"s_lshl_b32 s{sJ+6}, s{sT1}, 15")

def xr(row, slot, i): return vX0 + 16 * row + 4 * slot + (i if slot in (0, 3) else (4 - i) % 4)
def p0_loads(a):
    addr = [(vPa, 0), (vPb, 1024), (vPb, 0), (vPa, 1024)]
    for k in range(4):
        a.e(f"buffer_load_dwordx2 {vr(vG+4*k,2)}, v{addr[k][0]}, {sr(sGW,4)}, 0 offen offset:{addr[k][1]}", tag=("p0", 4))
    for r in range(4):
        for k in range(4):
            a.e(f"buffer_load_dwordx2 {vr(vX0+16*r+4*k,2)}, v{addr[k][0]}, {sr(sX,4)}, s{sRow+r} offen offset:{addr[k][1]}", tag=("p0", r))
def wf_loads(a, ct, ps=range(4)):
    op = "dword" if ct == 0 else "ushort"
    for p in ps:
        row = (0, 2, 8, 10)[p]
        a.e(f"s_add_u32 s{sT2}, s{sJ+6}, {row*2048}")
        a.e(f"buffer_load_{op} v{vWG+8*ct+p}, v{vWa+ct}, {sr(sWO,4)}, s{sT2} offen", tag=("wg", ct))
        a.e(f"buffer_load_{op} v{vWG+8*ct+4+p}, v{vWa+ct}, {sr(sWO,4)}, s{sT2} offen offset:2048", tag=("wg", ct))
def wf_store(a, ct):
    if ct < 2:
        a.e(f"s_mov_b32 s{sT1}, {['0x05040100', '0x07060302'][ct]}")
        D = vWG + 8 + 4 * ct
        for p in range(4): a.e(f"v_perm_b32 v{D+p}, v{vWG+4+p}, v{vWG+p}, s{sT1}")
    else:
        D = vWG + 8 * ct
        for p in range(4): a.e(f"v_lshl_or_b32 v{D+p}, v{D+4+p}, 16, v{D+p}")
    a.e(f"s_add_u32 s{sT2}, s{sJ+4}, {ct*65536}")
    a.e(f"buffer_store_dwordx4 {vr(D,4)}, v{vL16}, {sr(sWS,4)}, s{sT2} offen sc1")

def wf_stores(a):
    vm = list(a.vm)
    a.e(f"s_cmp_lt_u32 s{sWAVE}, 6")
    a.e("s_cbranch_scc1 L_nowf")
    for ct in range(4): wf_store(a, ct)
    a.e("L_nowf:")
    a.vm = vm

DPP = ["row_shr:1 row_mask:0xf bank_mask:0xf", "row_shr:2 row_mask:0xf bank_mask:0xf", "row_shr:4 row_mask:0xf bank_mask:0xf",
       "row_shr:8 row_mask:0xf bank_mask:0xf", "row_bcast:15 row_mask:0xa bank_mask:0xf", "row_bcast:31 row_mask:0xc bank_mask:0xf"]

vR = 240
def p0_dfold(a, i):
    H = vU + 8
    for ar in range(4):
        f = vF + 4 * ar
        if i == 0:
            ng = "" if ar < 2 else "-"
            a.e(f"v_fma_f32 v{vU}, v{f+1}, {ng}v{vMk}, v{f}")
            a.e(f"v_fma_f32 v{vU+1}, v{f+2}, {ng}v{vMk}, v{f+3}")
            a.e(f"v_{'add' if ar < 2 else 'sub'}_f32 v{vU+4+ar}, v{f+2}, v{f+1}")
        else:
            op = "add" if ar < 2 else "sub"
            a.e(f"v_{op}_f32 v{vU}, v{f}, v{f+1}")
            a.e(f"v_{op}_f32 v{vU+1}, v{f+3}, v{f+2}")
        E = H + 2 * ar if i % 2 == 0 else vU + 2
        a.e(f"v_add_f32 v{E}, v{vU}, v{vU+1}")
        a.e(f"v_sub_f32 v{E+1}, v{vU}, v{vU+1}")
        if ar < 2:
            if i == 0: a.e(f"v_mov_b32 v{vGp+4+ar}, v{E}")
            else:      a.e(f"v_{'sub' if i % 2 else 'add'}_f32 v{vGp+4+ar}, v{vGp+4+ar}, v{E}")
        if i % 2:
            a.e(f"v_cvt_pk_bf16_f32 v{vR+4*ar+i//2}, v{H+2*ar}, v{E}")
            a.e(f"v_cvt_pk_bf16_f32 v{vR+4*ar+2+i//2}, v{H+2*ar+1}, v{E+1}")
        if i == 3:
            if ar == 0: a.e(f"s_lshl_b32 s{sT0}, s{sS}, 10")
            a.e(f"s_add_u32 s{sT1}, s{sT0}, {hex(WS_XF + ar*XSTR)}")
            a.e(f"buffer_store_dwordx4 {vr(vR+4*ar,4)}, v{vL16}, {sr(sWS,4)}, s{sT1} offen sc1")
    if i == 0:
        a.e(f"v_cvt_pk_bf16_f32 v{vU+16}, v{vU+4}, v{vU+5}")
        a.e(f"v_cvt_pk_bf16_f32 v{vU+17}, v{vU+6}, v{vU+7}")
        a.e(f"s_lshl_b32 s{sT0}, s{sS}, 1")
        for ar in range(4):
            a.e(f"s_add_u32 s{sT1}, s{sT0}, {hex(WS_XE + ar*16384)}")
            a.e(f"buffer_store_short{'_d16_hi' if ar % 2 else ''} v{vU+16+ar//2}, v{vL0}, {sr(sWS,4)}, s{sT1} offen sc1")
def p0_reduce(a, red):
    for d in DPP:
        for r in red: a.e(f"v_add_f32_dpp v{r}, v{r}, v{r} {d}")
    a.e(f"v_cvt_pk_bf16_f32 v{vGp+4}, v{vGp+4}, v{vGp+5}")
    a.e(f"s_lshl_b32 s{sT0}, s{sS}, 1")
    for ar in range(2):
        a.e(f"s_add_u32 s{sT2}, s{sT0}, {hex(WS_XE + ar*16384 + 4*2048)}")
        a.e(f"buffer_store_short{'_d16_hi' if ar % 2 else ''} v{vGp+4}, v{vLz}, {sr(sWS,4)}, s{sT2} offen sc1")

def unpack4(a, b):
    a.e(f"v_and_b32 v{b+3}, 0xffff0000, v{b+1}")
    a.e(f"v_lshlrev_b32 v{b+2}, 16, v{b+1}")
    a.e(f"v_and_b32 v{b+1}, 0xffff0000, v{b}")
    a.e(f"v_lshlrev_b32 v{b}, 16, v{b}")
vOne, vGa = 196, 224
def p0_row(a, r):
    a.wait(vm=[("p0", 4), ("p0", r)])
    if r == 0:
        for k in range(4): unpack4(a, vG + 4 * k)
        for i in range(4): a.e(f"v_mov_b32 v{vOne+i}, s{sC2}")
    for k in range(4):
        x = vX0 + 16 * r + 4 * k
        unpack4(a, x)
        for i in range(4): a.e(f"v_mul_f32 v{vU+i}, v{x+i}, v{vG+4*k+i}")
        P = vU + 6 + 4 * (k // 2)
        a.e(f"v_cvt_pk_bf16_f32 v{P+2*(k%2)}, v{vU}, v{vU+1}")
        a.e(f"v_cvt_pk_bf16_f32 v{P+2*(k%2)+1}, v{vU+2}, v{vU+3}")
        if k in (1, 2): a.e(f"v_mov_b32_dpp v{x}, v{x} wave_ror:1 row_mask:0xf bank_mask:0xf")
        if k % 2: a.e(f"v_mfma_f32_16x16x32_bf16 {vr(vR+4*r,4)}, {vr(vOne,4)}, {vr(P,4)}, {vr(vR+4*r,4) if k == 3 else 0}")
    if r == 3:
        for d in DPP[:4]:
            for q in range(4): a.e(f"v_add_f32_dpp v{vR+4*q}, v{vR+4*q}, v{vR+4*q} {d}")
        for q in range(4):
            a.e(f"s_lshr_b32 s{sT2}, s{sRow+q}, 9")
            a.e(f"s_add_u32 s{sT2}, s{sT2}, {hex(WS_GP)}")
            a.e(f"buffer_store_dword v{vR+4*q}, v{vLz}, {sr(sWS,4)}, s{sT2} offen sc1")
def p0_quarter(a, i):
    for k in range(4):
        A, B, C, D = [xr(r, k, i) for r in range(4)]
        a.e(f"v_fma_f32 v{vU}, v{B}, s{sC1}, v{A}")
        a.e(f"v_fma_f32 v{vU+1}, v{C}, s{sC1}, v{D}")
        a.e(f"v_fma_f32 v{vU+2}, v{B}, -s{sC1}, v{A}")
        a.e(f"v_fma_f32 v{vU+3}, v{C}, -s{sC1}, v{D}")
        a.e(f"v_add_f32 v{vF+k}, v{vU}, v{vU+1}")
        a.e(f"v_sub_f32 v{vF+4+k}, v{vU}, v{vU+1}")
        a.e(f"v_add_f32 v{vF+8+k}, v{vU+2}, v{vU+3}")
        a.e(f"v_sub_f32 v{vF+12+k}, v{vU+2}, v{vU+3}")
    p0_dfold(a, i)
def p0_finish(a):
    p0_reduce(a, [vGp + 4, vGp + 5])

def p0_special(a, half):
    vm = list(a.vm)
    a.e(f"s_and_b32 s{sT0}, s{sS}, 511")
    a.e(f"s_cbranch_scc1 L_p0done{half}")
    a.e(f"s_mov_b32 s{sS}, 512")
    for i in (2 * half, 2 * half + 1):
        for k in range(4):
            B, C = xr(1, k, i), xr(2, k, i)
            a.e(f"v_add_f32 v{vF+k}, v{B}, v{C}")
            a.e(f"v_add_f32 v{vF+4+k}, v{B}, v{C}")
            a.e(f"v_sub_f32 v{vF+8+k}, v{B}, v{C}")
            a.e(f"v_sub_f32 v{vF+12+k}, v{B}, v{C}")
        p0_dfold(a, i)
    if half: p0_reduce(a, [vGp + 4, vGp + 5])
    a.e(f"L_p0done{half}:")
    a.vm = vm

def flag_wg(a, off, lbl, wave=0):
    vm = list(a.vm)
    a.e(f"s_cmp_lg_u32 s{sWAVE}, {wave}")
    a.e(f"s_cbranch_scc1 {lbl}")
    a.e(f"s_and_b32 s{sT0}, s2, 7")
    a.e(f"s_lshl_b32 s{sT0}, s{sT0}, 7")
    a.e(f"s_lshr_b32 s{sT1}, s2, 3")
    a.e(f"s_lshl2_add_u32 s{sT0}, s{sT1}, s{sT0}")
    a.e(f"s_add_u32 s{sT0}, s{sT0}, {hex(off)}")
    a.e(f"v_mov_b32 v{vT+4}, s{sTAG}")
    a.e(f"buffer_store_dword v{vT+4}, v{vLz}, {sr(sWS,4)}, s{sT0} offen sc1")
    a.e(f"{lbl}:")
    a.vm = vm

def p0wave(a, st):
    a.e("L_p0:")
    a.vm = []; a.lg = []
    p0_setup(a)
    a.e(f"s_cmp_lg_u32 s{sS}, 0")
    a.e("s_cbranch_scc1 L_notag")
    a.e(f"s_memrealtime {sr(sT0,2)}")
    a.e("s_waitcnt lgkmcnt(0)")
    a.e(f"s_or_b32 s{sT0}, s{sT0}, 1")
    a.e(f"v_mov_b32 v{vT}, s{sT0}")
    a.e(f"v_mov_b32 v{vT+1}, 0")
    a.e(f"buffer_store_dword v{vT}, v{vT+1}, {sr(sDBG,4)}, 0 offen sc1")
    a.vm.pop()
    a.e("L_notag:")
    def dfrag():
        for t in cos_stream(vCd, 1, sJ + 7, sJ + 8, sJ + 10, 1.0 / 1024, 24): a.e(t)
        a.e(f"buffer_store_dwordx4 {vr(vCd,4)}, v{vL16}, {sr(sWS,4)}, s{sJ+9} offen sc1")
    def tag_issue():
        a.e(f"v_mov_b32 v{vT+1}, 0")
        a.e(f"buffer_load_dword v{vT}, v{vT+1}, {sr(sDBG,4)}, 0 offen sc1", tag="tag")
    def tag_lds():
        a.e(f"v_mov_b32 v{vT}, s{sTAG}")
        a.e(f"v_and_b32 v{vT+1}, 7, v{vLANE}")
        a.e(f"v_mul_u32_u24 v{vT+1}, 12288, v{vT+1}")
        a.e(f"v_add_u32 v{vT+1}, 65536, v{vT+1}")
        a.e(f"ds_write_b32 v{vT+1}, v{vT} offset:6144")
    side = c_stream()
    def cs(n):
        for _ in range(n):
            if side: a.e(side.pop(0))
    L = lambda f, *x: (lambda: f(a, *x))
    seg = {-1: [dfrag, lambda: cs(1000)],
           0: [tag_issue, L(p0_row, 0)], 1: [L(p0_row, 1), L(p0_row, 2)],
           2: [L(p0_row, 3), L(p0_quarter, 0)], 3: [L(p0_quarter, 1), L(p0_quarter, 2)], 4: [L(p0_quarter, 3), L(p0_finish)],
           5: [L(p0_special, 0), L(get_tag)], 6: [L(p0_special, 1), lambda: a.e("s_waitcnt vmcnt(0)")],
           7: [L(flag_wg, FL_0, "L_f0", 6)], 14: [tag_lds, L(wf_loads, 0), L(wf_loads, 2)], 15: [L(wf_loads, 3)]}
    for i in range(-1, 16):
        if i >= 0: a.e("s_barrier")
        if i in ((0,) if 'gs' in Cfg.x else (0, 4, 8, 12)): st()
        for f in seg.get(i, []): f()
    assert not side
    st()
    a.e("s_branch L_epi")

vA2, vXf2 = 172, 220
def phase1(a, st):
    a.vm = []; a.lg = []
    a.e(f"v_lshrrev_b32 v{vT}, 5, v{vLANE}")
    a.e(f"v_lshlrev_b32 v{vT}, 9, v{vT}")
    a.e(f"v_bfe_u32 v{vT+1}, v{vLANE}, 2, 2")
    a.e(f"v_lshl_add_u32 v{vT}, v{vT+1}, 6, v{vT}")
    a.e(f"v_bfe_u32 v{vT+1}, v{vLANE}, 4, 1")
    a.e(f"v_lshl_add_u32 v{vT}, v{vT+1}, 5, v{vT}")
    a.e(f"v_and_b32 v{vT+1}, 3, v{vLANE}")
    a.e(f"v_lshl_add_u32 v{vWr}, v{vT+1}, 3, v{vT}")
    a.e(f"v_and_b32 v{vT}, 31, v{vLANE}")
    a.e(f"v_bfe_u32 v{vT+1}, v{vLANE}, 1, 3")
    a.e(f"v_lshrrev_b32 v{vT+2}, 5, v{vLANE}")
    a.e(f"v_xor_b32 v{vT+1}, v{vT+1}, v{vT+2}")
    a.e(f"v_lshlrev_b32 v{vT+1}, 4, v{vT+1}")
    a.e(f"v_lshl_add_u32 v{vT}, v{vT}, 7, v{vT+1}")
    for s in range(4):
        a.e(f"v_xor_b32 v{vT+1}, {32*s}, v{vT}")
        a.e(f"v_add_u32 v{vXr+s}, s{sXl}, v{vT+1}")
    for t in c_stream(): a.e(t)
    a.e("s_waitcnt lgkmcnt(0)")
    def rd_w(n, m):
        i, s = divmod(n, 4)
        for t in range(2):
            a.e(f"ds_read_b64_tr_b16 {vr(vWf + (n % 2) * 12 + 4 * m + 2 * t, 2)}, v{vWr} offset:{((i % 5)*12 + 3*s + m) * 1024 + 256 * t}", tag=("w", n, m))
    def xreg(i, s, b): return [vXf, vXf2][b] + (i % 2) * 16 + 4 * s
    def rd_x(i, s, b):
        a.e(f"ds_read_b128 {vr(xreg(i,s,b), 4)}, v{vXr+s} offset:{(i % 3) * 4096 + b*49152}", tag=("x", i, s, b))
    a.e("s_barrier")
    st()
    rd_x(0, 0, 0); rd_w(0, 0); rd_x(0, 0, 1); rd_w(0, 1); rd_w(0, 2)
    for s in range(1, 4): rd_x(0, s, 0); rd_x(0, s, 1)
    for n in range(64):
        i, s = divmod(n, 4)
        fill = [[] for _ in range(6)]
        if s == 3 and i < 15:
            a.wait(lg=[("w", n, 2)])
            a.e("s_barrier")
            if (i + 1) % 4 == 0 and 'gs' not in Cfg.x: st()
        if n < 63:
            for m in range(3): fill[m].append(lambda m=m: rd_w(n + 1, m))
            if s == 3:
                fill[0].insert(0, lambda: rd_x(i + 1, 0, 0)); fill[1].insert(0, lambda: rd_x(i + 1, 0, 1))
                for s2 in range(1, 4):
                    for b in range(2): fill[2 + s2].append(lambda s2=s2, b=b: rd_x(i + 1, s2, b))
        for m in range(3):
            for b in range(2):
                a.wait(lg=[("w", n, m), ("x", i, s, b)])
                xf = vr(xreg(i, s, b), 4); wf = vr(vWf + (n % 2) * 12 + 4 * m, 4)
                acc = vr([vAQ, vA2][b] + 16 * m, 16)
                c = "0" if n == 0 else acc
                if m < 2: a.e(f"v_mfma_f32_32x32x16_bf16 {acc}, {wf}, {xf}, {c}")
                else:     a.e(f"v_mfma_f32_32x32x16_bf16 {acc}, {xf}, {wf}, {c}")
                for f in fill[2 * m + b]: f()
    st()

def get_tag(a):
    a.e(f"s_mov_b32 s{sSpin}, 0")
    a.wait(vm="tag")
    vm = list(a.vm)
    a.e("L_tagspin:")
    a.e(f"v_readfirstlane_b32 s{sTAG}, v{vT}")
    a.e(f"s_cmp_lg_u32 s{sTAG}, 0")
    a.e("s_cbranch_scc1 L_tagok")
    a.e(f"buffer_load_dword v{vT}, v{vT+1}, {sr(sDBG,4)}, 0 offen sc1")
    a.e("s_waitcnt vmcnt(0)")
    a.e(f"s_add_u32 s{sSpin}, s{sSpin}, 1")
    a.e(f"s_cmp_lt_u32 s{sSpin}, 0x40000")
    a.e("s_cbranch_scc1 L_tagspin")
    a.e("L_tagok:")
    a.vm = vm

def pack(a, dst, src, n):
    for i in range(n):
        a.e(f"v_cvt_pk_bf16_f32 v{dst+i}, v{src+2*i}, v{src+2*i+1}")

def epilogue1(a, st):
    a.e(f"s_lshl3_add_u32 s{sT0}, s{sR}, s{sWAVE}")
    a.e(f"s_lshl_b32 s{sT1}, s{sH}, 6")
    a.e(f"s_add_u32 s{sT1}, s{sT1}, s{sT0}")
    a.e(f"s_lshl_b32 s{sT1}, s{sT1}, 12")
    a.e(f"s_add_u32 s{sT2}, s{sT1}, {4*4096}")
    a.e(f"v_add_u32 v{vT}, s{sXl}, v{vL16}")
    for b in range(2):
        A = [vAQ, vA2][b]; P = vXf + 16 * b
        for f in range(4):
            pack(a, P + 4 * f, A + 16 + 8 * f, 4)
            a.e(f"buffer_store_dwordx4 {vr(P+4*f,4)}, v{vL16}, {sr(sWS,4)}, s{sT1+b} offen offset:{f*1024} sc1", tag="kvst")
            a.e(f"ds_write_b128 v{vT}, {vr(P+4*f,4)} offset:{b*49152 + f*1024}")
    a.e(f"s_mov_b32 s{sT0}, {hex(f2u(math.log2(math.e) / math.sqrt(32.0)))}")
    for b in range(2):
        A = [vAQ, vA2][b]; P = vWf + 8 * b
        for f in range(2):
            for i in range(8): a.e(f"v_mul_f32 v{A+8*f+i}, s{sT0}, v{A+8*f+i}")
            pack(a, P + 4 * f, A + 8 * f, 4)
            a.e(f"ds_write_b128 v{vT}, {vr(P+4*f,4)} offset:{b*49152 + 4096 + f*1024}")
    a.e("L_epi:")
    poll256_issue(a, FL_0, vJx)
    a.e(f"s_lshl3_add_u32 s{sT0}, s{sR}, s{sWAVE}")
    a.e(f"s_lshl_b32 s{sT1}, s{sH}, 6")
    a.e(f"s_add_u32 s{sT1}, s{sT1}, s{sT0}")
    a.e(f"s_lshl_b32 s{sKVo}, s{sT1}, 12")
    a.e(f"s_lshl3_add_u32 s{sF1o}, s{sH}, s{sWAVE}")
    a.e(f"s_lshl_b32 s{sF1o}, s{sF1o}, 7")
    a.e(f"s_add_u32 s{sF1o}, s{sF1o}, {hex(FL_KV)}")
    a.e(f"s_lshl2_add_u32 s{sT3}, s{sR}, s{sF1o}")
    a.e(f"s_lshl_b32 s{sT0}, s{sT0}, 5")
    a.e(f"s_add_u32 s{sT0}, s{sT0}, s{sH}")
    a.e(f"s_lshl_b32 s{sT0}, s{sT0}, 11")
    a.e(f"s_add_u32 s{sOFo}, s{sT0}, {hex(WS_OF)}")
    a.e(f"v_add_u32 v{vKVa}, 65536, v{vL16}")
    a.e(f"v_add_u32 v{vT}, s{sXl}, v{vL16}")
    a.e("s_waitcnt lgkmcnt(0)")
    a.e("s_barrier")
    for f in range(2):
        a.e(f"ds_read_b128 {vr(vQ+4*f,4)}, v{vT} offset:{4096 + f*1024}", tag="K")
        a.e(f"ds_read_b128 {vr(vK+4*f,4)}, v{vKVa} offset:{f*1024}", tag="K")
    a.e(f"ds_read_b32 v{vT+2}, v{vT} offset:6144", tag="K")
    a.e(f"v_bfe_u32 v{vT}, v{vLANE}, 4, 1")
    a.e(f"v_bfe_u32 v{vT+1}, v{vLANE}, 2, 1")
    a.e(f"v_cmp_eq_u32 vcc, v{vT}, v{vT+1}")
    a.e(f"v_mov_b32 v{vT}, 0x3f803f80")
    a.e(f"v_cndmask_b32 v{vSel}, 0, v{vT}, vcc")
    for i in range(1, 4): a.e(f"v_mov_b32 v{vSel+i}, v{vSel}")
    a.wait(lg="K")
    S = vS[0]
    a.e(f"v_mfma_f32_32x32x16_bf16 {vr(S,16)}, {vr(vK,4)}, {vr(vQ,4)}, 0")
    a.e(f"v_mfma_f32_32x32x16_bf16 {vr(S,16)}, {vr(vK+4,4)}, {vr(vQ+4,4)}, {vr(S,16)}")
    a.e(f"v_readfirstlane_b32 s{sTAG}, v{vT+2}")
    a.e(f"v_mov_b32 v{vKVa2}, v{vKVa}")
    for i in range(16): a.e(f"v_mov_b32 v{vO+i}, 0")
    rd_k(a, 1)
    rd_v(a, 0, 1)
    rd_v(a, 0, 0)
    for i in range(4): a.e(f"v_mov_b32 v{vLs+i}, 0")
    for i in range(4): a.e(f"v_mov_b32 v{vP+4+i}, 0")
    a.e(f"v_max3_f32 v{vT}, v{S}, v{S+1}, v{S+2}")
    for i in range(3, 15, 2):
        a.e(f"v_max3_f32 v{vT}, v{vT}, v{S+i}, v{S+i+1}")
    a.e(f"v_max_f32 v{vT}, v{vT}, v{S+15}")
    a.e(f"v_mov_b32 v{vT+1}, v{vT}")
    a.e(f"v_permlane32_swap_b32 v{vT}, v{vT+1}")
    a.e(f"v_max_f32 v{vT}, v{vT}, v{vT+1}")
    for i in range(16): a.e(f"v_sub_f32 v{vM+i}, 0, v{vT}")
    for i in range(16): a.e(f"v_sub_f32 v{S+i}, v{S+i}, v{vT}")
    st()

vJC, vJE, vJacc, vJx, vX9, vJz, vSelS, vA0, vA1 = 136, 172, 208, 240, 24, 4, 8, 12, 13

def a_loads():
    T = vT
    steps = []
    def setup(a):
        a.e(f"s_mul_i32 s{sJ+6}, s{sArr}, {hex(XSTR)}")
        a.e(f"s_lshl_b32 s{sT0}, s{sCb}, 7")
        a.e(f"s_add_u32 s{sJ+6}, s{sJ+6}, s{sT0}")
        a.e(f"s_add_u32 s{sJ+6}, s{sJ+6}, {hex(WS_XF)}")
        a.e(f"s_lshl_b32 s{sT0}, s{sWAVE}, 16")
        a.e(f"s_add_u32 s{sJ+7}, s{sJ+6}, s{sT0}")
        a.e(f"s_lshl_b32 s{sJ+8}, s{sWAVE}, 13")
        a.e(f"v_lshrrev_b32 v{T}, 2, v{vLANE}")
        a.e(f"v_and_b32 v{T+1}, 3, v{vLANE}")
        a.e(f"v_lshlrev_b32 v{T+1}, 4, v{T+1}")
        a.e(f"v_lshl_add_u32 v{T}, v{T}, 10, v{T+1}")
    steps.append(setup)
    for p in range(8):
        def f(a, p=p):
            a.e(f"s_add_u32 m0, s{sJ+8}, {p*1024}")
            a.e(f"s_add_u32 s{sT0}, s{sJ+7}, {(p//2)*16384 + (p%2)*64}")
            a.e(f"buffer_load_dwordx4 v{T}, {sr(sWS,4)}, s{sT0} offen sc1 lds", tag="al")
        steps.append(f)
    def esetup(a):
        a.e(f"v_lshrrev_b32 v{T+1}, 5, v{vLANE}")
        a.e(f"v_lshlrev_b32 v{T+1}, 4, v{T+1}")
        a.e(f"v_and_b32 v{T}, 3, v{vLANE}")
        a.e(f"v_bfe_u32 v{T+2}, v{vLANE}, 3, 1")
        a.e(f"v_lshl_add_u32 v{T}, v{T+2}, 2, v{T}")
        a.e(f"v_and_b32 v{T+2}, 3, v{T}")
        a.e(f"v_lshl_add_u32 v{T}, v{T}, 11, v{T+1}")
        a.e(f"v_cmp_eq_u32 vcc, 0, v{T+2}")
        a.e(f"v_mov_b32 v{T+2}, {hex(OOB)}")
        a.e(f"v_cndmask_b32 v{T}, v{T+2}, v{T}, vcc")
        a.e(f"v_cmp_ne_u32 vcc, 0, v{vSel}")
        a.e(f"v_cndmask_b32 v{T}, v{T+2}, v{T}, vcc")
        if "eo" in Cfg.x:
            a.e(f"s_xor_b32 s{sT0}, s{sR}, s{sCb}")
            a.e(f"s_and_b32 s{sT0}, s{sT0}, 1")
            a.e(f"s_lshr_b32 s{sT1}, s{sCb}, 1")
            a.e(f"s_or_b32 s{sT0}, s{sT0}, s{sT1}")
            a.e(f"s_cselect_b32 s{sT0}, {hex(OOB)}, 0")
            a.e(f"v_or_b32 v{T}, s{sT0}, v{T}")
        a.e(f"s_lshl_b32 s{sJ+7}, s{sArr}, 14")
        a.e(f"s_add_u32 s{sJ+7}, s{sJ+7}, {hex(WS_XE)}")
        a.e(f"s_lshl_b32 s{sT0}, s{sQ}, 8")
        a.e(f"s_add_u32 s{sJ+8}, s{sJ+7}, s{sT0}")
    steps.append(esetup)
    for j in range(8):
        steps.append(lambda a, j=j: a.e(f"buffer_load_dwordx4 {vr(vJE+4*j,4)}, v{T}, {sr(sWS,4)}, s{sJ+8} offen offset:{32*j} sc1", tag="al"))
    def nine(a):
        a.e(f"s_cmp_lg_u32 s{sQ}, 0")
        a.e(f"s_cselect_b32 s{sT0}, {hex(OOB)}, 0")
        a.e(f"v_lshlrev_b32 v{T+1}, 26, v{T+1}")
        a.e(f"v_or_b32 v{T+1}, s{sT0}, v{T+1}")
        a.e(f"v_or_b32 v{T}, v{T}, v{T+1}")
        a.e(f"buffer_load_ushort v{vJE+32}, v{T}, {sr(sWS,4)}, s{sJ+7} offen offset:1024 sc1")
        a.e(f"v_bfrev_b32 v{T}, v{vLANE}")
        a.e(f"v_bfe_u32 v{T}, v{T}, 27, 3")
        a.e(f"v_and_b32 v{T+2}, 3, v{vLANE}")
        a.e(f"v_lshl_add_u32 v{T}, v{T}, 2, v{T+2}")
        a.e(f"v_lshl_or_b32 v{T}, v{T}, 1, v{T+1}")
        a.e(f"s_lshl_b32 s{sT0}, s{sTt}, 6")
        a.e(f"s_add_u32 s{sT1}, s{sJ+6}, {512*1024}")
        a.e(f"s_add_u32 s{sT2}, s{sT1}, s{sT0}")
        a.e(f"buffer_load_ushort v{vX9}, v{T}, {sr(sWS,4)}, s{sT2} offen sc1")
        a.e(f"s_xor_b32 s{sT2}, s{sT2}, 64")
        a.e(f"buffer_load_ushort v{vX9+4}, v{T}, {sr(sWS,4)}, s{sT2} offen sc1", tag="al")
    steps.append(nine)
    return steps

def job_a(a):
    T = vT
    a.e(f"v_lshrrev_b32 v{T}, 5, v{vLANE}")
    a.e(f"v_lshlrev_b32 v{T}, 9, v{T}")
    a.e(f"v_bfe_u32 v{T+1}, v{vLANE}, 2, 2")
    a.e(f"v_lshl_add_u32 v{T}, v{T+1}, 6, v{T}")
    a.e(f"v_and_b32 v{T+1}, 1, v{vLANE}")
    a.e(f"v_lshl_add_u32 v{T}, v{T+1}, 5, v{T}")
    a.e(f"v_bfe_u32 v{T+1}, v{vLANE}, 1, 1")
    a.e(f"v_lshl_add_u32 v{T}, v{T+1}, 4, v{T}")
    a.e(f"v_bfe_u32 v{T+1}, v{vLANE}, 4, 1")
    a.e(f"v_lshl_add_u32 v{T}, v{T+1}, 3, v{T}")
    a.e(f"s_lshl_b32 s{sT0}, s{sQ}, 14")
    a.e(f"s_lshl_b32 s{sT1}, s{sTt}, 10")
    a.e(f"s_add_u32 s{sT0}, s{sT0}, s{sT1}")
    a.e(f"v_add_u32 v{vA0}, s{sT0}, v{T}")
    a.e(f"v_xor_b32 v{vA1}, 1024, v{vA0}")
    def rd(j):
        for sg in range(2):
            for t in range(2):
                a.e(f"ds_read_b64_tr_b16 {vr(vJx + (j%2)*8 + 4*sg + 2*t, 2)}, v{[vA0, vA1][sg]} offset:{j*2048 + 256*t}", tag=("xa", j))
    a.wait(vm="al")
    a.e("s_barrier")
    Cfg.s0()
    vm0 = list(a.vm)
    rd(0); rd(1)
    for r in (vX9 + 1, vX9 + 2, vX9 + 3, vX9 + 5, vX9 + 6, vX9 + 7, vJE + 33, vJE + 34, vJE + 35):
        a.e(f"v_mov_b32 v{r}, 0")
    a.e(f"v_lshlrev_b32 v{T}, 2, v{vSel}")
    a.e(f"v_and_b32 v{T}, 0x80000000, v{T}")
    for i in range(4): a.e(f"v_or_b32 v{vSelS+i}, v{T}, v{vSel}")
    a.e(f"s_xor_b32 s{sT0}, s{sR}, s{sCb}")
    a.e(f"s_bitcmp1_b32 s{sT0}, 0")
    a.e("s_cbranch_scc1 L_jaY")
    lg = list(a.lg)
    z = vr(vJz, 4)
    for ver in "XY":
        if ver == "Y":
            a.e("L_jaY:"); a.lg = list(lg)
        for sg in range(2):
            a.e(f"v_mfma_f32_32x32x16_bf16 {vr(vJacc+16*sg,16)}, {vr(vX9+4*sg,4)}, {vr(vJC+32,4)}, 0")
        if ver == "X": a.e(f"v_mfma_f32_16x16x32_bf16 {z}, {vr(vJE+32,4)}, {vr(vJC+32,4)}, 0")
        else:          a.e(f"v_mfma_f32_16x16x32_bf16 {z}, {vr(vSelS,4)}, {vr(vX9,4)}, 0")
        for j in range(8):
            a.wait(lg=("xa", j))
            x = vJx + (j % 2) * 8
            for sg in range(2):
                a.e(f"v_mfma_f32_32x32x16_bf16 {vr(vJacc+16*sg,16)}, {vr(x+4*sg,4)}, {vr(vJC+4*j,4)}, {vr(vJacc+16*sg,16)}")
            if ver == "X": a.e(f"v_mfma_f32_16x16x32_bf16 {z}, {vr(vJE+4*j,4)}, {vr(vJC+4*j,4)}, {z}")
            else:          a.e(f"v_mfma_f32_16x16x32_bf16 {z}, {vr(vSelS,4)}, {vr(x,4)}, {z}")
            if j + 2 < 8: rd(j + 2)
        a.e(f"v_and_b32 v{T}, 31, v{vLANE}")
        a.e(f"v_lshrrev_b32 v{T+1}, 5, v{vLANE}")
        if ver == "X":
            a.e(f"s_cmp_ge_u32 s{sCb}, 2")
            a.e("s_cbranch_scc1 L_jaC")
            a.e(f"v_lshlrev_b32 v{T+3}, 4, v{T+1}")
            a.e(f"v_lshl_add_u32 v{T+2}, v{T}, 6, v{T+3}")
            a.e(f"s_lshr_b32 s{sT0}, s{sArr}, 1")
            a.e(f"s_lshl_b32 s{sT0}, s{sT0}, 16")
            a.e(f"s_lshl2_add_u32 s{sT0}, s{sQ}, s{sT0}")
            a.e(f"s_add_u32 s{sT0}, s{sT0}, {hex(WS_ZC)}")
            a.e(f"s_lshl_b32 s{sT1}, s{sTrow}, 5")
            a.e(f"s_add_u32 s{sT1}, s{sT1}, s{sT0}")
            def zsum():
                a.e(f"v_add_f32 v{vJz}, v{vJz}, v{vJz+1}")
                a.e(f"v_add_f32 v{vJz+2}, v{vJz+2}, v{vJz+3}")
                a.e(f"v_add_f32 v{T+4}, v{vJz}, v{vJz+2}")
            zsum()
            a.e(f"buffer_store_dword v{T+4}, v{T+2}, {sr(sWS,4)}, s{sT1} offen sc1")
            a.e(f"s_or_b32 s{sT1}, s{sH}, s{sTrow}")
            a.e(f"s_cmp_lg_u32 s{sT1}, 0")
            a.e("s_cbranch_scc1 L_jaC")
            for i in range(4): a.e(f"v_mov_b32 v{vSelS+i}, 0xbf803f80")
            for j in range(9):
                a.e(f"v_mfma_f32_16x16x32_bf16 {z}, {vr(vJE+4*j,4)}, {vr(vSelS,4)}, {z if j else 0}")
            a.e(f"s_add_u32 s{sT1}, s{sT0}, {1024*32}")
            zsum()
            a.e(f"buffer_store_dword v{T+4}, v{T+3}, {sr(sWS,4)}, s{sT1} offen sc1")
            a.e("s_branch L_jaC")
        else:
            a.e(f"s_lshr_b32 s{sT0}, s{sR}, 1")
            a.e(f"s_or_b32 s{sT0}, s{sT0}, s{sArr}")
            a.e(f"s_cmp_lg_u32 s{sT0}, 0")
            a.e("s_cbranch_scc1 L_jaC")
            a.e(f"v_lshrrev_b32 v{T+2}, 4, v{T}")
            a.e(f"v_mul_u32_u24 v{T+2}, {hex(UVSTR)}, v{T+2}")
            a.e(f"v_bfe_u32 v{T+3}, v{T}, 2, 1")
            a.e(f"v_lshl_add_u32 v{T+2}, v{T+3}, 9, v{T+2}")
            a.e(f"v_bfe_u32 v{T+3}, v{T}, 3, 1")
            a.e(f"v_lshl_add_u32 v{T+2}, v{T+3}, 3, v{T+2}")
            a.e(f"v_and_b32 v{T+3}, 3, v{T}")
            a.e(f"v_lshl_add_u32 v{T+2}, v{T+3}, 1, v{T+2}")
            a.e(f"v_lshl_or_b32 v{T+2}, v{T+1}, 30, v{T+2}")
            a.e(f"s_lshl1_add_u32 s{sT0}, s{sCb}, s{sTt}")
            a.e(f"s_lshl_b32 s{sT0}, s{sT0}, 10")
            a.e(f"s_and_b32 s{sT1}, s{sQ}, 1")
            a.e(f"s_lshl_b32 s{sT1}, s{sT1}, 8")
            a.e(f"s_add_u32 s{sT0}, s{sT0}, s{sT1}")
            a.e(f"s_lshr_b32 s{sT1}, s{sQ}, 1")
            a.e(f"s_lshl4_add_u32 s{sT0}, s{sT1}, s{sT0}")
            a.e(f"s_add_u32 s{sT0}, s{sT0}, {hex(WS_UV + 32*16384)}")
            a.e(f"v_cvt_pk_bf16_f32 v{T+4}, v{vJz}, v{vJz}")
            a.e(f"buffer_store_short v{T+4}, v{T+2}, {sr(sWS,4)}, s{sT0} offen sc1")
    a.e("L_jaC:")
    a.vm = vm0
    Cfg.s0()
    js = "js" in Cfg.x
    vW, vG, sG_ = (vA0, vA1, sJ + 13) if js else (T + 2, T + 3, sT0)
    if not js: a.e("s_barrier")
    a.e(f"s_lshl_b32 s{sT0}, s{sWAVE}, 13")
    a.e(f"v_add_u32 v{vW}, s{sT0}, v{vL16}")
    if not js:
        a.e("s_nop 7")
        for c in range(8): ja_write(a, c, vW)
        ja_raddr(a, vW)
    a.e(f"v_lshrrev_b32 v{vG}, 4, v{T}")
    a.e(f"v_lshlrev_b32 v{vG}, 14, v{vG}")
    a.e(f"v_lshl_add_u32 v{vG}, v{T+1}, 9, v{vG}")
    a.e(f"v_and_b32 v{T}, 15, v{T}")
    a.e(f"v_lshl_add_u32 v{vG}, v{T}, 4, v{vG}")
    a.e(f"s_and_b32 s{sT0}, s{sArr}, 2")
    a.e(f"s_and_b32 s{sT1}, s{sQ}, 1")
    a.e(f"s_add_u32 s{sT0}, s{sT0}, s{sT1}")
    a.e(f"s_mul_i32 s{sT0}, s{sT0}, {hex(UVSTR)}")
    a.e(f"s_lshr_b32 s{sT1}, s{sTrow}, 6")
    a.e(f"s_lshl_b32 s{sT1}, s{sT1}, 15")
    a.e(f"s_add_u32 s{sT0}, s{sT0}, s{sT1}")
    a.e(f"s_lshr_b32 s{sT1}, s{sQ}, 1")
    a.e(f"s_xor_b32 s{sT1}, s{sT1}, s{sTt}")
    a.e(f"s_lshl1_add_u32 s{sT1}, s{sCb}, s{sT1}")
    a.e(f"s_lshl_b32 s{sT1}, s{sT1}, 10")
    a.e(f"s_add_u32 s{sT0}, s{sT0}, s{sT1}")
    a.e(f"s_and_b32 s{sT1}, s{sArr}, 1")
    a.e(f"s_lshl_b32 s{sT1}, s{sT1}, 8")
    a.e(f"s_add_u32 s{sT0}, s{sT0}, s{sT1}")
    a.e(f"s_add_u32 s{sG_}, s{sT0}, {hex(WS_UV)}")
    if js: return
    a.e("s_waitcnt lgkmcnt(0)")
    a.e("s_barrier")
    for w in range(4): ja_read(a, w, vW)
    for w in range(1, 4): ja_add(a, w)
    ja_store(a, vG, sG_)
def ja_write(a, c, vW):
    a.e(f"ds_write_b128 v{vW}, {vr(vJacc+4*c,4)} offset:{c*1024}", tag="jw")
def ja_raddr(a, vW):
    a.e(f"s_lshl_b32 s{sT0}, s{sTt}, 15")
    a.e(f"s_lshl_b32 s{sT1}, s{sQ}, 11")
    a.e(f"s_add_u32 s{sT0}, s{sT0}, s{sT1}")
    a.e(f"v_add_u32 v{vW}, s{sT0}, v{vL16}")
def ja_read(a, w, vW):
    for c in range(2):
        a.e(f"ds_read_b128 {vr(vJC+8*w+4*c,4)}, v{vW} offset:{w*8192 + c*1024}", tag=("ra", w))
def ja_add(a, w):
    a.wait(lg=("ra", w))
    for i in range(8): a.e(f"v_add_f32 v{vJC+i}, v{vJC+i}, v{vJC+8*w+i}")
def ja_store(a, vG, sG_):
    pack(a, vJC + 8, vJC, 4)
    a.e(f"buffer_store_dwordx4 {vr(vJC+8,4)}, v{vG}, {sr(sWS,4)}, s{sG_} offen sc1", tag="uv")

def poll256_issue(a, off, reg):
    if isinstance(off, tuple):
        a.e(f"buffer_load_dwordx4 {vr(reg,4)}, v{off[0]}, {sr(sWS,4)}, s{off[1]} offen sc1", tag="poll")
        return
    a.e(f"s_mov_b32 s{sT0}, {hex(off)}")
    a.e(f"buffer_load_dwordx4 {vr(reg,4)}, v{vL16}, {sr(sWS,4)}, s{sT0} offen sc1", tag="poll")
def poll256_check(a, off, reg, lbl, slp=8):
    a.e(f"s_mov_b32 s{sSpin}, 0")
    a.e(f"{lbl}_spin:")
    a.e(f"v_xor_b32 v{reg}, s{sTAG}, v{reg}")
    a.e(f"v_xor_b32 v{reg+1}, s{sTAG}, v{reg+1}")
    a.e(f"v_xor_b32 v{reg+2}, s{sTAG}, v{reg+2}")
    a.e(f"v_xor_b32 v{reg+3}, s{sTAG}, v{reg+3}")
    a.e(f"v_or3_b32 v{reg}, v{reg}, v{reg+1}, v{reg+2}")
    a.e(f"v_or_b32 v{reg}, v{reg}, v{reg+3}")
    a.e(f"v_cmp_ne_u32 vcc, 0, v{reg}")
    a.e(f"s_cmp_eq_u64 vcc, 0")
    a.e(f"s_cbranch_scc1 {lbl}_ok")
    vm = list(a.vm)
    a.e(f"s_sleep {slp}")
    poll256_issue(a, off, reg)
    a.e("s_waitcnt vmcnt(0)")
    a.e(f"s_add_u32 s{sSpin}, s{sSpin}, 1")
    a.e(f"s_cmp_lt_u32 s{sSpin}, 0x40000")
    a.e(f"s_cbranch_scc1 {lbl}_spin")
    a.e(f"{lbl}_ok:")
    a.vm = vm

def rd_k(a, t):
    for f in range(2):
        a.e(f"ds_read_b128 {vr(vK+4*f,4)}, v{vKVa} offset:{t*12288 + f*1024}", tag="K")
def rd_v(a, t, f):
    a.e(f"ds_read_b128 {vr(vV+4*f,4)}, v{vKVa2} offset:{t*12288 + (2+f)*1024}", tag=f"V{f+1}")
vKVa2 = 20

vSm, vSa, vSi = 4, 8, 23
def sm_setup(a):
    a.e(f"v_and_b32 v{vSi}, 4, v{vLANE}")
    a.e(f"v_cmp_eq_u32 vcc, 0, v{vSi}")
    a.e(f"v_mov_b32 v{vSi}, 0x3f803f80")
    for i in range(2): a.e(f"v_cndmask_b32 v{vSa+i}, 0, v{vSi}, vcc")
    for i in range(2): a.e(f"v_xor_b32 v{vSa+2+i}, v{vSi}, v{vSa}")
    a.e(f"v_and_b32 v{vSi}, 1, v{vLANE}")
    a.e(f"v_mul_u32_u24 v{vSi}, 0xaaaa, v{vSi}")
    a.e(f"v_or_b32 v{vSi}, 0x4444, v{vSi}")
    for i in range(4): a.e(f"v_mov_b32 v{vSm+i}, 0")
def att_body(a, par, hooks, last=False, sm=False):
    S = vS[par]; N = vS[1 - par]
    def ex(*idx):
        for i in idx: a.e(f"v_exp_f32 v{S+i}, v{S+i}")
    def cv(j): a.e(f"v_cvt_pk_bf16_f32 v{vP+j}, v{S+2*j}, v{S+2*j+1}")
    def hk(p):
        for f in hooks.get(p, []): f()
    S1 = lambda: last or a.e(f"v_mfma_f32_32x32x16_bf16 {vr(N,16)}, {vr(vK,4)}, {vr(vQ,4)}, {vr(vM,16)}")
    S2 = lambda: last or a.e(f"v_mfma_f32_32x32x16_bf16 {vr(N,16)}, {vr(vK+4,4)}, {vr(vQ+4,4)}, {vr(N,16)}")
    PV = lambda f: a.e(f"v_mfma_f32_32x32x16_bf16 {vr(vO,16)}, {vr(vV+4*f,4)}, {vr(vP+4*f,4)}, {vr(vO,16)}")
    LS = lambda f: a.e(f"v_mfma_f32_16x16x32_bf16 {vr(vLs,4)}, {vr(vSel,4)}, {vr(vP+4*f,4)}, {vr(vLs,4)}")
    if "b2" in Cfg.x:
        a.wait(lg=["K", "V2"])
        S1(); ex(0, 1); hk(1); ex(2, 3); cv(0); cv(1)
        PV(1); ex(4, 5); LS(1); ex(6, 7); cv(2); cv(3)
        S2(); hk(2); ex(8, 9, 10, 11); cv(4); cv(5)
        a.wait(lg="V1")
        PV(0); ex(12, 13); hk(3); LS(0); hk(4); ex(14, 15); cv(6); cv(7)
        return
    if sm:
        SM = lambda: a.e(f"v_smfmac_f32_16x16x64_bf16 {vr(vSm,4)}, {vr(vSa,4)}, {vr(vP,8)}, v{vSi}")
        a.wait(lg=["K", "V2"])
        if "m3" in Cfg.x:
            S1(); ex(0, 1); hk(1); ex(2, 3); cv(0); cv(1); ex(4)
            PV(1); ex(5, 6, 7); cv(2); cv(3); ex(8)
            S2(); hk(2); ex(9); SM(); ex(10, 11); cv(4)
            a.wait(lg="V1")
            PV(0); hk(3); cv(5); ex(12, 13); hk(4); ex(14, 15); cv(6); cv(7)
            return
        if "m4" in Cfg.x:
            S1(); ex(0, 1); hk(1); ex(2, 3); cv(0); cv(1)
            PV(1); ex(4, 5, 6, 7); cv(2); cv(3)
            S2(); hk(2); ex(8, 9, 10, 11)
            a.wait(lg="V1")
            PV(0); hk(3); ex(12, 13); SM(); hk(4); ex(14, 15); cv(4); cv(5); cv(6); cv(7)
            return
        if "m5" in Cfg.x:
            S1(); ex(0, 1); hk(1); cv(0); ex(2, 3); cv(1)
            PV(1); ex(4, 5); cv(2); ex(6, 7); cv(3)
            S2(); hk(2); ex(8, 9); SM(); ex(10); cv(4); ex(11); cv(5)
            a.wait(lg="V1")
            PV(0); hk(3); ex(12, 13); hk(4); cv(6); ex(14, 15); cv(7)
            return
        if "m2" in Cfg.x:
            S1(); ex(0, 1); hk(1); ex(2, 3); cv(0); cv(1)
            PV(1); ex(4, 5, 6, 7); cv(2); cv(3)
            S2(); hk(2); ex(8, 9); SM(); ex(10, 11); cv(4); cv(5)
            a.wait(lg="V1")
            PV(0); hk(3); ex(12, 13); hk(4); ex(14, 15); cv(6); cv(7)
            return
        S1(); ex(0, 1); hk(1); ex(2, 3); cv(0); cv(1); ex(4)
        PV(1); ex(5, 6, 7); cv(2); cv(3)
        S2(); hk(2); ex(8, 9, 10); SM(); ex(11); cv(4); cv(5); ex(12)
        a.wait(lg="V1")
        PV(0); hk(3); ex(13); hk(4); ex(14, 15); cv(6); cv(7)
        return
    if "b3" in Cfg.x:
        a.wait(lg=["K", "V2"])
        S1(); ex(0, 1); hk(1); ex(2, 3); LS(1); cv(0); cv(1); ex(4)
        PV(1); ex(5, 6, 7); cv(2); cv(3)
        S2(); hk(2); ex(8, 9, 10, 11); LS(0); cv(4); cv(5); ex(12)
        a.wait(lg="V1")
        PV(0); hk(3); ex(13); hk(4); ex(14, 15); cv(6); cv(7)
        return
    a.wait(lg=["K", "V2"])
    if not last: a.e(f"v_mfma_f32_32x32x16_bf16 {vr(N,16)}, {vr(vK,4)}, {vr(vQ,4)}, {vr(vM,16)}")
    ex(0, 1)
    hk(1)
    a.e(f"v_mfma_f32_32x32x16_bf16 {vr(vO,16)}, {vr(vV+4,4)}, {vr(vP+4,4)}, {vr(vO,16)}")
    ex(2, 3)
    a.e(f"v_mfma_f32_16x16x32_bf16 {vr(vLs,4)}, {vr(vSel,4)}, {vr(vP+4,4)}, {vr(vLs,4)}")
    ex(4, 5); cv(0); cv(1)
    if not last: a.e(f"v_mfma_f32_32x32x16_bf16 {vr(N,16)}, {vr(vK+4,4)}, {vr(vQ+4,4)}, {vr(N,16)}")
    hk(2)
    ex(6, 7); cv(2); ex(8); cv(3); ex(9, 10)
    a.wait(lg="V1")
    a.e(f"v_mfma_f32_32x32x16_bf16 {vr(vO,16)}, {vr(vV,4)}, {vr(vP,4)}, {vr(vO,16)}")
    ex(11, 12)
    hk(3)
    a.e(f"v_mfma_f32_16x16x32_bf16 {vr(vLs,4)}, {vr(vSel,4)}, {vr(vP,4)}, {vr(vLs,4)}")
    hk(4)
    ex(13, 14); cv(4); ex(15); cv(5); cv(6); cv(7)

def kv_dma(a, q):
    a.e(f"buffer_load_dwordx4 v{vL16}, {sr(sWS,4)}, s{sKVsrc} offen offset:{q*1024} sc1 lds", tag="kv")

def kv_dma_setup(a):
    a.e(f"s_add_u32 s{sT0}, s{sKVsrc}, {8*4096}")
    a.e(f"s_and_b32 s{sT0}, s{sT0}, 0x3ffff")
    a.e(f"s_andn2_b32 s{sKVsrc}, s{sKVsrc}, 0x3ffff")
    a.e(f"s_or_b32 s{sKVsrc}, s{sKVsrc}, s{sT0}")
    a.e(f"s_add_u32 s{sSlot}, s{sSlot}, 4096")
    a.e(f"s_cmp_eq_u32 s{sSlot}, {3*4096}")
    a.e(f"s_cselect_b32 s{sSlot}, 0, s{sSlot}")
    a.e(f"s_add_u32 m0, s{sXl}, s{sSlot}")

def attention(a, st):
    a.e(f"s_mov_b32 s{sKVsrc}, s{sKVo}")
    a.e(f"s_mov_b32 s{sSlot}, 0")
    a.e(f"s_mov_b32 s{sKVl}, 65536")
    def adv_k(second_half_next):
        if second_half_next:
            a.e(f"v_add_u32 v{vKVa}, 49152, v{vKVa}")
        else:
            a.e(f"s_add_u32 s{sKVl}, s{sKVl}, 4096")
            a.e(f"s_cmp_eq_u32 s{sKVl}, {65536+3*4096}")
            a.e(f"s_cselect_b32 s{sKVl}, 65536, s{sKVl}")
            a.e(f"v_add_u32 v{vKVa}, s{sKVl}, v{vL16}")
    def group(g, extra):
        for t in range(8):
            h = {1: [], 2: [], 3: [], 4: []}
            tk = (t + 2) % 4
            last = g == 7 and t >= 6
            for f in extra.get((t, 0), []): f()
            if tk == 0 and not last:
                if t == 6:
                    h[2].append(lambda: (a.wait(vm=[("kv", g + 1)] + (["uv"] if g == 1 else [])), a.e("s_barrier")))
                h[2].append(lambda t=t: adv_k(t == 2))
            if not last: h[2].append(lambda tk=tk: rd_k(a, tk))
            h[2].append(lambda t=t: rd_v(a, t % 4, 1))
            if not (g == 7 and t == 7):
                if (t + 1) % 4 == 0:
                    h[4].append(lambda: a.e(f"v_mov_b32 v{vKVa2}, v{vKVa}"))
                h[4].append(lambda t=t: rd_v(a, (t + 1) % 4, 0))
            for p in (1, 2, 3, 4):
                h[p] += extra.get((t, p), [])
            att_body(a, t % 2, h, g == 7 and t == 7, sm="sm" in Cfg.x and (g, t) >= (0, 7))
    def flag_store():
        a.wait(vm="kvst")
        a.e(f"v_mov_b32 v{vT}, s{sTAG}")
        a.e(f"s_lshl_b32 s{sT0}, s{sTt}, 30")
        a.e(f"v_lshl_or_b32 v{vT+1}, v{vL16}, 5, s{sT0}")
        a.e("s_mov_b64 exec, 3")
        a.e(f"buffer_store_dword v{vT}, v{vT+1}, {sr(sWS,4)}, s{sT3} offen sc1")
        a.e("s_mov_b64 exec, -1")
    def poll_issue():
        a.e(f"v_and_b32 v{vT+4}, 7, v{vLANE}")
        a.e(f"v_lshlrev_b32 v{vT+4}, 2, v{vT+4}")
        a.e(f"buffer_load_dword v{vT+5}, v{vT+4}, {sr(sWS,4)}, s{sF1o} offen sc1", tag="kpoll")
    def poll_check():
        a.e(f"s_mov_b32 s{sSpin}, 0")
        a.wait(vm="kpoll")
        vm = list(a.vm)
        a.e("L_kvspin:")
        a.e(f"v_cmp_eq_u32 vcc, s{sTAG}, v{vT+5}")
        a.e("s_cmp_eq_u64 vcc, -1")
        a.e("s_cbranch_scc1 L_kvok")
        a.e(f"buffer_load_dword v{vT+5}, v{vT+4}, {sr(sWS,4)}, s{sF1o} offen sc1")
        a.e("s_waitcnt vmcnt(0)")
        a.e(f"s_add_u32 s{sSpin}, s{sSpin}, 1")
        a.e(f"s_cmp_lt_u32 s{sSpin}, 0x40000")
        a.e("s_cbranch_scc1 L_kvspin")
        a.e("L_kvok:")
        a.vm = vm
    def dma(g, q):
        if q == 0: kv_dma_setup(a)
        kv_dma(a, q); a.vm[-1] = ("kv", g)
    def chk(off, lbl):
        a.wait(vm="poll"); poll256_check(a, off, vJx, lbl)
    EX = [dict() for _ in range(8)]
    def at(g, t, p, f, *x): EX[g].setdefault((t, p), []).append(lambda: f(*x))
    def spread(items, n0, per=2):
        for i, (f, *x) in enumerate(items):
            n = n0 + i // per
            at(n // 8, n % 8, {1: [1], 2: [1, 3], 4: [1, 2, 3, 4]}[per][i % per], f, *x)
    steps = a_loads()
    s0 = st if "g0" in Cfg.x else (lambda: None)
    Cfg.s0 = s0
    at(0, 1, 1, s0); at(0, 1, 1, flag_store); at(0, 1, 1, s0); at(0, 1, 1, chk, FL_0, "L_pf0"); at(0, 1, 1, s0); at(0, 4, 3, s0); at(0, 6, 0, s0); at(0, 1, 1, wf_stores, a); at(0, 1, 1, steps[0], a)
    for i in range(8): at(0, 1 + (i + 1) // 4, 1 + (i + 1) % 4, steps[1 + i], a)
    at(0, 3, 1, poll_issue); at(0, 3, 1, steps[9], a)
    for i in range(9): at(0, 3 + (i // 2 + 1) // 4, 1 + (i // 2 + 1) % 4, steps[10 + i], a)
    at(0, 4, 3, poll_check); at(0, 4, 3, st)
    for q in range(4): at(0, 4, 3, dma, 1, q)
    for q in range(4): at(0, 5, 1 + q, dma, 2, q)
    at(0, 6, 0, job_a, a); at(0, 6, 0, s0); at(0, 6, 3, s0)
    if "sm" in Cfg.x: at(0, 6, 1, sm_setup, a)
    if "js" in Cfg.x:
        for c, (t, p) in enumerate([(6, 3), (6, 4), (7, 1), (7, 3)]):
            at(0, t, p, ja_write, a, 2 * c, vA0); at(0, t, p, ja_write, a, 2 * c + 1, vA0)
        at(0, 7, 4, ja_raddr, a, vA0)
        at(1, 0, 3, lambda: (a.wait(lg="jw"), a.e("s_barrier")))
        for w, (t, p) in enumerate([(0, 3), (0, 4), (1, 1), (1, 3)]): at(1, t, p, ja_read, a, w, vA0)
        for w, (t, p) in enumerate([(2, 1), (2, 3), (3, 1)]): at(1, t, p, ja_add, a, w + 1)
        at(1, 3, 3, ja_store, a, vA1, sJ + 13)
    for g in range(1, 6):
        for q, (t, p) in enumerate([(6, 3), (6, 4), (7, 1), (7, 3)]): at(g, t, p, dma, g + 2, q)
    at(1, 0, 1, b_setup, a)
    spread([(df_load, a, j) for j in range(8)], 16, 1)
    spread([(wf_load, a, n) for n in range(28, 32)], 36, 2)
    at(1, 6, 3, flag_wg, a, FL_A, "L_fa")
    at(3, 5, 1, poll256_issue, a, FL_A, vJx)
    at(4, 0, 1, chk, FL_A, "L_pa"); at(4, 0, 1, uv_setup, a)
    spread([(uv_load, a, j) for j in range(8)], 32, 2)
    at(4, 4, 1, uv_extra, a)
    spread([(b_mfma, a, j) for j in range(8)], 40, 2)
    at(5, 4, 1, b_extra, a); at(5, 5, 1, b_write, a)
    spread([(wf_load, a, n) for n in range(0, 4)], 44, 2)
    spread([(wf_load, a, n) for n in range(4, 28)], 48, 2)
    for g in range(8):
        group(g, EX[g])
        if g == 0 or (g < 7 and 'gs' in Cfg.x and 'g0' not in Cfg.x): st()
    a.wait(lg="V2")
    a.e(f"v_mfma_f32_32x32x16_bf16 {vr(vO,16)}, {vr(vV+4,4)}, {vr(vP+4,4)}, {vr(vO,16)}")
    a.e(f"v_mfma_f32_16x16x32_bf16 {vr(vLs,4)}, {vr(vSel,4)}, {vr(vP+4,4)}, {vr(vLs,4)}")
    st()
    if "sm" in Cfg.x:
        a.e(f"v_add_f32 v{vSm}, v{vSm}, v{vSm+1}")
        a.e(f"v_add_f32 v{vLs}, v{vLs}, v{vSm}")
    o_store(a)
    a.e(f"v_mfma_f32_16x16x32_bf16 {vr(vS[0],4)}, {vr(vSel,4)}, {vr(vP,4)}, 0")
    a.e(f"v_mfma_f32_16x16x32_bf16 {vr(vS[0],4)}, {vr(vSel,4)}, {vr(vP+4,4)}, {vr(vS[0],4)}")
    a.e(f"s_mov_b32 s{sT2}, {hex(f2u(2.0**(-30 if 'fb' in Cfg.x else 100)))}")
    a.e(f"v_cmp_nge_f32_e64 {sr(sT0,2)}, s{sT2}, v{vLs}")
    a.e(f"v_mov_b32 v{vT}, 0x207")
    a.e(f"v_cmp_class_f32 vcc, v{vS[0]}, v{vT}")
    a.e(f"s_or_b64 vcc, vcc, {sr(sT0,2)}")
    a.e("s_cbranch_scc1 L_fb")
    a.e("L_fbret:")
def o_store(a):
    a.e(f"v_rcp_f32 v{vT}, v{vLs}")
    for i in range(16): a.e(f"v_mul_f32 v{vO+i}, v{vT}, v{vO+i}")
    pack(a, vP, vO, 8)
    for f in range(2):
        a.e(f"buffer_store_dwordx4 {vr(vP+4*f,4)}, v{vL16}, {sr(sWS,4)}, s{sOFo} offen offset:{f*1024} sc1", tag="ost")
def fallback(a):
    S = vS[0]
    a.e("L_fb:")
    a.e("s_waitcnt vmcnt(0) lgkmcnt(0)")
    a.e(f"s_lshl_b32 s{sT0}, s{sH}, 18")
    a.e(f"s_add_u32 s{sT1}, s{sT0}, {hex(1 << 18)}")
    a.e(f"v_mov_b32 v{vT}, 0xff800000")
    a.e("L_fb1:")
    for f in range(2):
        a.e(f"buffer_load_dwordx4 {vr(vK+4*f,4)}, v{vL16}, {sr(sWS,4)}, s{sT0} offen offset:{f*1024} sc1")
    a.e("s_waitcnt vmcnt(0)")
    a.e(f"v_mfma_f32_32x32x16_bf16 {vr(S,16)}, {vr(vK,4)}, {vr(vQ,4)}, 0")
    a.e(f"v_mfma_f32_32x32x16_bf16 {vr(S,16)}, {vr(vK+4,4)}, {vr(vQ+4,4)}, {vr(S,16)}")
    for i in range(0, 16, 2):
        a.e(f"v_max3_f32 v{vT}, v{vT}, v{S+i}, v{S+i+1}")
    a.e(f"s_add_u32 s{sT0}, s{sT0}, 4096")
    a.e(f"s_cmp_lt_u32 s{sT0}, s{sT1}")
    a.e("s_cbranch_scc1 L_fb1")
    a.e(f"v_mov_b32 v{vT+1}, v{vT}")
    a.e(f"v_permlane32_swap_b32 v{vT}, v{vT+1}")
    a.e(f"v_max_f32 v{vT}, v{vT}, v{vT+1}")
    for i in range(16): a.e(f"v_sub_f32 v{vM+i}, 0, v{vT}")
    for i in range(16): a.e(f"v_mov_b32 v{vO+i}, 0")
    for i in range(4): a.e(f"v_mov_b32 v{vLs+i}, 0")
    a.e(f"s_lshl_b32 s{sT0}, s{sH}, 18")
    a.e("L_fb2:")
    for f in range(4):
        a.e(f"buffer_load_dwordx4 {vr(vK+4*f,4)}, v{vL16}, {sr(sWS,4)}, s{sT0} offen offset:{f*1024} sc1")
    a.e("s_waitcnt vmcnt(0)")
    a.e(f"v_mfma_f32_32x32x16_bf16 {vr(S,16)}, {vr(vK,4)}, {vr(vQ,4)}, {vr(vM,16)}")
    a.e(f"v_mfma_f32_32x32x16_bf16 {vr(S,16)}, {vr(vK+4,4)}, {vr(vQ+4,4)}, {vr(S,16)}")
    for i in range(16): a.e(f"v_exp_f32 v{S+i}, v{S+i}")
    pack(a, vP, S, 8)
    for f in range(2):
        a.e(f"v_mfma_f32_32x32x16_bf16 {vr(vO,16)}, {vr(vV+4*f,4)}, {vr(vP+4*f,4)}, {vr(vO,16)}")
        a.e(f"v_mfma_f32_16x16x32_bf16 {vr(vLs,4)}, {vr(vSel,4)}, {vr(vP+4*f,4)}, {vr(vLs,4)}")
    a.e(f"s_add_u32 s{sT0}, s{sT0}, 4096")
    a.e(f"s_cmp_lt_u32 s{sT0}, s{sT1}")
    a.e("s_nop 15")
    a.e("s_cbranch_scc1 L_fb2")
    o_store(a)
    a.e("s_branch L_fbret")

sTB, sWFo = sJ + 11, sJ + 12
vBD, vBU, vBacc, vBR = 136, 168, 200, 216
TS = 4352
sDo, sUo, vUa = sJ + 6, sJ + 8, 22
def b_setup(a):
    a.e(f"s_and_b32 s{sT0}, s2, 7")
    a.e(f"s_bfe_u32 s{sT1}, s2, 0x20003")
    a.e(f"s_lshl2_add_u32 s{sTB}, s{sT0}, s{sT1}")
    a.e(f"s_lshr_b32 s{sT0}, s{sWAVE}, 1")
    a.e(f"s_lshl3_add_u32 s{sT0}, s{sT0}, s{sCb}")
    a.e(f"s_and_b32 s{sT1}, s{sWAVE}, 1")
    a.e(f"s_lshl1_add_u32 s{sT0}, s{sT0}, s{sT1}")
    a.e(f"s_lshl_b32 s{sT0}, s{sT0}, 13")
    a.e(f"s_add_u32 s{sDo}, s{sT0}, {hex(WS_DF)}")
    a.e(f"s_add_u32 s{sDo+1}, s{sDo}, 4096")
    a.e(f"s_lshl2_add_u32 s{sT0}, s{sCb}, s{sQ}")
    a.e(f"s_lshl{3 if 'hs' in Cfg.x else 1}_add_u32 s{sT0}, s{sT0}, s{sTt}")
    a.e(f"s_lshl_b32 s{sT0}, s{sT0}, {13 if 'hs' in Cfg.x else 15}")
    a.e(f"s_add_u32 s{sWFo}, s{sT0}, {hex(WS_WF)}")
    a.e(f"s_lshr_b32 s{sT0}, s{sWAVE}, 1")
    a.e(f"s_mul_i32 s{sT0}, s{sT0}, {hex(UVSTR)}")
    a.e(f"s_lshl1_add_u32 s{sT1}, s{sTB}, s{sT1}")
    a.e(f"s_lshl_b32 s{sT1}, s{sT1}, 13")
    a.e(f"s_add_u32 s{sT0}, s{sT0}, s{sT1}")
    a.e(f"s_add_u32 s{sUo}, s{sT0}, {hex(WS_UV)}")
    a.e(f"s_add_u32 s{sUo+1}, s{sUo}, 4096")
def df_load(a, j):
    a.e(f"buffer_load_dwordx4 {vr(vBD+4*j,4)}, v{vL16}, {sr(sWS,4)}, s{sDo+j//4} offen offset:{1024*(j%4)} sc1", tag="df")
def uv_setup(a):
    T = vT
    a.e(f"v_lshrrev_b32 v{T}, 5, v{vLANE}")
    a.e(f"v_lshlrev_b32 v{T}, 9, v{T}")
    a.e(f"v_and_b32 v{T+1}, 1, v{vLANE}")
    a.e(f"v_lshl_add_u32 v{T}, v{T+1}, 8, v{T}")
    a.e(f"v_bfe_u32 v{T+1}, v{vLANE}, 1, 4")
    a.e(f"v_lshl_add_u32 v{vUa}, v{T+1}, 4, v{T}")
def uv_load(a, j):
    a.e(f"buffer_load_dwordx4 {vr(vBU+4*j,4)}, v{vUa}, {sr(sWS,4)}, s{sUo+j//4} offen offset:{1024*(j%4)} sc1", tag=("u", j))
def uv_extra(a):
    vm = list(a.vm)
    a.e(f"s_or_b32 s{sT2}, s{sTB}, s{sTt}")
    a.e("s_cbranch_scc1 L_j5e")
    a.e(f"s_add_u32 s{sT0}, s{sUo}, {32*16384}")
    a.e(f"s_add_u32 s{sT1}, s{sUo+1}, {32*16384}")
    for j in range(8):
        a.e(f"buffer_load_dwordx4 {vr(vBR+4*j,4)}, v{vUa}, {sr(sWS,4)}, s{sT0+j//4} offen offset:{1024*(j%4)} sc1")
    a.e("L_j5e:")
    a.vm = vm
def wfreg(n): return 136 + 4 * n if n < 30 else 24 + 4 * (n - 30)
def wf_load(a, n):
    if n % 4 == 0: a.e(f"s_add_u32 s{sJ+10}, s{sWFo}, {(n//8)*16384 + (n//4%2)*4096 if 'hs' in Cfg.x else (n//4)*4096}")
    a.e(f"buffer_load_dwordx4 {vr(wfreg(n),4)}, v{vL16}, {sr(sWS,4)}, s{sJ+10} offen offset:{1024*(n%4)} sc1")
def tile_waddr(a, dst, T):
    a.e(f"v_lshrrev_b32 v{T}, 5, v{vLANE}")
    a.e(f"v_lshl_add_u32 v{dst}, v{T}, 5, v{vL16}")
def b_mfma(a, j):
    a.wait(vm=["df", ("u", j)])
    a.e(f"v_mfma_f32_32x32x16_bf16 {vr(vBacc,16)}, {vr(vBD+4*j,4)}, {vr(vBU+4*j,4)}, {vr(vBacc,16) if j else 0}")
def b_extra(a):
    tile_waddr(a, vUa, vT + 1)
    a.e(f"s_mul_i32 s{sT0}, s{sWAVE}, {TS}")
    a.e(f"v_add_u32 v{vUa}, s{sT0}, v{vUa}")
    vm = list(a.vm); lg = list(a.lg)
    a.e(f"s_or_b32 s{sT2}, s{sTB}, s{sTt}")
    a.e("s_cbranch_scc1 L_j6b")
    a.e("s_waitcnt vmcnt(0)")
    for j in range(8):
        a.e(f"v_mfma_f32_32x32x16_bf16 {vr(vBU,16)}, {vr(vBD+4*j,4)}, {vr(vBR+4*j,4)}, {vr(vBU,16) if j else 0}")
    for q in range(4):
        a.e(f"ds_write_b128 v{vUa}, {vr(vBU+4*q,4)} offset:{8*TS + q*1088}")
    a.e("s_waitcnt lgkmcnt(0)")
    a.e("L_j6b:")
    a.vm = vm; a.lg = lg
def b_write(a):
    for q in range(4):
        a.e(f"ds_write_b128 v{vUa}, {vr(vBacc+4*q,4)} offset:{q*1088}", tag="bw")

vAcc, vGY, vOmg, vFr = 32, 64, 80, 88
vOd0, vOd1, vFl, vRa, vRow, vSt = 81, 82, 83, 84, 85, 86
def rbf(a, r):
    a.e(f"v_cvt_pk_bf16_f32 v{r}, v{r}, v{r}")
    a.e(f"v_and_b32 v{r}, 0xffff0000, v{r}")
def FM(): return " sc1" if "f1" in Cfg.x else " nt" if "f2" in Cfg.x else " sc0 sc1" if "f3" in Cfg.x else ""
def phase3(a, st):
    T = vT
    def oaddr():
        a.e(f"s_lshl_b32 s{sT0}, s{sTB}, 16")
        a.e(f"v_add_u32 v{vOd0}, s{sT0}, v{vL16}")
        a.e(f"s_sub_u32 s{sT0}, 63, s{sTB}")
        a.e(f"s_sub_u32 s{sT1}, 64, s{sTB}")
        a.e(f"s_cmp_eq_u32 s{sTB}, 0")
        a.e(f"s_cselect_b32 s{sT1}, 32, s{sT1}")
        a.e(f"v_and_b32 v{T}, 31, v{vLANE}")
        a.e(f"v_cmp_eq_u32 vcc, 0, v{T}")
        a.e(f"v_mov_b32 v{T+2}, s{sT0}")
        a.e(f"v_mov_b32 v{T+3}, s{sT1}")
        a.e(f"v_cndmask_b32 v{T+2}, v{T+2}, v{T+3}, vcc")
        a.e(f"v_sub_u32 v{T}, 32, v{T}")
        a.e(f"v_and_b32 v{T}, 31, v{T}")
        a.e(f"v_and_b32 v{T+3}, 32, v{vLANE}")
        a.e(f"v_add_u32 v{T}, v{T}, v{T+3}")
        a.e(f"v_lshlrev_b32 v{T}, 4, v{T}")
        a.e(f"v_lshl_add_u32 v{vOd1}, v{T+2}, 16, v{T}")
        a.e(f"v_cmp_eq_u32 vcc, 0, v{T+3}")
        a.e(f"v_mov_b32 v{T}, s{sTB}")
        a.e(f"v_cndmask_b32 v{T+2}, v{T+2}, v{T}, vcc")
        a.e(f"v_lshlrev_b32 v{vFl}, 10, v{T+2}")
    vPo, sMk = 4, sJ + 8
    def opoll():
        a.e(f"s_mov_b64 exec, {sr(sMk,2)}")
        poll256_issue(a, (vFl, sJ + 6), vPo)
        a.e("s_mov_b64 exec, -1")
    if 'es' in Cfg.x:
        oaddr()
        a.e(f"s_lshl_b32 s{sJ+6}, s{sWAVE}, 7")
        a.e(f"s_add_u32 s{sJ+6}, s{sJ+6}, {hex(FL_O)}")
        a.e(f"s_mov_b32 s{sMk}, 1"); a.e(f"s_mov_b32 s{sMk+1}, 3")
        opoll()
    a.e(f"v_lshrrev_b32 v{T}, 3, v{vLANE}")
    a.e(f"s_lshl_b32 s{sT0}, s{sQ}, 3")
    a.e(f"v_add_u32 v{T}, s{sT0}, v{T}")
    a.e(f"v_and_b32 v{T+1}, 7, v{vLANE}")
    a.e(f"v_mul_u32_u24 v{vRa}, 544, v{T+1}")
    a.e(f"v_mov_b32 v{T+5}, v{vRa}")
    a.e(f"v_lshl_add_u32 v{vRa}, v{T}, 4, v{vRa}")
    for t in range(8):
        a.e(f"ds_read_b128 {vr(vFr+4*t,4)}, v{vRa} offset:{t*TS}", tag=("pm", t))
    a.e(f"s_lshl_b32 s{sT0}, s{sTB}, 5")
    a.e(f"v_add_u32 v{T}, s{sT0}, v{T}")
    a.e(f"v_sub_u32 v{T+2}, 2048, v{T}")
    a.e(f"v_cmp_eq_u32 vcc, 0, v{T}")
    a.e(f"v_mov_b32 v{T+3}, 1024")
    a.e(f"v_cndmask_b32 v{T+2}, v{T+2}, v{T+3}, vcc")
    a.e(f"v_cndmask_b32 v{T+3}, v{T}, v{T+3}, vcc")
    a.e(f"s_cmp_lg_u32 s{sTt}, 0")
    a.e(f"s_cselect_b64 vcc, -1, 0")
    a.e(f"v_cndmask_b32 v{vRow}, v{T}, v{T+2}, vcc")
    a.e(f"v_cndmask_b32 v{T+3}, v{T}, v{T+3}, vcc")
    a.e(f"v_lshlrev_b32 v{T+2}, 2, v{vRow}")
    a.e(f"v_lshlrev_b32 v{T+3}, 5, v{T+3}")
    a.e(f"v_lshlrev_b32 v{T}, 5, v{T}")
    a.e(f"s_mov_b32 s{sT0}, {hex(WS_GP)}")
    a.e(f"s_mov_b32 s{sT1}, {hex(WS_ZC)}")
    a.e(f"s_mov_b32 s{sT2}, {hex(WS_ZC+ZSTR)}")
    G, ZC, ZW, ZS = 32, 36, 40, 44
    a.e(f"buffer_load_dword v{G}, v{T+2}, {sr(sWS,4)}, s{sT0} offen sc1", tag="sm")
    a.e(f"buffer_load_dwordx4 {vr(ZC,4)}, v{T+3}, {sr(sWS,4)}, s{sT1} offen sc1", tag="sm")
    a.e(f"buffer_load_dwordx4 {vr(ZW,4)}, v{T+3}, {sr(sWS,4)}, s{sT1} offen offset:16 sc1", tag="sm")
    a.e(f"buffer_load_dwordx4 {vr(ZS,4)}, v{T}, {sr(sWS,4)}, s{sT2} offen sc1", tag="sm")
    if 'es' not in Cfg.x: oaddr()
    for t in range(0, 8, 2):
        a.wait(lg=("pm", t + 1))
        for i in range(4): a.e(f"v_add_f32 v{vFr+4*t+i}, v{vFr+4*t+i}, v{vFr+4*t+4+i}")
    a.e(f"s_xor_b32 s{sT0}, s{sWAVE}, 4")
    a.e(f"s_or_b32 s{sT0}, s{sT0}, s{sTB}")
    a.e(f"s_cmp_lg_u32 s{sT0}, 0")
    a.e("s_cbranch_scc1 L_norow")
    a.e("s_mov_b64 exec, 0xff")
    for pe in range(2):
        for k in range(8):
            d = vFr + 8 * pe if k == 0 else 48
            a.e(f"ds_read_b128 {vr(d,4)}, v{T+5} offset:{(8+2*pe+k//4)*TS + (k%4)*16}")
            a.e("s_waitcnt lgkmcnt(0)")
            if k:
                for i in range(4): a.e(f"v_add_f32 v{vFr+8*pe+i}, v{vFr+8*pe+i}, v{48+i}")
    a.e("s_mov_b64 exec, -1")
    a.e("L_norow:")
    a.wait(vm="ost")
    a.e(f"s_sub_u32 s{sT0}, s{sOFo}, {hex(WS_OF)}")
    if 'hs' in Cfg.x:
        a.e(f"s_lshr_b32 s{sT0}, s{sT0}, 16")
        a.e(f"s_lshl3_add_u32 s{sT0}, s{sT0}, s{sCb}")
        a.e(f"s_lshl_b32 s{sT0}, s{sT0}, 7")
        a.e(f"s_lshl2_add_u32 s{sT0}, s{sArr}, s{sT0}")
    else:
        a.e(f"s_lshr_b32 s{sT0}, s{sT0}, 13")
        a.e(f"s_lshl_b32 s{sT0}, s{sT0}, 7")
        a.e(f"s_and_b32 s{sT1}, s{sH}, 3")
        a.e(f"s_lshl2_add_u32 s{sT0}, s{sT1}, s{sT0}")
    a.e(f"s_add_u32 s{sT0}, s{sT0}, {hex(FL_O)}")
    a.e(f"v_mov_b32 v{T+4}, s{sTAG}")
    a.e(f"buffer_store_dword v{T+4}, v{vLz}, {sr(sWS,4)}, s{sT0} offen sc1")
    st()
    if 'es' not in Cfg.x:
        a.e(f"s_lshl_b32 s{sJ+6}, s{sWAVE}, 7")
        a.e(f"s_add_u32 s{sJ+6}, s{sJ+6}, {hex(FL_O)}")
        a.e("s_mov_b32 exec_lo, 1"); a.e("s_mov_b32 exec_hi, 3")
        poll256_issue(a, (vFl, sJ + 6), 48)
        a.e("s_mov_b64 exec, -1")
    a.wait(vm="sm")
    for r in (ZC, ZW, ZS):
        a.e(f"v_add_f32 v{r}, v{r}, v{r+1}")
        a.e(f"v_add_f32 v{r+2}, v{r+2}, v{r+3}")
        a.e(f"v_add_f32 v{r}, v{r}, v{r+2}")
    rbf(a, G)
    a.e(f"v_mul_f32 v{G}, {hex(f2u(-math.log2(math.e)))}, v{G}")
    a.e(f"v_exp_f32 v{G}, v{G}")
    a.e(f"v_add_f32 v{ZW}, v{ZW}, v{ZC}")
    a.e(f"v_add_f32 v{G}, 1.0, v{G}")
    a.e(f"v_rcp_f32 v{G}, v{G}")
    for i in range(4):
        a.e(f"v_{'sub' if i % 2 else 'add'}_f32 v{vFr+i}, v{vFr+i}, v{ZC}")
        a.e(f"v_{'add' if i % 2 else 'sub'}_f32 v{vFr+24+i}, v{vFr+24+i}, v{ZS}")
    rbf(a, G)
    a.e(f"v_sub_f32 v{vOmg}, 1.0, v{G}")
    rbf(a, vOmg)
    a.e(f"s_cmp_lg_u32 s{sTt}, 0")
    a.e(f"s_cselect_b32 s{sT0}, 1.0, -1.0")
    for pe in range(2):
        for i in range(4):
            P, Q = vFr + 8 * pe + i, vFr + 16 + 8 * pe + i
            a.e(f"v_fma_f32 v{vGY+4*pe+i}, v{Q}, s{sT0}, v{P}")
            a.e(f"v_fma_f32 v{vGY+8+4*pe+i}, v{Q}, -s{sT0}, v{P}")
    a.e(f"v_or_b32 v{T}, s{sCb}, v{T+1}")
    a.e(f"v_cmp_eq_u32 vcc, 0, v{T}")
    a.e(f"v_cndmask_b32 v{vGY+8}, v{vGY+8}, v{ZW}, vcc")
    for i in range(16): a.e(f"v_mul_f32 v{vGY+i}, v{G}, v{vGY+i}")
    a.e(f"s_lshl_b32 s{sT0}, s{sCb}, 7")
    a.e(f"v_lshl_add_u32 v{T}, v{T+1}, 4, s{sT0}")
    a.e(f"v_lshlrev_b32 v{vRow}, 11, v{vRow}")
    a.e(f"v_add_u32 v{vSt}, v{vRow}, v{T}")
    a.e(f"v_sub_u32 v{T}, {2048-16}, v{T}")
    a.e(f"v_add_u32 v{vSt+1}, v{vRow}, v{T}")
    a.e(f"v_add_u32 v{vRow}, {1024-16}, v{vRow}")
    a.e(f"v_cndmask_b32 v{vRow}, v{vSt+1}, v{vRow}, vcc")
    a.e(f"s_lshl_b32 s{sT0}, s{sTt}, 14")
    a.e(f"v_add_u32 v{T}, s{sT0}, v{vL16}")
    a.e(f"v_add_u32 v{T+1}, 65536, v{T}")
    es = 'es' in Cfg.x
    a.e("s_waitcnt lgkmcnt(0)" if es else "s_waitcnt vmcnt(0) lgkmcnt(0)")
    a.e("s_barrier")
    if not es:
        a.e("s_mov_b32 exec_lo, 1"); a.e("s_mov_b32 exec_hi, 3")
        poll256_check(a, (vFl, sJ + 6), 48, "L_po", slp=8 if "s8" in Cfg.x else 1)
        a.e("s_mov_b64 exec, -1")
        st()
    base = [65536, 98304, 0, 32768]
    a.e(f"s_lshl_b32 s{sT0}, s{sWAVE}, 12")
    a.e(f"s_lshl_b32 s{sT1}, s{sWAVE}, {11 if 'hs' in Cfg.x else 13}")
    a.e(f"s_add_u32 s{sT1}, s{sT1}, {hex(WS_OF)}")
    a.e(f"s_mov_b32 s{sSpin}, 0")
    ds = 'ds' in Cfg.x
    sN, sRd, sOl, sOs = sJ + 7, sJ + 10, sJ + 13, sJ + 12
    def bnd(j):
        vm = list(a.vm)
        if j == 0:
            a.e(f"s_add_u32 s{sOl}, s{sT0}, 65536")
            a.e(f"s_mov_b32 s{sOs}, s{sT1}")
            a.e(f"s_mov_b32 s{sN}, 0")
            a.e(f"s_branch L_bq{j}")
        else:
            a.e(f"s_cmp_eq_u32 s{sN}, 4")
            a.e(f"s_cbranch_scc1 L_be{j}")
        a.e(f"L_bw{j}:")
        a.e("s_waitcnt vmcnt(0)")
        a.e(f"L_bq{j}:")
        for k in range(j + 1 if j else 0, 4):
            a.e(f"v_cmp_ne_u32 vcc, s{sTAG}, v{vPo+k}")
            a.e(f"s_and_b64 vcc, vcc, {sr(sMk,2)}")
            first = k == (j + 1 if j else 0)
            a.e(f"s_cselect_b32 s{sRd if first else sT2}, 0, {1 << k}")
            if not first: a.e(f"s_or_b32 s{sRd}, s{sRd}, s{sT2}")
        a.e(f"L_bt{j}:")
        a.e(f"s_bitcmp1_b32 s{sRd}, s{sN}")
        a.e(f"s_cbranch_scc0 L_bn{j}")
        for rs in range(2):
            a.e(f"s_add_u32 m0, s{sOl}, {rs*2048}")
            for f in range(2):
                a.e(f"buffer_load_dwordx4 v{[vOd0, vOd1][rs]}, {sr(sWS,4)}, s{sOs} offen offset:{f*1024} sc1 lds")
        a.e(f"s_add_u32 s{sOs}, s{sOs}, {16384 if 'hs' in Cfg.x else 2048}")
        a.e(f"s_add_u32 s{sOl}, s{sOl}, 32768")
        a.e(f"s_and_b32 s{sOl}, s{sOl}, 0x1ffff")
        a.e(f"s_add_u32 s{sN}, s{sN}, 1")
        a.e(f"s_branch L_bt{j}")
        a.e(f"L_bn{j}:")
        a.e(f"s_cmp_eq_u32 s{sN}, 4")
        a.e(f"s_cbranch_scc1 L_be{j}")
        opoll()
        a.e(f"s_add_u32 s{sSpin}, s{sSpin}, 1")
        a.e(f"s_cmp_ge_u32 s{sSpin}, 0x40000")
        a.e(f"s_cbranch_scc1 L_be{j}")
        a.e(f"s_cmp_le_u32 s{sN}, {j+1}")
        a.e(f"s_cbranch_scc1 L_bw{j}")
        if j == 0: a.e("s_waitcnt vmcnt(5)")
        a.e(f"L_be{j}:")
        a.vm = vm + ([("O", k) for k in range(4) for _ in range(4)] if j == 0 else [])
        if j == 0: st()
    for j in range(0 if ds else 4):
        if es:
            vm = list(a.vm)
            a.e(f"L_po{j}:")
            a.e(f"v_cmp_ne_u32 vcc, s{sTAG}, v{vPo+j}")
            a.e(f"s_and_b64 vcc, vcc, {sr(sMk,2)}")
            a.e(f"s_cbranch_scc0 L_pk{j}")
            opoll()
            a.e("s_waitcnt vmcnt(0)")
            a.e(f"s_add_u32 s{sSpin}, s{sSpin}, 1")
            a.e(f"s_cmp_lt_u32 s{sSpin}, 0x40000")
            a.e(f"s_cbranch_scc1 L_po{j}")
            a.e(f"L_pk{j}:")
            a.vm = vm
            if j == 3: st()
        for rs in range(2):
            a.e(f"s_add_u32 m0, s{sT0}, {base[j] + rs*2048}")
            for f in range(2):
                a.e(f"buffer_load_dwordx4 v{[vOd0, vOd1][rs]}, {sr(sWS,4)}, s{sT1} offen offset:{f*1024} sc1 lds", tag=("O", j))
        if j < 3: a.e(f"s_add_u32 s{sT1}, s{sT1}, {16384 if 'hs' in Cfg.x else 2048}")
    D = 3
    def rd(n):
        j, k = divmod(n, 8)
        if k == 0:
            if ds and j < 3: bnd(j)
            a.wait(vm=("O", j)); a.e("s_barrier")
        for rs in range(2):
            a.e(f"ds_read_b128 {vr(vFr + (n % 6)*8 + 4*rs, 4)}, v{T+1 if j < 2 else T} offset:{(j%2)*32768 + (k//2)*4096 + rs*2048 + (k%2)*1024}", tag=("o", n))
    for n in range(D): rd(n)
    for n in range(32):
        j, k = divmod(n, 8)
        a.wait(lg=("o", n))
        wf = wfreg(n if 'hs' in Cfg.x else 8 * (k // 2) + 2 * j + k % 2)
        for rs in range(2):
            acc = vr(vAcc + 16 * rs, 16)
            a.e(f"v_mfma_f32_32x32x16_bf16 {acc}, {vr(wf,4)}, {vr(vFr + (n%6)*8 + 4*rs, 4)}, {acc if n else 0}")
        if n + D < 32: rd(n + D)
        if n == 2 and 'gs' not in Cfg.x: st()
    if 'gs' not in Cfg.x: st()
    tile_waddr(a, T, T + 1)
    a.e(f"s_lshl1_add_u32 s{sT0}, s{sQ}, s{sTt}")
    a.e(f"s_mul_i32 s{sT0}, s{sT0}, {TS}")
    a.e(f"s_add_u32 s{sT0}, s{sT0}, 65536")
    a.e(f"v_add_u32 v{T}, s{sT0}, v{T}")
    a.e(f"s_mul_i32 s{sT0}, s{sTt}, {8*TS}")
    a.e(f"s_add_u32 s{sT0}, s{sT0}, 65536")
    a.e(f"v_add_u32 v{vRa}, s{sT0}, v{vRa}")
    for rs in range(2):
        for q in range(4):
            a.e(f"ds_write_b128 v{T}, {vr(vAcc+16*rs+4*q,4)} offset:{rs*8*TS + q*1088}")
    a.e("s_waitcnt lgkmcnt(0)")
    a.e("s_barrier")
    for t in range(8):
        a.e(f"ds_read_b128 {vr(vFr+4*t,4)}, v{vRa} offset:{t*TS}", tag=("fb", t))
    for c in range(4):
        a.wait(lg=("fb", 2 * c + 1))
        for i in range(4):
            a.e(f"v_add_f32 v{vFr+8*c+i}, v{vFr+8*c+i}, v{vFr+8*c+4+i}")
        for i in range(4):
            a.e(f"v_fma_f32 v{vGY+4*c+i}, v{vFr+8*c+i}, v{vOmg}, v{vGY+4*c+i}")
        if c == 1:
            for i in range(4): a.e(f"v_cvt_pk_bf16_f32 v{32+i}, v{vGY+i}, v{vGY+4+i}")
            a.e(f"buffer_store_dwordx4 {vr(32,4)}, v{vSt}, {sr(sOUT,4)}, 0 offen{FM()}")
    E, Od = vGY + 8, vGY + 12
    for i in range(3): a.e(f"v_cvt_pk_bf16_f32 v{36+i}, v{E+3-i}, v{Od+2-i}")
    a.e(f"v_cvt_pk_bf16_f32 v40, v{Od+3}, v{E}")
    a.e(f"buffer_store_dwordx3 {vr(36,3)}, v{vSt+1}, {sr(sOUT,4)}, 0 offen offset:4{FM()}")
    a.e(f"buffer_store_short v40, v{vSt+1}, {sr(sOUT,4)}, 0 offen offset:2{FM()}")
    a.e(f"buffer_store_short_d16_hi v40, v{vRow}, {sr(sOUT,4)}, 0 offen offset:16{FM()}")


def kernel_a():
    a = Asm(); st = Stamper(a)
    if Cfg.stamps: a.e("s_memrealtime s[96:97]")
    st()
    prologue(a, st)
    phase1(a, st)
    epilogue1(a, st)
    attention(a, st)
    phase3(a, st)
    if Cfg.stamps or "nw" not in Cfg.x:
        a.e("s_waitcnt vmcnt(0) lgkmcnt(0)")
        st()
        st.dump()
        a.e("s_waitcnt vmcnt(0)")
    a.e("L_end:")
    a.e("s_endpgm")
    n0 = st.n
    st.n = 1; loader(a, st)
    st.n = 1; p0wave(a, st)
    fallback(a)
    a.verify_edges()
    return a

HEADER = open("cdna_kernels/" + NAME + ".s.ref").read().split("; Override launch")[0]

def wrap(kernels):
    out = HEADER
    if len(kernels) == 1:
        l, a, g, b, lds, nv = kernels[0]
        out += f"; @launch grid=({g},1,1) block=({b},1,1) lds={lds}\n"
    else:
        for l, a, g, b, lds, nv in kernels:
            out += f"; @launch kernel={l} grid=({g},1,1) block=({b},1,1) lds={lds}\n"
    out += '.amdgcn_target "amdgcn-amd-amdhsa--gfx950"\n.text\n'
    for l, a, g, b, lds, nv in kernels:
        out += f".globl {l}\n.p2align 8\n.type {l},@function\n{l}:\n" + a.text()
    out += '.section .rodata,"a"\n'
    for l, a, g, b, lds, nv in kernels:
        acc = (nv + 3) // 4 * 4
        out += f""".p2align 6
.amdhsa_kernel {l}
  .amdhsa_next_free_vgpr {nv}
  .amdhsa_next_free_sgpr 102
  .amdhsa_accum_offset {acc}
  .amdhsa_group_segment_fixed_size 0
  .amdhsa_kernarg_size 96
  .amdhsa_user_sgpr_count 2
  .amdhsa_user_sgpr_kernarg_segment_ptr 1
  .amdhsa_system_sgpr_workgroup_id_x 1
.end_amdhsa_kernel
"""
    return out

if __name__ == "__main__":
    outp = sys.argv[1] if len(sys.argv) > 1 else "dev.s"
    Cfg.stamps = "--stamps" in sys.argv
    Cfg.pf = "--nopf" not in sys.argv
    Cfg.x = {t[2:] for t in sys.argv if t.startswith("-x")}
    a = kernel_a()
    open(outp, "w").write(wrap([(NAME + "_kernel", a, 256, 512, 163840, NVGPR)]))
    print("instrs", len(a.ins), "auto nops", a.nops)
```

```python
import sys, math, struct
from asmlib import Asm, vr, sr

NAME = "gated_mix__spectral_fnet__mha_block__prompt"
MB = 1 << 20
WS_KV = 0
WS_OF = 8 * MB
WS_XF = 12 * MB
XSTR = 0x84000
WS_UV = 15 * MB
UVSTR = 33 * 16384
WS_WF = 18 * MB
WS_SM = 20 * MB
WS_GP = WS_SM
WS_XE = WS_SM + 0x10000
WS_ZC = WS_SM + 0x20000
ZSTR = 0x10000
OOB = 0x40000000
WS_FL = 21 * MB
WS_ST = 22 * MB
WS_CF = 24 * MB
WS_DF = 26 * MB
WS_SIZE = 28 * MB
FL_KV = WS_FL
FL_0 = WS_FL + 0x8000
FL_O = WS_FL + 0x10000
FL_A = WS_FL + 0xC000

def f2u(x): return struct.unpack("<I", struct.pack("<f", x))[0]

class Cfg:
    stamps = False
    pf = True
    wl = 4
    x = set()

def srd(a, d, koff, size):
    a.e(f"s_load_dwordx2 {sr(d,2)}, s[0:1], {koff}")
    a.e(f"s_mov_b32 s{d+2}, {hex(size)}")
    a.e(f"s_mov_b32 s{d+3}, 0x20000")

sX, sW, sWS, sDBG = 8, 12, 16, 20
sWAVE, sR, sH, sTAG = 3, 4, 5, 6
sT0, sT1, sT2, sT3 = 24, 25, 26, 27
sWo = 28
sWl, sXl, sXs = 31, 32, 33
sKVo, sF1o, sOFo = 34, 35, 36
sKVl = 37
sG = 38
sSpin = 39
sKVsrc = 40
sSlot = 41
sC1, sC2 = 42, 43
sGW, sWO, sMS, sMD, sOUT = 44, 48, 52, 56, 60
sRow = 98
sS = 7
sSTAMP = 78
sJ = 64
vLANE, vL16 = 1, 2
vXd = 4
vWd = 8
vWr = 9
vXr = 10
vT = 14
vAQ, vAK, vAV = 32, 48, 64
vXf = 80
vWf = 112
vS = [32, 48]
vO = 64
vM = 80
vQ = 96
vK = 104
vV = 112
vP = 120
vLs = 128
vSel = 132
vKVa = 3
NVGPR = 256

class Stamper:
    def __init__(self, a): self.a = a; self.n = 0
    def __call__(self):
        if not Cfg.stamps or self.n >= 16: return
        self.a.e("s_memrealtime s[94:95]" if "rt" in Cfg.x else "s_memtime s[94:95]")
        self.a.e("s_waitcnt lgkmcnt(0)")
        self.a.e(f"s_mov_b32 s{sSTAMP + self.n}, s94")
        self.n += 1
    def dump(self):
        if not Cfg.stamps: return
        a = self.a
        a.e(f"s_memrealtime {sr(sT0,2)}")
        a.e("s_waitcnt lgkmcnt(0)")
        a.e(f"s_lshl_b32 s{sT2}, s2, 3")
        a.e(f"s_add_u32 s{sT2}, s{sT2}, s{sWAVE}")
        a.e(f"s_lshl_b32 s{sT2}, s{sT2}, 7")
        a.e(f"s_add_u32 s{sT2}, s{sT2}, {hex(WS_ST)}")
        a.e(f"v_mov_b32 v{vT+1}, 0")
        for i in range(self.n):
            a.e(f"v_mov_b32 v{vT}, s{sSTAMP+i}")
            a.e(f"buffer_store_dword v{vT}, v{vT+1}, {sr(sWS,4)}, s{sT2} offen offset:{4*i}")
        a.e(f"v_mov_b32 v{vT}, s{sT0}")
        a.e(f"buffer_store_dword v{vT}, v{vT+1}, {sr(sWS,4)}, s{sT2} offen offset:{4*31}")
        a.e(f"v_mov_b32 v{vT}, s96")
        a.e(f"buffer_store_dword v{vT}, v{vT+1}, {sr(sWS,4)}, s{sT2} offen offset:{4*30}")


sPh, sOff, sXb, sLl, sWb, sK = 54, 55, 28, 29, 30, 31
sArr, sCb, sQ, sTt, sTrow = sJ, sJ + 1, sJ + 2, sJ + 3, sJ + 5
vLz = 21
LD_TAG = 61440
def prologue(a, st):
    a.e("s_cmp_ge_u32 s2, 256")
    a.e("s_cbranch_scc1 L_end")
    srd(a, sX, 0, 4 * MB)
    srd(a, sW, 48, 6 * MB)
    srd(a, sWS, 88, WS_SIZE)
    srd(a, sDBG, 80, 256)
    srd(a, sGW, 64, 2048)
    srd(a, sWO, 56, 2 * MB)
    srd(a, sOUT, 72, 4 * MB)
    a.e(f"v_and_b32 v{vLANE}, 63, v0")
    a.e(f"v_lshrrev_b32 v{vT}, 6, v0")
    a.e(f"v_lshlrev_b32 v{vL16}, 4, v{vLANE}")
    a.e(f"v_readfirstlane_b32 s{sWAVE}, v{vT}")
    a.e(f"s_bfe_u32 s{sT1}, s2, 0x20003")
    a.e(f"s_xor_b32 s{sT0}, s2, s{sT1}")
    a.e(f"s_and_b32 s{sT0}, s{sT0}, 1")
    a.e(f"s_lshl1_add_u32 s{sR}, s{sT1}, s{sT0}")
    a.e(f"s_bfe_u32 s{sT0}, s2, 0x20001")
    a.e(f"s_lshr_b32 s{sT1}, s2, 5")
    if "hx" in Cfg.x: a.e(f"s_xor_b32 s{sT1}, s{sT1}, 7")
    a.e(f"s_lshl3_add_u32 s{sH}, s{sT0}, s{sT1}")
    a.e(f"s_lshr_b32 s{sT0}, s{sWAVE}, 1")
    a.e(f"s_cmp_eq_u32 s{sT0}, 2")
    if "lf" in Cfg.x:
        a.e("s_cbranch_scc0 L_notload")
        vm, lg, n0 = list(a.vm), list(a.lg), st.n
        loader(a, st)
        a.vm, a.lg, st.n = vm, lg, n0
        a.e("L_notload:")
    else:
        a.e("s_cbranch_scc1 L_load")
    common(a)
    a.e(f"s_cmp_ge_u32 s{sWAVE}, 6")
    a.e("s_cbranch_scc1 L_p0")
def common(a):
    a.e(f"s_mul_i32 s{sXl}, s{sWAVE}, 12288")
    a.e(f"s_add_u32 s{sXl}, s{sXl}, 65536")
    a.e(f"s_lshr_b32 s{sArr}, s{sH}, 3")
    a.e(f"s_and_b32 s{sCb}, s{sH}, 7")
    a.e(f"s_and_b32 s{sQ}, s{sWAVE}, 3")
    a.e(f"s_lshr_b32 s{sTt}, s{sWAVE}, 2")
    a.e(f"s_lshl1_add_u32 s{sT0}, s{sR}, s{sTt}")
    a.e(f"s_lshl_b32 s{sT0}, s{sT0}, 6")
    a.e(f"s_and_b32 s{sT1}, s{sArr}, 1")
    a.e(f"s_add_u32 s{sTrow}, s{sT0}, s{sT1}")
    a.e(f"v_mov_b32 v{vT}, {hex(OOB)}")
    a.e(f"v_cmp_eq_u32 vcc, 63, v{vLANE}")
    a.e(f"v_cndmask_b32_e64 v{vLz}, v{vT}, 0, vcc")

vWd3 = 8
def issue_x(a, i):
    a.e(f"s_add_u32 s{sK}, s{sOff}, {i}")
    a.e(f"s_and_b32 s{sK}, s{sK}, 15")
    a.e(f"s_lshl_b32 s{sK}, s{sK}, 7")
    a.e(f"s_add_u32 s{sK}, s{sK}, s{sXb}")
    for t in range(4):
        a.e(f"s_add_u32 m0, s{sLl}, {t*12288 + (i % 3)*4096}")
        if t: a.e(f"s_add_u32 s{sK}, s{sK}, 65536")
        for q in range(4):
            a.e(f"buffer_load_dwordx4 v{vXd+q}, {sr(sX,4)}, s{sK} offen offset:{q*1024} lds", tag=("X", i))
def issue_w(a, i):
    a.e(f"s_add_u32 s{sK}, s{sOff}, {i}")
    a.e(f"s_and_b32 s{sK}, s{sK}, 15")
    a.e(f"s_mul_i32 s{sK}, s{sK}, {64*6144}")
    a.e(f"s_add_u32 s{sK}, s{sK}, s{sWb}")
    for j in range(2):
        a.e(f"s_add_u32 m0, s{sXs}, {(i % 5)*12288 + j*3072}")
        if j: a.e(f"s_add_u32 s{sK}, s{sK}, {16*6144}")
        for m in range(3):
            a.e(f"buffer_load_dwordx4 v{vWd3+m}, {sr(sW,4)}, s{sK} offen offset:{m*1024} lds", tag=("W", i))
def loader_start(a):
    if "o1" in Cfg.x:
        a.e(f"s_and_b32 s{sOff}, s2, 7"); a.e(f"s_lshl_b32 s{sOff}, s{sOff}, 1")
    elif "o8" in Cfg.x:
        a.e(f"s_andn2_b32 s{sOff}, s{sR}, 1"); a.e(f"s_add_u32 s{sOff}, s{sOff}, s{sH}"); a.e(f"s_and_b32 s{sOff}, s{sOff}, 7")
        a.e(f"s_bfe_u32 s{sT0}, s2, 0x10001"); a.e(f"s_lshl1_add_u32 s{sOff}, s{sOff}, s{sT0}")
    elif "o0" in Cfg.x:
        a.e(f"s_mov_b32 s{sOff}, 0")
    elif "o4" in Cfg.x:
        a.e(f"s_add_u32 s{sOff}, s{sR}, s{sH}"); a.e(f"s_and_b32 s{sOff}, s{sOff}, 2"); a.e(f"s_and_b32 s{sT0}, s{sH}, 1")
        a.e(f"s_add_u32 s{sOff}, s{sOff}, s{sT0}"); a.e(f"s_lshl_b32 s{sOff}, s{sOff}, 2")
        a.e(f"s_bfe_u32 s{sT0}, s2, 0x20001"); a.e(f"s_add_u32 s{sOff}, s{sOff}, s{sT0}")
    else:
        a.e(f"s_and_b32 s{sOff}, s{sH}, 1"); a.e(f"s_lshl_b32 s{sOff}, s{sOff}, 3")
        a.e(f"s_and_b32 s{sT0}, s2, 7"); a.e(f"s_add_u32 s{sOff}, s{sOff}, s{sT0}")
    a.e(f"s_and_b32 s{sT2}, s{sWAVE}, 1")
    a.e(f"s_lshl1_add_u32 s{sT0}, s{sR}, s{sT2}")
    a.e(f"s_lshl_b32 s{sXb}, s{sT0}, 18")
    a.e(f"s_mul_i32 s{sLl}, s{sT2}, {4*12288}")
    a.e(f"s_add_u32 s{sLl}, s{sLl}, 65536")
    a.e(f"s_mul_i32 s{sWb}, s{sT2}, {32*6144}")
    a.e(f"s_lshl_b32 s{sT0}, s{sH}, 6")
    a.e(f"s_add_u32 s{sWb}, s{sWb}, s{sT0}")
    a.e(f"s_mul_i32 s{sXs}, s{sT2}, 6144")
    a.e(f"v_lshrrev_b32 v{vT}, 3, v{vLANE}")
    a.e(f"v_lshlrev_b32 v{vT}, 11, v{vT}")
    a.e(f"v_and_b32 v{vT+1}, 7, v{vLANE}")
    a.e(f"v_lshrrev_b32 v{vT+2}, 4, v{vLANE}")
    a.e(f"v_xor_b32 v{vT+1}, v{vT+1}, v{vT+2}")
    a.e(f"v_lshlrev_b32 v{vT+1}, 4, v{vT+1}")
    a.e(f"v_add_u32 v{vXd}, v{vT}, v{vT+1}")
    a.e(f"v_xor_b32 v{vT+1}, 64, v{vT+1}")
    a.e(f"v_add_u32 v{vT}, v{vT}, v{vT+1}")
    a.e(f"v_add_u32 v{vXd+1}, {16384-1024}, v{vT}")
    a.e(f"v_add_u32 v{vXd+2}, {2*(16384-1024)}, v{vXd}")
    a.e(f"v_add_u32 v{vXd+3}, {3*(16384-1024)}, v{vT}")
    a.e(f"v_lshrrev_b32 v{vT}, 2, v{vLANE}")
    a.e(f"v_mul_u32_u24 v{vT}, 6144, v{vT}")
    a.e(f"v_and_b32 v{vT+1}, 3, v{vLANE}")
    a.e(f"v_lshl_add_u32 v{vWd3}, v{vT+1}, 4, v{vT}")
    a.e(f"v_add_u32 v{vWd3+1}, 1024, v{vWd3}")
    a.e(f"v_add_u32 v{vWd3+2}, 2048, v{vWd3}")
    a.e("s_waitcnt lgkmcnt(0)")
    issue_w(a, 0); issue_x(a, 0); issue_w(a, 1); issue_x(a, 1)

def c_stream():
    return [f"s_lshl_b32 s{sJ+7}, s{sQ}, 7", f"s_lshr_b32 s{sJ+8}, s{sArr}, 1"] + \
        cos_stream(vJC, 8, sTrow, sJ + 7, sJ + 8, 1.0 / 2048, 24, nine=True)

def loader(a, st):
    a.e("L_load:")
    a.vm = []; a.lg = []
    loader_start(a)
    common(a)
    side = c_stream()
    nw = 2
    for i in range(16):
        a.wait(vm=[("X", i), ("W", i)])
        a.e("s_barrier")
        if i in ((0,) if 'gs' in Cfg.x else (0, 4, 8, 12)): st()
        if i + 2 < 16: issue_x(a, i + 2)
        k = 0
        while nw < 16 and nw <= i + Cfg.wl and k < 2:
            issue_w(a, nw); nw += 1; k += 1
        if i >= 13:
            for _ in range(70 if i < 15 else 1000):
                if side: a.e(side.pop(0))
    st()
    a.e("s_branch L_epi")

vX0 = 32
vG = 96
vF = 112
vGp = 128
vU = 174
vPa, vPb, vMk, vL0 = range(192, 196)
vWa = 202
vWG = 208
vCd = 112

def cos_stream(dst, nfr, srow, scol, smat, inv, T, nine=False):
    q = []
    A, tf, t9, t0 = T, T + 1, T + 2, T + 3
    q.append(f"s_cmp_lg_u32 s{smat}, 0")
    q.append(f"s_cselect_b32 s{sPh}, 0x3e800000, 0")
    q.append(f"v_and_b32 v{tf}, 31, v{vLANE}")
    q.append(f"v_lshl_add_u32 v{tf}, v{tf}, 1, s{srow}")
    q.append(f"v_cvt_f32_u32 v{tf}, v{tf}")
    q.append(f"v_mul_f32 v{tf}, {hex(f2u(inv))}, v{tf}")
    q.append(f"v_lshrrev_b32 v{t0}, 5, v{vLANE}")
    q.append(f"v_lshl_add_u32 v{t0}, v{t0}, 3, s{scol}")
    q.append(f"v_cvt_f32_u32 v{t0}, v{t0}")
    q.append(f"v_fma_f32 v{A}, v{tf}, v{t0}, s{sPh}")
    q.append(f"v_fract_f32 v{A}, v{A}")
    q.append(f"v_mul_f32 v{t9}, {hex(f2u(9.0))}, v{tf}")
    if nine:
        q.append(f"v_mul_f32 v{t0}, {hex(f2u(512.0))}, v{tf}")
        q.append(f"v_add_f32 v{t0}, s{sPh}, v{t0}")
        q.append(f"v_fract_f32 v{t0}, v{t0}")
        q.append(f"v_cos_f32 v{t0}, v{t0}")
        for i in range(1, 4): q.append(f"v_mov_b32 v{dst+4*nfr+i}, 0")
        q.append(f"v_cvt_pk_bf16_f32 v{dst+4*nfr}, v{t0}, v{t0}")
    for k in range(4 * nfr):
        t = t0 + 2 * (k % 2)
        q.append(f"v_cos_f32 v{t}, v{A}")
        q.append(f"v_add_f32 v{A}, v{A}, v{tf}")
        q.append(f"v_cos_f32 v{t+1}, v{A}")
        q.append(f"v_add_f32 v{A}, v{A}, v{t9 if k % 4 == 3 else tf}")
        q.append(f"v_cvt_pk_bf16_f32 v{dst+k}, v{t}, v{t+1}")
    return q

def p0_setup(a):
    a.e(f"s_and_b32 s{sT0}, s2, 1")
    a.e(f"s_lshl_b32 s{sT0}, s{sT0}, 8")
    a.e(f"s_bfe_u32 s{sT1}, s2, 0x20001")
    a.e(f"s_lshl_b32 s{sT1}, s{sT1}, 6")
    a.e(f"s_add_u32 s{sT0}, s{sT0}, s{sT1}")
    a.e(f"s_lshr_b32 s{sT1}, s2, 3")
    a.e(f"s_lshl1_add_u32 s{sT0}, s{sT1}, s{sT0}")
    a.e(f"s_and_b32 s{sT3}, s{sWAVE}, 1")
    a.e(f"s_add_u32 s{sS}, s{sT0}, s{sT3}")
    a.e(f"s_lshl_b32 s{sRow}, s{sS}, 11")
    a.e(f"s_sub_u32 s{sRow+1}, {hex(2048*2048)}, s{sRow}")
    a.e(f"s_sub_u32 s{sRow+2}, {hex(1024*2048)}, s{sRow}")
    a.e(f"s_add_u32 s{sRow+3}, {hex(1024*2048)}, s{sRow}")
    a.e(f"s_cmp_eq_u32 s{sS}, 0")
    a.e(f"s_cselect_b32 s{sRow+1}, {hex(512*2048)}, s{sRow+1}")
    a.e(f"s_cselect_b32 s{sRow+2}, {hex(1536*2048)}, s{sRow+2}")
    a.e(f"s_cselect_b32 s{sC1}, 0, 1.0")
    a.e(f"v_lshlrev_b32 v{vPa}, 3, v{vLANE}")
    a.e(f"v_sub_u32 v{vPb}, {1024-8}, v{vPa}")
    a.e("s_waitcnt lgkmcnt(0)")
    p0_loads(a)
    a.e(f"v_cmp_eq_u32 vcc, 0, v{vLANE}")
    a.e(f"v_cndmask_b32_e64 v{vMk}, 1.0, 0, vcc")
    a.e(f"v_mov_b32 v{vU+1}, {hex(OOB)}")
    a.e(f"v_cndmask_b32_e64 v{vL0}, v{vU+1}, 0, vcc")
    a.e(f"s_mov_b32 s{sC2}, 0x3f803f80")
    a.e(f"s_and_b32 s{sT0}, s2, 7")
    a.e(f"s_lshr_b32 s{sT1}, s2, 7")
    a.e(f"s_bfe_u32 s{sT2}, s2, 0x40003")
    a.e(f"s_lshl_b32 s{sJ+7}, s{sT0}, 6")
    a.e(f"s_add_u32 s{sJ+7}, s{sJ+7}, s{sT1}")
    a.e(f"s_lshl_b32 s{sJ+8}, s{sT2}, 4")
    a.e(f"s_lshl1_add_u32 s{sT1}, s{sT3}, s{sT1}")
    a.e(f"s_lshl3_add_u32 s{sT1}, s{sT1}, s{sT0}")
    a.e(f"s_lshl4_add_u32 s{sT1}, s{sT1}, s{sT2}")
    a.e(f"s_lshl_b32 s{sT1}, s{sT1}, 10")
    a.e(f"s_add_u32 s{sJ+9}, s{sT1}, {hex(WS_DF)}")
    a.e(f"s_mov_b32 s{sJ+10}, s{sT3}")
    a.e(f"s_lshl_b32 s{sT1}, s{sT0}, 6")
    a.e(f"v_and_b32 v{vU}, 31, v{vLANE}")
    a.e(f"v_lshl_add_u32 v{vU}, v{vU}, 1, s{sT1}")
    a.e(f"v_sub_u32 v{vU+1}, 1024, v{vU}")
    a.e(f"v_cmp_eq_u32 vcc, 0, v{vU}")
    a.e(f"v_mov_b32 v{vU+2}, 512")
    a.e(f"v_cndmask_b32 v{vU+2}, v{vU+1}, v{vU+2}, vcc")
    a.e(f"v_lshrrev_b32 v{vU+3}, 5, v{vLANE}")
    a.e(f"v_lshlrev_b32 v{vU+3}, 13, v{vU+3}")
    a.e(f"v_lshl_add_u32 v{vWa}, v{vU}, 1, v{vU+3}")
    a.e(f"v_lshl_add_u32 v{vWa+2}, v{vU+2}, 1, v{vU+3}")
    a.e(f"v_lshl_add_u32 v{vWa+3}, v{vU+1}, 1, v{vU+3}")
    a.e(f"v_add_u32 v{vWa+3}, -2, v{vWa+3}")
    a.e(f"s_lshr_b32 s{sT1}, s2, 3")
    a.e(f"s_lshl1_add_u32 s{sT1}, s{sT1}, s{sT3}")
    a.e(f"s_lshl_b32 s{sT0}, s{sT0}, 8")
    a.e(f"s_add_u32 s{sT0}, s{sT0}, s{sT1}")
    a.e(f"s_lshl_b32 s{sT0}, s{sT0}, 10")
    a.e(f"s_add_u32 s{sJ+4}, s{sT0}, {hex(WS_WF)}")
    a.e(f"s_lshl_b32 s{sJ+6}, s{sT1}, 15")

def xr(row, slot, i): return vX0 + 16 * row + 4 * slot + (i if slot in (0, 3) else (4 - i) % 4)
def p0_loads(a):
    addr = [(vPa, 0), (vPb, 1024), (vPb, 0), (vPa, 1024)]
    for k in range(4):
        a.e(f"buffer_load_dwordx2 {vr(vG+4*k,2)}, v{addr[k][0]}, {sr(sGW,4)}, 0 offen offset:{addr[k][1]}", tag=("p0", 4))
    for r in range(4):
        for k in range(4):
            a.e(f"buffer_load_dwordx2 {vr(vX0+16*r+4*k,2)}, v{addr[k][0]}, {sr(sX,4)}, s{sRow+r} offen offset:{addr[k][1]}", tag=("p0", r))
def wf_loads(a, ct, ps=range(4)):
    op = "dword" if ct == 0 else "ushort"
    for p in ps:
        row = (0, 2, 8, 10)[p]
        a.e(f"s_add_u32 s{sT2}, s{sJ+6}, {row*2048}")
        a.e(f"buffer_load_{op} v{vWG+8*ct+p}, v{vWa+ct}, {sr(sWO,4)}, s{sT2} offen", tag=("wg", ct))
        a.e(f"buffer_load_{op} v{vWG+8*ct+4+p}, v{vWa+ct}, {sr(sWO,4)}, s{sT2} offen offset:2048", tag=("wg", ct))
def wf_store(a, ct):
    if ct < 2:
        a.e(f"s_mov_b32 s{sT1}, {['0x05040100', '0x07060302'][ct]}")
        D = vWG + 8 + 4 * ct
        for p in range(4): a.e(f"v_perm_b32 v{D+p}, v{vWG+4+p}, v{vWG+p}, s{sT1}")
    else:
        D = vWG + 8 * ct
        for p in range(4): a.e(f"v_lshl_or_b32 v{D+p}, v{D+4+p}, 16, v{D+p}")
    a.e(f"s_add_u32 s{sT2}, s{sJ+4}, {ct*65536}")
    a.e(f"buffer_store_dwordx4 {vr(D,4)}, v{vL16}, {sr(sWS,4)}, s{sT2} offen sc1")

def wf_stores(a):
    vm = list(a.vm)
    a.e(f"s_cmp_lt_u32 s{sWAVE}, 6")
    a.e("s_cbranch_scc1 L_nowf")
    for ct in range(4): wf_store(a, ct)
    a.e("L_nowf:")
    a.vm = vm

DPP = ["row_shr:1 row_mask:0xf bank_mask:0xf", "row_shr:2 row_mask:0xf bank_mask:0xf", "row_shr:4 row_mask:0xf bank_mask:0xf",
       "row_shr:8 row_mask:0xf bank_mask:0xf", "row_bcast:15 row_mask:0xa bank_mask:0xf", "row_bcast:31 row_mask:0xc bank_mask:0xf"]

vR = 240
def p0_dfold(a, i):
    H = vU + 8
    for ar in range(4):
        f = vF + 4 * ar
        if i == 0:
            ng = "" if ar < 2 else "-"
            a.e(f"v_fma_f32 v{vU}, v{f+1}, {ng}v{vMk}, v{f}")
            a.e(f"v_fma_f32 v{vU+1}, v{f+2}, {ng}v{vMk}, v{f+3}")
            a.e(f"v_{'add' if ar < 2 else 'sub'}_f32 v{vU+4+ar}, v{f+2}, v{f+1}")
        else:
            op = "add" if ar < 2 else "sub"
            a.e(f"v_{op}_f32 v{vU}, v{f}, v{f+1}")
            a.e(f"v_{op}_f32 v{vU+1}, v{f+3}, v{f+2}")
        E = H + 2 * ar if i % 2 == 0 else vU + 2
        a.e(f"v_add_f32 v{E}, v{vU}, v{vU+1}")
        a.e(f"v_sub_f32 v{E+1}, v{vU}, v{vU+1}")
        if ar < 2:
            if i == 0: a.e(f"v_mov_b32 v{vGp+4+ar}, v{E}")
            else:      a.e(f"v_{'sub' if i % 2 else 'add'}_f32 v{vGp+4+ar}, v{vGp+4+ar}, v{E}")
        if i % 2:
            a.e(f"v_cvt_pk_bf16_f32 v{vR+4*ar+i//2}, v{H+2*ar}, v{E}")
            a.e(f"v_cvt_pk_bf16_f32 v{vR+4*ar+2+i//2}, v{H+2*ar+1}, v{E+1}")
        if i == 3:
            if ar == 0: a.e(f"s_lshl_b32 s{sT0}, s{sS}, 10")
            a.e(f"s_add_u32 s{sT1}, s{sT0}, {hex(WS_XF + ar*XSTR)}")
            a.e(f"buffer_store_dwordx4 {vr(vR+4*ar,4)}, v{vL16}, {sr(sWS,4)}, s{sT1} offen sc1")
    if i == 0:
        a.e(f"v_cvt_pk_bf16_f32 v{vU+16}, v{vU+4}, v{vU+5}")
        a.e(f"v_cvt_pk_bf16_f32 v{vU+17}, v{vU+6}, v{vU+7}")
        a.e(f"s_lshl_b32 s{sT0}, s{sS}, 1")
        for ar in range(4):
            a.e(f"s_add_u32 s{sT1}, s{sT0}, {hex(WS_XE + ar*16384)}")
            a.e(f"buffer_store_short{'_d16_hi' if ar % 2 else ''} v{vU+16+ar//2}, v{vL0}, {sr(sWS,4)}, s{sT1} offen sc1")
def p0_reduce(a, red):
    for d in DPP:
        for r in red: a.e(f"v_add_f32_dpp v{r}, v{r}, v{r} {d}")
    a.e(f"v_cvt_pk_bf16_f32 v{vGp+4}, v{vGp+4}, v{vGp+5}")
    a.e(f"s_lshl_b32 s{sT0}, s{sS}, 1")
    for ar in range(2):
        a.e(f"s_add_u32 s{sT2}, s{sT0}, {hex(WS_XE + ar*16384 + 4*2048)}")
        a.e(f"buffer_store_short{'_d16_hi' if ar % 2 else ''} v{vGp+4}, v{vLz}, {sr(sWS,4)}, s{sT2} offen sc1")

def unpack4(a, b):
    a.e(f"v_and_b32 v{b+3}, 0xffff0000, v{b+1}")
    a.e(f"v_lshlrev_b32 v{b+2}, 16, v{b+1}")
    a.e(f"v_and_b32 v{b+1}, 0xffff0000, v{b}")
    a.e(f"v_lshlrev_b32 v{b}, 16, v{b}")
vOne, vGa = 196, 224
def p0_row(a, r):
    a.wait(vm=[("p0", 4), ("p0", r)])
    if r == 0:
        for k in range(4): unpack4(a, vG + 4 * k)
        for i in range(4): a.e(f"v_mov_b32 v{vOne+i}, s{sC2}")
    for k in range(4):
        x = vX0 + 16 * r + 4 * k
        unpack4(a, x)
        for i in range(4): a.e(f"v_mul_f32 v{vU+i}, v{x+i}, v{vG+4*k+i}")
        P = vU + 6 + 4 * (k // 2)
        a.e(f"v_cvt_pk_bf16_f32 v{P+2*(k%2)}, v{vU}, v{vU+1}")
        a.e(f"v_cvt_pk_bf16_f32 v{P+2*(k%2)+1}, v{vU+2}, v{vU+3}")
        if k in (1, 2): a.e(f"v_mov_b32_dpp v{x}, v{x} wave_ror:1 row_mask:0xf bank_mask:0xf")
        if k % 2: a.e(f"v_mfma_f32_16x16x32_bf16 {vr(vR+4*r,4)}, {vr(vOne,4)}, {vr(P,4)}, {vr(vR+4*r,4) if k == 3 else 0}")
    if r == 3:
        for d in DPP[:4]:
            for q in range(4): a.e(f"v_add_f32_dpp v{vR+4*q}, v{vR+4*q}, v{vR+4*q} {d}")
        for q in range(4):
            a.e(f"s_lshr_b32 s{sT2}, s{sRow+q}, 9")
            a.e(f"s_add_u32 s{sT2}, s{sT2}, {hex(WS_GP)}")
            a.e(f"buffer_store_dword v{vR+4*q}, v{vLz}, {sr(sWS,4)}, s{sT2} offen sc1")
def p0_quarter(a, i):
    for k in range(4):
        A, B, C, D = [xr(r, k, i) for r in range(4)]
        a.e(f"v_fma_f32 v{vU}, v{B}, s{sC1}, v{A}")
        a.e(f"v_fma_f32 v{vU+1}, v{C}, s{sC1}, v{D}")
        a.e(f"v_fma_f32 v{vU+2}, v{B}, -s{sC1}, v{A}")
        a.e(f"v_fma_f32 v{vU+3}, v{C}, -s{sC1}, v{D}")
        a.e(f"v_add_f32 v{vF+k}, v{vU}, v{vU+1}")
        a.e(f"v_sub_f32 v{vF+4+k}, v{vU}, v{vU+1}")
        a.e(f"v_add_f32 v{vF+8+k}, v{vU+2}, v{vU+3}")
        a.e(f"v_sub_f32 v{vF+12+k}, v{vU+2}, v{vU+3}")
    p0_dfold(a, i)
def p0_finish(a):
    p0_reduce(a, [vGp + 4, vGp + 5])

def p0_special(a, half):
    vm = list(a.vm)
    a.e(f"s_and_b32 s{sT0}, s{sS}, 511")
    a.e(f"s_cbranch_scc1 L_p0done{half}")
    a.e(f"s_mov_b32 s{sS}, 512")
    for i in (2 * half, 2 * half + 1):
        for k in range(4):
            B, C = xr(1, k, i), xr(2, k, i)
            a.e(f"v_add_f32 v{vF+k}, v{B}, v{C}")
            a.e(f"v_add_f32 v{vF+4+k}, v{B}, v{C}")
            a.e(f"v_sub_f32 v{vF+8+k}, v{B}, v{C}")
            a.e(f"v_sub_f32 v{vF+12+k}, v{B}, v{C}")
        p0_dfold(a, i)
    if half: p0_reduce(a, [vGp + 4, vGp + 5])
    a.e(f"L_p0done{half}:")
    a.vm = vm

def flag_wg(a, off, lbl, wave=0):
    vm = list(a.vm)
    a.e(f"s_cmp_lg_u32 s{sWAVE}, {wave}")
    a.e(f"s_cbranch_scc1 {lbl}")
    a.e(f"s_and_b32 s{sT0}, s2, 7")
    a.e(f"s_lshl_b32 s{sT0}, s{sT0}, 7")
    a.e(f"s_lshr_b32 s{sT1}, s2, 3")
    a.e(f"s_lshl2_add_u32 s{sT0}, s{sT1}, s{sT0}")
    a.e(f"s_add_u32 s{sT0}, s{sT0}, {hex(off)}")
    a.e(f"v_mov_b32 v{vT+4}, s{sTAG}")
    a.e(f"buffer_store_dword v{vT+4}, v{vLz}, {sr(sWS,4)}, s{sT0} offen sc1")
    a.e(f"{lbl}:")
    a.vm = vm

def p0wave(a, st):
    a.e("L_p0:")
    a.vm = []; a.lg = []
    p0_setup(a)
    a.e(f"s_cmp_lg_u32 s{sS}, 0")
    a.e("s_cbranch_scc1 L_notag")
    a.e(f"s_memrealtime {sr(sT0,2)}")
    a.e("s_waitcnt lgkmcnt(0)")
    a.e(f"s_or_b32 s{sT0}, s{sT0}, 1")
    a.e(f"v_mov_b32 v{vT}, s{sT0}")
    a.e(f"v_mov_b32 v{vT+1}, 0")
    a.e(f"buffer_store_dword v{vT}, v{vT+1}, {sr(sDBG,4)}, 0 offen sc1")
    a.vm.pop()
    a.e("L_notag:")
    def dfrag():
        for t in cos_stream(vCd, 1, sJ + 7, sJ + 8, sJ + 10, 1.0 / 1024, 24): a.e(t)
        a.e(f"buffer_store_dwordx4 {vr(vCd,4)}, v{vL16}, {sr(sWS,4)}, s{sJ+9} offen sc1")
    def tag_issue():
        a.e(f"v_mov_b32 v{vT+1}, 0")
        a.e(f"buffer_load_dword v{vT}, v{vT+1}, {sr(sDBG,4)}, 0 offen sc1", tag="tag")
    def tag_lds():
        a.e(f"v_mov_b32 v{vT}, s{sTAG}")
        a.e(f"v_and_b32 v{vT+1}, 7, v{vLANE}")
        a.e(f"v_mul_u32_u24 v{vT+1}, 12288, v{vT+1}")
        a.e(f"v_add_u32 v{vT+1}, 65536, v{vT+1}")
        a.e(f"ds_write_b32 v{vT+1}, v{vT} offset:6144")
    side = c_stream()
    def cs(n):
        for _ in range(n):
            if side: a.e(side.pop(0))
    L = lambda f, *x: (lambda: f(a, *x))
    seg = {-1: [dfrag, lambda: cs(1000)],
           0: [tag_issue, L(p0_row, 0)], 1: [L(p0_row, 1), L(p0_row, 2)],
           2: [L(p0_row, 3), L(p0_quarter, 0)], 3: [L(p0_quarter, 1), L(p0_quarter, 2)], 4: [L(p0_quarter, 3), L(p0_finish)],
           5: [L(p0_special, 0), L(get_tag)], 6: [L(p0_special, 1), lambda: a.e("s_waitcnt vmcnt(0)")],
           7: [L(flag_wg, FL_0, "L_f0", 6)], 14: [tag_lds, L(wf_loads, 0), L(wf_loads, 2)], 15: [L(wf_loads, 3)]}
    for i in range(-1, 16):
        if i >= 0: a.e("s_barrier")
        if i in ((0,) if 'gs' in Cfg.x else (0, 4, 8, 12)): st()
        for f in seg.get(i, []): f()
    assert not side
    st()
    a.e("s_branch L_epi")

vA2, vXf2 = 172, 220
def phase1(a, st):
    a.vm = []; a.lg = []
    a.e(f"v_lshrrev_b32 v{vT}, 5, v{vLANE}")
    a.e(f"v_lshlrev_b32 v{vT}, 9, v{vT}")
    a.e(f"v_bfe_u32 v{vT+1}, v{vLANE}, 2, 2")
    a.e(f"v_lshl_add_u32 v{vT}, v{vT+1}, 6, v{vT}")
    a.e(f"v_bfe_u32 v{vT+1}, v{vLANE}, 4, 1")
    a.e(f"v_lshl_add_u32 v{vT}, v{vT+1}, 5, v{vT}")
    a.e(f"v_and_b32 v{vT+1}, 3, v{vLANE}")
    a.e(f"v_lshl_add_u32 v{vWr}, v{vT+1}, 3, v{vT}")
    a.e(f"v_and_b32 v{vT}, 31, v{vLANE}")
    a.e(f"v_bfe_u32 v{vT+1}, v{vLANE}, 1, 3")
    a.e(f"v_lshrrev_b32 v{vT+2}, 5, v{vLANE}")
    a.e(f"v_xor_b32 v{vT+1}, v{vT+1}, v{vT+2}")
    a.e(f"v_lshlrev_b32 v{vT+1}, 4, v{vT+1}")
    a.e(f"v_lshl_add_u32 v{vT}, v{vT}, 7, v{vT+1}")
    for s in range(4):
        a.e(f"v_xor_b32 v{vT+1}, {32*s}, v{vT}")
        a.e(f"v_add_u32 v{vXr+s}, s{sXl}, v{vT+1}")
    for t in c_stream(): a.e(t)
    a.e("s_waitcnt lgkmcnt(0)")
    def rd_w(n, m):
        i, s = divmod(n, 4)
        for t in range(2):
            a.e(f"ds_read_b64_tr_b16 {vr(vWf + (n % 2) * 12 + 4 * m + 2 * t, 2)}, v{vWr} offset:{((i % 5)*12 + 3*s + m) * 1024 + 256 * t}", tag=("w", n, m))
    def xreg(i, s, b): return [vXf, vXf2][b] + (i % 2) * 16 + 4 * s
    def rd_x(i, s, b):
        a.e(f"ds_read_b128 {vr(xreg(i,s,b), 4)}, v{vXr+s} offset:{(i % 3) * 4096 + b*49152}", tag=("x", i, s, b))
    a.e("s_barrier")
    st()
    rd_x(0, 0, 0); rd_w(0, 0); rd_x(0, 0, 1); rd_w(0, 1); rd_w(0, 2)
    for s in range(1, 4): rd_x(0, s, 0); rd_x(0, s, 1)
    for n in range(64):
        i, s = divmod(n, 4)
        fill = [[] for _ in range(6)]
        if s == 3 and i < 15:
            a.wait(lg=[("w", n, 2)])
            a.e("s_barrier")
            if (i + 1) % 4 == 0 and 'gs' not in Cfg.x: st()
        if n < 63:
            for m in range(3): fill[m].append(lambda m=m: rd_w(n + 1, m))
            if s == 3:
                fill[0].insert(0, lambda: rd_x(i + 1, 0, 0)); fill[1].insert(0, lambda: rd_x(i + 1, 0, 1))
                for s2 in range(1, 4):
                    for b in range(2): fill[2 + s2].append(lambda s2=s2, b=b: rd_x(i + 1, s2, b))
        for m in range(3):
            for b in range(2):
                a.wait(lg=[("w", n, m), ("x", i, s, b)])
                xf = vr(xreg(i, s, b), 4); wf = vr(vWf + (n % 2) * 12 + 4 * m, 4)
                acc = vr([vAQ, vA2][b] + 16 * m, 16)
                c = "0" if n == 0 else acc
                if m < 2: a.e(f"v_mfma_f32_32x32x16_bf16 {acc}, {wf}, {xf}, {c}")
                else:     a.e(f"v_mfma_f32_32x32x16_bf16 {acc}, {xf}, {wf}, {c}")
                for f in fill[2 * m + b]: f()
    st()

def get_tag(a):
    a.e(f"s_mov_b32 s{sSpin}, 0")
    a.wait(vm="tag")
    vm = list(a.vm)
    a.e("L_tagspin:")
    a.e(f"v_readfirstlane_b32 s{sTAG}, v{vT}")
    a.e(f"s_cmp_lg_u32 s{sTAG}, 0")
    a.e("s_cbranch_scc1 L_tagok")
    a.e(f"buffer_load_dword v{vT}, v{vT+1}, {sr(sDBG,4)}, 0 offen sc1")
    a.e("s_waitcnt vmcnt(0)")
    a.e(f"s_add_u32 s{sSpin}, s{sSpin}, 1")
    a.e(f"s_cmp_lt_u32 s{sSpin}, 0x40000")
    a.e("s_cbranch_scc1 L_tagspin")
    a.e("L_tagok:")
    a.vm = vm

def pack(a, dst, src, n):
    for i in range(n):
        a.e(f"v_cvt_pk_bf16_f32 v{dst+i}, v{src+2*i}, v{src+2*i+1}")

def epilogue1(a, st):
    a.e(f"s_lshl3_add_u32 s{sT0}, s{sR}, s{sWAVE}")
    a.e(f"s_lshl_b32 s{sT1}, s{sH}, 6")
    a.e(f"s_add_u32 s{sT1}, s{sT1}, s{sT0}")
    a.e(f"s_lshl_b32 s{sT1}, s{sT1}, 12")
    a.e(f"s_add_u32 s{sT2}, s{sT1}, {4*4096}")
    a.e(f"v_add_u32 v{vT}, s{sXl}, v{vL16}")
    for b in range(2):
        A = [vAQ, vA2][b]; P = vXf + 16 * b
        for f in range(4):
            pack(a, P + 4 * f, A + 16 + 8 * f, 4)
            a.e(f"buffer_store_dwordx4 {vr(P+4*f,4)}, v{vL16}, {sr(sWS,4)}, s{sT1+b} offen offset:{f*1024} sc1", tag="kvst")
            a.e(f"ds_write_b128 v{vT}, {vr(P+4*f,4)} offset:{b*49152 + f*1024}")
    a.e(f"s_mov_b32 s{sT0}, {hex(f2u(math.log2(math.e) / math.sqrt(32.0)))}")
    for b in range(2):
        A = [vAQ, vA2][b]; P = vWf + 8 * b
        for f in range(2):
            for i in range(8): a.e(f"v_mul_f32 v{A+8*f+i}, s{sT0}, v{A+8*f+i}")
            pack(a, P + 4 * f, A + 8 * f, 4)
            a.e(f"ds_write_b128 v{vT}, {vr(P+4*f,4)} offset:{b*49152 + 4096 + f*1024}")
    a.e("L_epi:")
    poll256_issue(a, FL_0, vJx)
    a.e(f"s_lshl3_add_u32 s{sT0}, s{sR}, s{sWAVE}")
    a.e(f"s_lshl_b32 s{sT1}, s{sH}, 6")
    a.e(f"s_add_u32 s{sT1}, s{sT1}, s{sT0}")
    a.e(f"s_lshl_b32 s{sKVo}, s{sT1}, 12")
    a.e(f"s_lshl3_add_u32 s{sF1o}, s{sH}, s{sWAVE}")
    a.e(f"s_lshl_b32 s{sF1o}, s{sF1o}, 7")
    a.e(f"s_add_u32 s{sF1o}, s{sF1o}, {hex(FL_KV)}")
    a.e(f"s_lshl2_add_u32 s{sT3}, s{sR}, s{sF1o}")
    a.e(f"s_lshl_b32 s{sT0}, s{sT0}, 5")
    a.e(f"s_add_u32 s{sT0}, s{sT0}, s{sH}")
    a.e(f"s_lshl_b32 s{sT0}, s{sT0}, 11")
    a.e(f"s_add_u32 s{sOFo}, s{sT0}, {hex(WS_OF)}")
    a.e(f"v_add_u32 v{vKVa}, 65536, v{vL16}")
    a.e(f"v_add_u32 v{vT}, s{sXl}, v{vL16}")
    a.e("s_waitcnt lgkmcnt(0)")
    a.e("s_barrier")
    for f in range(2):
        a.e(f"ds_read_b128 {vr(vQ+4*f,4)}, v{vT} offset:{4096 + f*1024}", tag="K")
        a.e(f"ds_read_b128 {vr(vK+4*f,4)}, v{vKVa} offset:{f*1024}", tag="K")
    a.e(f"ds_read_b32 v{vT+2}, v{vT} offset:6144", tag="K")
    a.e(f"v_bfe_u32 v{vT}, v{vLANE}, 4, 1")
    a.e(f"v_bfe_u32 v{vT+1}, v{vLANE}, 2, 1")
    a.e(f"v_cmp_eq_u32 vcc, v{vT}, v{vT+1}")
    a.e(f"v_mov_b32 v{vT}, 0x3f803f80")
    a.e(f"v_cndmask_b32 v{vSel}, 0, v{vT}, vcc")
    for i in range(1, 4): a.e(f"v_mov_b32 v{vSel+i}, v{vSel}")
    a.wait(lg="K")
    S = vS[0]
    a.e(f"v_mfma_f32_32x32x16_bf16 {vr(S,16)}, {vr(vK,4)}, {vr(vQ,4)}, 0")
    a.e(f"v_mfma_f32_32x32x16_bf16 {vr(S,16)}, {vr(vK+4,4)}, {vr(vQ+4,4)}, {vr(S,16)}")
    a.e(f"v_readfirstlane_b32 s{sTAG}, v{vT+2}")
    a.e(f"v_mov_b32 v{vKVa2}, v{vKVa}")
    for i in range(16): a.e(f"v_mov_b32 v{vO+i}, 0")
    rd_k(a, 1)
    rd_v(a, 0, 1)
    rd_v(a, 0, 0)
    for i in range(4): a.e(f"v_mov_b32 v{vLs+i}, 0")
    for i in range(4): a.e(f"v_mov_b32 v{vP+4+i}, 0")
    a.e(f"v_max3_f32 v{vT}, v{S}, v{S+1}, v{S+2}")
    for i in range(3, 15, 2):
        a.e(f"v_max3_f32 v{vT}, v{vT}, v{S+i}, v{S+i+1}")
    a.e(f"v_max_f32 v{vT}, v{vT}, v{S+15}")
    a.e(f"v_mov_b32 v{vT+1}, v{vT}")
    a.e(f"v_permlane32_swap_b32 v{vT}, v{vT+1}")
    a.e(f"v_max_f32 v{vT}, v{vT}, v{vT+1}")
    for i in range(16): a.e(f"v_sub_f32 v{vM+i}, 0, v{vT}")
    for i in range(16): a.e(f"v_sub_f32 v{S+i}, v{S+i}, v{vT}")
    st()

vJC, vJE, vJacc, vJx, vX9, vJz, vSelS, vA0, vA1 = 136, 172, 208, 240, 24, 4, 8, 12, 13

def a_loads():
    T = vT
    steps = []
    def setup(a):
        a.e(f"s_mul_i32 s{sJ+6}, s{sArr}, {hex(XSTR)}")
        a.e(f"s_lshl_b32 s{sT0}, s{sCb}, 7")
        a.e(f"s_add_u32 s{sJ+6}, s{sJ+6}, s{sT0}")
        a.e(f"s_add_u32 s{sJ+6}, s{sJ+6}, {hex(WS_XF)}")
        a.e(f"s_lshl_b32 s{sT0}, s{sWAVE}, 16")
        a.e(f"s_add_u32 s{sJ+7}, s{sJ+6}, s{sT0}")
        a.e(f"s_lshl_b32 s{sJ+8}, s{sWAVE}, 13")
        a.e(f"v_lshrrev_b32 v{T}, 2, v{vLANE}")
        a.e(f"v_and_b32 v{T+1}, 3, v{vLANE}")
        a.e(f"v_lshlrev_b32 v{T+1}, 4, v{T+1}")
        a.e(f"v_lshl_add_u32 v{T}, v{T}, 10, v{T+1}")
    steps.append(setup)
    for p in range(8):
        def f(a, p=p):
            a.e(f"s_add_u32 m0, s{sJ+8}, {p*1024}")
            a.e(f"s_add_u32 s{sT0}, s{sJ+7}, {(p//2)*16384 + (p%2)*64}")
            a.e(f"buffer_load_dwordx4 v{T}, {sr(sWS,4)}, s{sT0} offen sc1 lds", tag="al")
        steps.append(f)
    def esetup(a):
        a.e(f"v_lshrrev_b32 v{T+1}, 5, v{vLANE}")
        a.e(f"v_lshlrev_b32 v{T+1}, 4, v{T+1}")
        a.e(f"v_and_b32 v{T}, 3, v{vLANE}")
        a.e(f"v_bfe_u32 v{T+2}, v{vLANE}, 3, 1")
        a.e(f"v_lshl_add_u32 v{T}, v{T+2}, 2, v{T}")
        a.e(f"v_and_b32 v{T+2}, 3, v{T}")
        a.e(f"v_lshl_add_u32 v{T}, v{T}, 11, v{T+1}")
        a.e(f"v_cmp_eq_u32 vcc, 0, v{T+2}")
        a.e(f"v_mov_b32 v{T+2}, {hex(OOB)}")
        a.e(f"v_cndmask_b32 v{T}, v{T+2}, v{T}, vcc")
        a.e(f"v_cmp_ne_u32 vcc, 0, v{vSel}")
        a.e(f"v_cndmask_b32 v{T}, v{T+2}, v{T}, vcc")
        if "eo" in Cfg.x:
            a.e(f"s_xor_b32 s{sT0}, s{sR}, s{sCb}")
            a.e(f"s_and_b32 s{sT0}, s{sT0}, 1")
            a.e(f"s_lshr_b32 s{sT1}, s{sCb}, 1")
            a.e(f"s_or_b32 s{sT0}, s{sT0}, s{sT1}")
            a.e(f"s_cselect_b32 s{sT0}, {hex(OOB)}, 0")
            a.e(f"v_or_b32 v{T}, s{sT0}, v{T}")
        a.e(f"s_lshl_b32 s{sJ+7}, s{sArr}, 14")
        a.e(f"s_add_u32 s{sJ+7}, s{sJ+7}, {hex(WS_XE)}")
        a.e(f"s_lshl_b32 s{sT0}, s{sQ}, 8")
        a.e(f"s_add_u32 s{sJ+8}, s{sJ+7}, s{sT0}")
    steps.append(esetup)
    for j in range(8):
        steps.append(lambda a, j=j: a.e(f"buffer_load_dwordx4 {vr(vJE+4*j,4)}, v{T}, {sr(sWS,4)}, s{sJ+8} offen offset:{32*j} sc1", tag="al"))
    def nine(a):
        a.e(f"s_cmp_lg_u32 s{sQ}, 0")
        a.e(f"s_cselect_b32 s{sT0}, {hex(OOB)}, 0")
        a.e(f"v_lshlrev_b32 v{T+1}, 26, v{T+1}")
        a.e(f"v_or_b32 v{T+1}, s{sT0}, v{T+1}")
        a.e(f"v_or_b32 v{T}, v{T}, v{T+1}")
        a.e(f"buffer_load_ushort v{vJE+32}, v{T}, {sr(sWS,4)}, s{sJ+7} offen offset:1024 sc1")
        a.e(f"v_bfrev_b32 v{T}, v{vLANE}")
        a.e(f"v_bfe_u32 v{T}, v{T}, 27, 3")
        a.e(f"v_and_b32 v{T+2}, 3, v{vLANE}")
        a.e(f"v_lshl_add_u32 v{T}, v{T}, 2, v{T+2}")
        a.e(f"v_lshl_or_b32 v{T}, v{T}, 1, v{T+1}")
        a.e(f"s_lshl_b32 s{sT0}, s{sTt}, 6")
        a.e(f"s_add_u32 s{sT1}, s{sJ+6}, {512*1024}")
        a.e(f"s_add_u32 s{sT2}, s{sT1}, s{sT0}")
        a.e(f"buffer_load_ushort v{vX9}, v{T}, {sr(sWS,4)}, s{sT2} offen sc1")
        a.e(f"s_xor_b32 s{sT2}, s{sT2}, 64")
        a.e(f"buffer_load_ushort v{vX9+4}, v{T}, {sr(sWS,4)}, s{sT2} offen sc1", tag="al")
    steps.append(nine)
    return steps

def job_a(a):
    T = vT
    a.e(f"v_lshrrev_b32 v{T}, 5, v{vLANE}")
    a.e(f"v_lshlrev_b32 v{T}, 9, v{T}")
    a.e(f"v_bfe_u32 v{T+1}, v{vLANE}, 2, 2")
    a.e(f"v_lshl_add_u32 v{T}, v{T+1}, 6, v{T}")
    a.e(f"v_and_b32 v{T+1}, 1, v{vLANE}")
    a.e(f"v_lshl_add_u32 v{T}, v{T+1}, 5, v{T}")
    a.e(f"v_bfe_u32 v{T+1}, v{vLANE}, 1, 1")
    a.e(f"v_lshl_add_u32 v{T}, v{T+1}, 4, v{T}")
    a.e(f"v_bfe_u32 v{T+1}, v{vLANE}, 4, 1")
    a.e(f"v_lshl_add_u32 v{T}, v{T+1}, 3, v{T}")
    a.e(f"s_lshl_b32 s{sT0}, s{sQ}, 14")
    a.e(f"s_lshl_b32 s{sT1}, s{sTt}, 10")
    a.e(f"s_add_u32 s{sT0}, s{sT0}, s{sT1}")
    a.e(f"v_add_u32 v{vA0}, s{sT0}, v{T}")
    a.e(f"v_xor_b32 v{vA1}, 1024, v{vA0}")
    def rd(j):
        for sg in range(2):
            for t in range(2):
                a.e(f"ds_read_b64_tr_b16 {vr(vJx + (j%2)*8 + 4*sg + 2*t, 2)}, v{[vA0, vA1][sg]} offset:{j*2048 + 256*t}", tag=("xa", j))
    a.wait(vm="al")
    a.e("s_barrier")
    Cfg.s0()
    vm0 = list(a.vm)
    rd(0); rd(1)
    for r in (vX9 + 1, vX9 + 2, vX9 + 3, vX9 + 5, vX9 + 6, vX9 + 7, vJE + 33, vJE + 34, vJE + 35):
        a.e(f"v_mov_b32 v{r}, 0")
    a.e(f"v_lshlrev_b32 v{T}, 2, v{vSel}")
    a.e(f"v_and_b32 v{T}, 0x80000000, v{T}")
    for i in range(4): a.e(f"v_or_b32 v{vSelS+i}, v{T}, v{vSel}")
    a.e(f"s_xor_b32 s{sT0}, s{sR}, s{sCb}")
    a.e(f"s_bitcmp1_b32 s{sT0}, 0")
    a.e("s_cbranch_scc1 L_jaY")
    lg = list(a.lg)
    z = vr(vJz, 4)
    for ver in "XY":
        if ver == "Y":
            a.e("L_jaY:"); a.lg = list(lg)
        for sg in range(2):
            a.e(f"v_mfma_f32_32x32x16_bf16 {vr(vJacc+16*sg,16)}, {vr(vX9+4*sg,4)}, {vr(vJC+32,4)}, 0")
        if ver == "X": a.e(f"v_mfma_f32_16x16x32_bf16 {z}, {vr(vJE+32,4)}, {vr(vJC+32,4)}, 0")
        else:          a.e(f"v_mfma_f32_16x16x32_bf16 {z}, {vr(vSelS,4)}, {vr(vX9,4)}, 0")
        for j in range(8):
            a.wait(lg=("xa", j))
            x = vJx + (j % 2) * 8
            for sg in range(2):
                a.e(f"v_mfma_f32_32x32x16_bf16 {vr(vJacc+16*sg,16)}, {vr(x+4*sg,4)}, {vr(vJC+4*j,4)}, {vr(vJacc+16*sg,16)}")
            if ver == "X": a.e(f"v_mfma_f32_16x16x32_bf16 {z}, {vr(vJE+4*j,4)}, {vr(vJC+4*j,4)}, {z}")
            else:          a.e(f"v_mfma_f32_16x16x32_bf16 {z}, {vr(vSelS,4)}, {vr(x,4)}, {z}")
            if j + 2 < 8: rd(j + 2)
        a.e(f"v_and_b32 v{T}, 31, v{vLANE}")
        a.e(f"v_lshrrev_b32 v{T+1}, 5, v{vLANE}")
        if ver == "X":
            a.e(f"s_cmp_ge_u32 s{sCb}, 2")
            a.e("s_cbranch_scc1 L_jaC")
            a.e(f"v_lshlrev_b32 v{T+3}, 4, v{T+1}")
            a.e(f"v_lshl_add_u32 v{T+2}, v{T}, 6, v{T+3}")
            a.e(f"s_lshr_b32 s{sT0}, s{sArr}, 1")
            a.e(f"s_lshl_b32 s{sT0}, s{sT0}, 16")
            a.e(f"s_lshl2_add_u32 s{sT0}, s{sQ}, s{sT0}")
            a.e(f"s_add_u32 s{sT0}, s{sT0}, {hex(WS_ZC)}")
            a.e(f"s_lshl_b32 s{sT1}, s{sTrow}, 5")
            a.e(f"s_add_u32 s{sT1}, s{sT1}, s{sT0}")
            def zsum():
                a.e(f"v_add_f32 v{vJz}, v{vJz}, v{vJz+1}")
                a.e(f"v_add_f32 v{vJz+2}, v{vJz+2}, v{vJz+3}")
                a.e(f"v_add_f32 v{T+4}, v{vJz}, v{vJz+2}")
            zsum()
            a.e(f"buffer_store_dword v{T+4}, v{T+2}, {sr(sWS,4)}, s{sT1} offen sc1")
            a.e(f"s_or_b32 s{sT1}, s{sH}, s{sTrow}")
            a.e(f"s_cmp_lg_u32 s{sT1}, 0")
            a.e("s_cbranch_scc1 L_jaC")
            for i in range(4): a.e(f"v_mov_b32 v{vSelS+i}, 0xbf803f80")
            for j in range(9):
                a.e(f"v_mfma_f32_16x16x32_bf16 {z}, {vr(vJE+4*j,4)}, {vr(vSelS,4)}, {z if j else 0}")
            a.e(f"s_add_u32 s{sT1}, s{sT0}, {1024*32}")
            zsum()
            a.e(f"buffer_store_dword v{T+4}, v{T+3}, {sr(sWS,4)}, s{sT1} offen sc1")
            a.e("s_branch L_jaC")
        else:
            a.e(f"s_lshr_b32 s{sT0}, s{sR}, 1")
            a.e(f"s_or_b32 s{sT0}, s{sT0}, s{sArr}")
            a.e(f"s_cmp_lg_u32 s{sT0}, 0")
            a.e("s_cbranch_scc1 L_jaC")
            a.e(f"v_lshrrev_b32 v{T+2}, 4, v{T}")
            a.e(f"v_mul_u32_u24 v{T+2}, {hex(UVSTR)}, v{T+2}")
            a.e(f"v_bfe_u32 v{T+3}, v{T}, 2, 1")
            a.e(f"v_lshl_add_u32 v{T+2}, v{T+3}, 9, v{T+2}")
            a.e(f"v_bfe_u32 v{T+3}, v{T}, 3, 1")
            a.e(f"v_lshl_add_u32 v{T+2}, v{T+3}, 3, v{T+2}")
            a.e(f"v_and_b32 v{T+3}, 3, v{T}")
            a.e(f"v_lshl_add_u32 v{T+2}, v{T+3}, 1, v{T+2}")
            a.e(f"v_lshl_or_b32 v{T+2}, v{T+1}, 30, v{T+2}")
            a.e(f"s_lshl1_add_u32 s{sT0}, s{sCb}, s{sTt}")
            a.e(f"s_lshl_b32 s{sT0}, s{sT0}, 10")
            a.e(f"s_and_b32 s{sT1}, s{sQ}, 1")
            a.e(f"s_lshl_b32 s{sT1}, s{sT1}, 8")
            a.e(f"s_add_u32 s{sT0}, s{sT0}, s{sT1}")
            a.e(f"s_lshr_b32 s{sT1}, s{sQ}, 1")
            a.e(f"s_lshl4_add_u32 s{sT0}, s{sT1}, s{sT0}")
            a.e(f"s_add_u32 s{sT0}, s{sT0}, {hex(WS_UV + 32*16384)}")
            a.e(f"v_cvt_pk_bf16_f32 v{T+4}, v{vJz}, v{vJz}")
            a.e(f"buffer_store_short v{T+4}, v{T+2}, {sr(sWS,4)}, s{sT0} offen sc1")
    a.e("L_jaC:")
    a.vm = vm0
    Cfg.s0()
    js = "js" in Cfg.x
    vW, vG, sG_ = (vA0, vA1, sJ + 13) if js else (T + 2, T + 3, sT0)
    if not js: a.e("s_barrier")
    a.e(f"s_lshl_b32 s{sT0}, s{sWAVE}, 13")
    a.e(f"v_add_u32 v{vW}, s{sT0}, v{vL16}")
    if not js:
        a.e("s_nop 7")
        for c in range(8): ja_write(a, c, vW)
        ja_raddr(a, vW)
    a.e(f"v_lshrrev_b32 v{vG}, 4, v{T}")
    a.e(f"v_lshlrev_b32 v{vG}, 14, v{vG}")
    a.e(f"v_lshl_add_u32 v{vG}, v{T+1}, 9, v{vG}")
    a.e(f"v_and_b32 v{T}, 15, v{T}")
    a.e(f"v_lshl_add_u32 v{vG}, v{T}, 4, v{vG}")
    a.e(f"s_and_b32 s{sT0}, s{sArr}, 2")
    a.e(f"s_and_b32 s{sT1}, s{sQ}, 1")
    a.e(f"s_add_u32 s{sT0}, s{sT0}, s{sT1}")
    a.e(f"s_mul_i32 s{sT0}, s{sT0}, {hex(UVSTR)}")
    a.e(f"s_lshr_b32 s{sT1}, s{sTrow}, 6")
    a.e(f"s_lshl_b32 s{sT1}, s{sT1}, 15")
    a.e(f"s_add_u32 s{sT0}, s{sT0}, s{sT1}")
    a.e(f"s_lshr_b32 s{sT1}, s{sQ}, 1")
    a.e(f"s_xor_b32 s{sT1}, s{sT1}, s{sTt}")
    a.e(f"s_lshl1_add_u32 s{sT1}, s{sCb}, s{sT1}")
    a.e(f"s_lshl_b32 s{sT1}, s{sT1}, 10")
    a.e(f"s_add_u32 s{sT0}, s{sT0}, s{sT1}")
    a.e(f"s_and_b32 s{sT1}, s{sArr}, 1")
    a.e(f"s_lshl_b32 s{sT1}, s{sT1}, 8")
    a.e(f"s_add_u32 s{sT0}, s{sT0}, s{sT1}")
    a.e(f"s_add_u32 s{sG_}, s{sT0}, {hex(WS_UV)}")
    if js: return
    a.e("s_waitcnt lgkmcnt(0)")
    a.e("s_barrier")
    for w in range(4): ja_read(a, w, vW)
    for w in range(1, 4): ja_add(a, w)
    ja_store(a, vG, sG_)
def ja_write(a, c, vW):
    a.e(f"ds_write_b128 v{vW}, {vr(vJacc+4*c,4)} offset:{c*1024}", tag="jw")
def ja_raddr(a, vW):
    a.e(f"s_lshl_b32 s{sT0}, s{sTt}, 15")
    a.e(f"s_lshl_b32 s{sT1}, s{sQ}, 11")
    a.e(f"s_add_u32 s{sT0}, s{sT0}, s{sT1}")
    a.e(f"v_add_u32 v{vW}, s{sT0}, v{vL16}")
def ja_read(a, w, vW):
    for c in range(2):
        a.e(f"ds_read_b128 {vr(vJC+8*w+4*c,4)}, v{vW} offset:{w*8192 + c*1024}", tag=("ra", w))
def ja_add(a, w):
    a.wait(lg=("ra", w))
    for i in range(8): a.e(f"v_add_f32 v{vJC+i}, v{vJC+i}, v{vJC+8*w+i}")
def ja_store(a, vG, sG_):
    pack(a, vJC + 8, vJC, 4)
    a.e(f"buffer_store_dwordx4 {vr(vJC+8,4)}, v{vG}, {sr(sWS,4)}, s{sG_} offen sc1", tag="uv")

def poll256_issue(a, off, reg):
    if isinstance(off, tuple):
        a.e(f"buffer_load_dwordx4 {vr(reg,4)}, v{off[0]}, {sr(sWS,4)}, s{off[1]} offen sc1", tag="poll")
        return
    a.e(f"s_mov_b32 s{sT0}, {hex(off)}")
    a.e(f"buffer_load_dwordx4 {vr(reg,4)}, v{vL16}, {sr(sWS,4)}, s{sT0} offen sc1", tag="poll")
def poll256_check(a, off, reg, lbl, slp=8):
    a.e(f"s_mov_b32 s{sSpin}, 0")
    a.e(f"{lbl}_spin:")
    a.e(f"v_xor_b32 v{reg}, s{sTAG}, v{reg}")
    a.e(f"v_xor_b32 v{reg+1}, s{sTAG}, v{reg+1}")
    a.e(f"v_xor_b32 v{reg+2}, s{sTAG}, v{reg+2}")
    a.e(f"v_xor_b32 v{reg+3}, s{sTAG}, v{reg+3}")
    a.e(f"v_or3_b32 v{reg}, v{reg}, v{reg+1}, v{reg+2}")
    a.e(f"v_or_b32 v{reg}, v{reg}, v{reg+3}")
    a.e(f"v_cmp_ne_u32 vcc, 0, v{reg}")
    a.e(f"s_cmp_eq_u64 vcc, 0")
    a.e(f"s_cbranch_scc1 {lbl}_ok")
    vm = list(a.vm)
    a.e(f"s_sleep {slp}")
    poll256_issue(a, off, reg)
    a.e("s_waitcnt vmcnt(0)")
    a.e(f"s_add_u32 s{sSpin}, s{sSpin}, 1")
    a.e(f"s_cmp_lt_u32 s{sSpin}, 0x40000")
    a.e(f"s_cbranch_scc1 {lbl}_spin")
    a.e(f"{lbl}_ok:")
    a.vm = vm

def rd_k(a, t):
    for f in range(2):
        a.e(f"ds_read_b128 {vr(vK+4*f,4)}, v{vKVa} offset:{t*12288 + f*1024}", tag="K")
def rd_v(a, t, f):
    a.e(f"ds_read_b128 {vr(vV+4*f,4)}, v{vKVa2} offset:{t*12288 + (2+f)*1024}", tag=f"V{f+1}")
vKVa2 = 20

vSm, vSa, vSi = 4, 8, 23
def sm_setup(a):
    a.e(f"v_and_b32 v{vSi}, 4, v{vLANE}")
    a.e(f"v_cmp_eq_u32 vcc, 0, v{vSi}")
    a.e(f"v_mov_b32 v{vSi}, 0x3f803f80")
    for i in range(2): a.e(f"v_cndmask_b32 v{vSa+i}, 0, v{vSi}, vcc")
    for i in range(2): a.e(f"v_xor_b32 v{vSa+2+i}, v{vSi}, v{vSa}")
    a.e(f"v_and_b32 v{vSi}, 1, v{vLANE}")
    a.e(f"v_mul_u32_u24 v{vSi}, 0xaaaa, v{vSi}")
    a.e(f"v_or_b32 v{vSi}, 0x4444, v{vSi}")
    for i in range(4): a.e(f"v_mov_b32 v{vSm+i}, 0")
def att_body(a, par, hooks, last=False, sm=False):
    S = vS[par]; N = vS[1 - par]
    def ex(*idx):
        for i in idx: a.e(f"v_exp_f32 v{S+i}, v{S+i}")
    def cv(j): a.e(f"v_cvt_pk_bf16_f32 v{vP+j}, v{S+2*j}, v{S+2*j+1}")
    def hk(p):
        for f in hooks.get(p, []): f()
    S1 = lambda: last or a.e(f"v_mfma_f32_32x32x16_bf16 {vr(N,16)}, {vr(vK,4)}, {vr(vQ,4)}, {vr(vM,16)}")
    S2 = lambda: last or a.e(f"v_mfma_f32_32x32x16_bf16 {vr(N,16)}, {vr(vK+4,4)}, {vr(vQ+4,4)}, {vr(N,16)}")
    PV = lambda f: a.e(f"v_mfma_f32_32x32x16_bf16 {vr(vO,16)}, {vr(vV+4*f,4)}, {vr(vP+4*f,4)}, {vr(vO,16)}")
    LS = lambda f: a.e(f"v_mfma_f32_16x16x32_bf16 {vr(vLs,4)}, {vr(vSel,4)}, {vr(vP+4*f,4)}, {vr(vLs,4)}")
    if "b2" in Cfg.x:
        a.wait(lg=["K", "V2"])
        S1(); ex(0, 1); hk(1); ex(2, 3); cv(0); cv(1)
        PV(1); ex(4, 5); LS(1); ex(6, 7); cv(2); cv(3)
        S2(); hk(2); ex(8, 9, 10, 11); cv(4); cv(5)
        a.wait(lg="V1")
        PV(0); ex(12, 13); hk(3); LS(0); hk(4); ex(14, 15); cv(6); cv(7)
        return
    if sm:
        SM = lambda: a.e(f"v_smfmac_f32_16x16x64_bf16 {vr(vSm,4)}, {vr(vSa,4)}, {vr(vP,8)}, v{vSi}")
        a.wait(lg=["K", "V2"])
        if "m3" in Cfg.x:
            S1(); ex(0, 1); hk(1); ex(2, 3); cv(0); cv(1); ex(4)
            PV(1); ex(5, 6, 7); cv(2); cv(3); ex(8)
            S2(); hk(2); ex(9); SM(); ex(10, 11); cv(4)
            a.wait(lg="V1")
            PV(0); hk(3); cv(5); ex(12, 13); hk(4); ex(14, 15); cv(6); cv(7)
            return
        if "m4" in Cfg.x:
            S1(); ex(0, 1); hk(1); ex(2, 3); cv(0); cv(1)
            PV(1); ex(4, 5, 6, 7); cv(2); cv(3)
            S2(); hk(2); ex(8, 9, 10, 11)
            a.wait(lg="V1")
            PV(0); hk(3); ex(12, 13); SM(); hk(4); ex(14, 15); cv(4); cv(5); cv(6); cv(7)
            return
        if "m5" in Cfg.x:
            S1(); ex(0, 1); hk(1); cv(0); ex(2, 3); cv(1)
            PV(1); ex(4, 5); cv(2); ex(6, 7); cv(3)
            S2(); hk(2); ex(8, 9); SM(); ex(10); cv(4); ex(11); cv(5)
            a.wait(lg="V1")
            PV(0); hk(3); ex(12, 13); hk(4); cv(6); ex(14, 15); cv(7)
            return
        if "m2" in Cfg.x:
            S1(); ex(0, 1); hk(1); ex(2, 3); cv(0); cv(1)
            PV(1); ex(4, 5, 6, 7); cv(2); cv(3)
            S2(); hk(2); ex(8, 9); SM(); ex(10, 11); cv(4); cv(5)
            a.wait(lg="V1")
            PV(0); hk(3); ex(12, 13); hk(4); ex(14, 15); cv(6); cv(7)
            return
        S1(); ex(0, 1); hk(1); ex(2, 3); cv(0); cv(1); ex(4)
        PV(1); ex(5, 6, 7); cv(2); cv(3)
        S2(); hk(2); ex(8, 9, 10); SM(); ex(11); cv(4); cv(5); ex(12)
        a.wait(lg="V1")
        PV(0); hk(3); ex(13); hk(4); ex(14, 15); cv(6); cv(7)
        return
    if "b3" in Cfg.x:
        a.wait(lg=["K", "V2"])
        S1(); ex(0, 1); hk(1); ex(2, 3); LS(1); cv(0); cv(1); ex(4)
        PV(1); ex(5, 6, 7); cv(2); cv(3)
        S2(); hk(2); ex(8, 9, 10, 11); LS(0); cv(4); cv(5); ex(12)
        a.wait(lg="V1")
        PV(0); hk(3); ex(13); hk(4); ex(14, 15); cv(6); cv(7)
        return
    a.wait(lg=["K", "V2"])
    if not last: a.e(f"v_mfma_f32_32x32x16_bf16 {vr(N,16)}, {vr(vK,4)}, {vr(vQ,4)}, {vr(vM,16)}")
    ex(0, 1)
    hk(1)
    a.e(f"v_mfma_f32_32x32x16_bf16 {vr(vO,16)}, {vr(vV+4,4)}, {vr(vP+4,4)}, {vr(vO,16)}")
    ex(2, 3)
    a.e(f"v_mfma_f32_16x16x32_bf16 {vr(vLs,4)}, {vr(vSel,4)}, {vr(vP+4,4)}, {vr(vLs,4)}")
    ex(4, 5); cv(0); cv(1)
    if not last: a.e(f"v_mfma_f32_32x32x16_bf16 {vr(N,16)}, {vr(vK+4,4)}, {vr(vQ+4,4)}, {vr(N,16)}")
    hk(2)
    ex(6, 7); cv(2); ex(8); cv(3); ex(9, 10)
    a.wait(lg="V1")
    a.e(f"v_mfma_f32_32x32x16_bf16 {vr(vO,16)}, {vr(vV,4)}, {vr(vP,4)}, {vr(vO,16)}")
    ex(11, 12)
    hk(3)
    a.e(f"v_mfma_f32_16x16x32_bf16 {vr(vLs,4)}, {vr(vSel,4)}, {vr(vP,4)}, {vr(vLs,4)}")
    hk(4)
    ex(13, 14); cv(4); ex(15); cv(5); cv(6); cv(7)

def kv_dma(a, q):
    a.e(f"buffer_load_dwordx4 v{vL16}, {sr(sWS,4)}, s{sKVsrc} offen offset:{q*1024} sc1 lds", tag="kv")

def kv_dma_setup(a):
    a.e(f"s_add_u32 s{sT0}, s{sKVsrc}, {8*4096}")
    a.e(f"s_and_b32 s{sT0}, s{sT0}, 0x3ffff")
    a.e(f"s_andn2_b32 s{sKVsrc}, s{sKVsrc}, 0x3ffff")
    a.e(f"s_or_b32 s{sKVsrc}, s{sKVsrc}, s{sT0}")
    a.e(f"s_add_u32 s{sSlot}, s{sSlot}, 4096")
    a.e(f"s_cmp_eq_u32 s{sSlot}, {3*4096}")
    a.e(f"s_cselect_b32 s{sSlot}, 0, s{sSlot}")
    a.e(f"s_add_u32 m0, s{sXl}, s{sSlot}")

def attention(a, st):
    a.e(f"s_mov_b32 s{sKVsrc}, s{sKVo}")
    a.e(f"s_mov_b32 s{sSlot}, 0")
    a.e(f"s_mov_b32 s{sKVl}, 65536")
    def adv_k(second_half_next):
        if second_half_next:
            a.e(f"v_add_u32 v{vKVa}, 49152, v{vKVa}")
        else:
            a.e(f"s_add_u32 s{sKVl}, s{sKVl}, 4096")
            a.e(f"s_cmp_eq_u32 s{sKVl}, {65536+3*4096}")
            a.e(f"s_cselect_b32 s{sKVl}, 65536, s{sKVl}")
            a.e(f"v_add_u32 v{vKVa}, s{sKVl}, v{vL16}")
    def group(g, extra):
        for t in range(8):
            h = {1: [], 2: [], 3: [], 4: []}
            tk = (t + 2) % 4
            last = g == 7 and t >= 6
            for f in extra.get((t, 0), []): f()
            if tk == 0 and not last:
                if t == 6:
                    h[2].append(lambda: (a.wait(vm=[("kv", g + 1)] + (["uv"] if g == 1 + Cfg.jg else [])), a.e("s_barrier")))
                h[2].append(lambda t=t: adv_k(t == 2))
            if not last: h[2].append(lambda tk=tk: rd_k(a, tk))
            h[2].append(lambda t=t: rd_v(a, t % 4, 1))
            if not (g == 7 and t == 7):
                if (t + 1) % 4 == 0:
                    h[4].append(lambda: a.e(f"v_mov_b32 v{vKVa2}, v{vKVa}"))
                h[4].append(lambda t=t: rd_v(a, (t + 1) % 4, 0))
            for p in (1, 2, 3, 4):
                h[p] += extra.get((t, p), [])
            att_body(a, t % 2, h, g == 7 and t == 7, sm="sm" in Cfg.x and (g, t) >= (Cfg.jg, 7))
    def flag_store():
        a.wait(vm="kvst")
        a.e(f"v_mov_b32 v{vT}, s{sTAG}")
        a.e(f"s_lshl_b32 s{sT0}, s{sTt}, 30")
        a.e(f"v_lshl_or_b32 v{vT+1}, v{vL16}, 5, s{sT0}")
        a.e("s_mov_b64 exec, 3")
        a.e(f"buffer_store_dword v{vT}, v{vT+1}, {sr(sWS,4)}, s{sT3} offen sc1")
        a.e("s_mov_b64 exec, -1")
    def poll_issue():
        a.e(f"v_and_b32 v{vT+4}, 7, v{vLANE}")
        a.e(f"v_lshlrev_b32 v{vT+4}, 2, v{vT+4}")
        a.e(f"buffer_load_dword v{vT+5}, v{vT+4}, {sr(sWS,4)}, s{sF1o} offen sc1", tag="kpoll")
    def poll_check():
        a.e(f"s_mov_b32 s{sSpin}, 0")
        a.wait(vm="kpoll")
        vm = list(a.vm)
        a.e("L_kvspin:")
        a.e(f"v_cmp_eq_u32 vcc, s{sTAG}, v{vT+5}")
        a.e("s_cmp_eq_u64 vcc, -1")
        a.e("s_cbranch_scc1 L_kvok")
        a.e(f"buffer_load_dword v{vT+5}, v{vT+4}, {sr(sWS,4)}, s{sF1o} offen sc1")
        a.e("s_waitcnt vmcnt(0)")
        a.e(f"s_add_u32 s{sSpin}, s{sSpin}, 1")
        a.e(f"s_cmp_lt_u32 s{sSpin}, 0x40000")
        a.e("s_cbranch_scc1 L_kvspin")
        a.e("L_kvok:")
        a.vm = vm
    def dma(g, q):
        if q == 0: kv_dma_setup(a)
        kv_dma(a, q); a.vm[-1] = ("kv", g)
    def chk(off, lbl):
        a.wait(vm="poll"); poll256_check(a, off, vJx, lbl)
    EX = [dict() for _ in range(8)]
    def at(g, t, p, f, *x): EX[g].setdefault((t, p), []).append(lambda: f(*x))
    def spread(items, n0, per=2):
        for i, (f, *x) in enumerate(items):
            n = n0 + i // per
            at(n // 8, n % 8, {1: [1], 2: [1, 3], 4: [1, 2, 3, 4]}[per][i % per], f, *x)
    steps = a_loads()
    s0 = st if "g0" in Cfg.x else (lambda: None)
    Cfg.s0 = s0
    at(0, 1, 1, s0); at(0, 1, 1, flag_store); at(0, 1, 1, s0); at(0, 1, 1, chk, FL_0, "L_pf0"); at(0, 1, 1, s0); at(0, 4, 3, s0); at(0, 6, 0, s0); at(0, 1, 1, wf_stores, a)
    JG = Cfg.jg
    at(0, 3, 1, poll_issue)
    if JG:
        sl = [(n // 8, n % 8, p) for n in range(2, 14) for p in (1, 4)] if "l2" in Cfg.x else \
             [(n // 8, n % 8, p) for n in range(5, 14) for p in (1, 3, 4)][1:]
        at(*sl[0], steps[0], a)
        for i in range(8): at(*sl[i], steps[1 + i], a)
        at(*sl[8], steps[9], a)
        for i in range(9): at(*sl[8 + i], steps[10 + i], a)
        EX[0].setdefault((2, 1), [])
    else:
        at(0, 1, 1, steps[0], a)
        for i in range(8): at(0, 1 + (i + 1) // 4, 1 + (i + 1) % 4, steps[1 + i], a)
        at(0, 3, 1, steps[9], a)
        for i in range(9): at(0, 3 + (i // 2 + 1) // 4, 1 + (i // 2 + 1) % 4, steps[10 + i], a)
    at(0, 4, 3, poll_check); at(0, 4, 3, st)
    if "ek" in Cfg.x:
        sE = sJ + 9
        def early():
            a.wait(vm="kpoll")
            vm = list(a.vm)
            a.e(f"v_cmp_eq_u32 vcc, s{sTAG}, v{vT+5}")
            a.e(f"s_add_u32 s{sT0}, s{sR}, 1")
            a.e(f"s_lshr_b32 s{sT0}, vcc_lo, s{sT0}")
            a.e(f"s_andn2_b32 s{sE}, 3, s{sT0}")
            a.e("s_cbranch_scc1 L_ek0")
            for g in (1, 2):
                for q in range(4): dma(g, q)
            a.e("L_ek0:")
            a.vm = vm
        def late(g):
            a.e(f"s_cmp_eq_u32 s{sE}, 0")
            a.e(f"s_cbranch_scc1 L_ek{g}")
            for q in range(4): dma(g, q)
            a.e(f"L_ek{g}:")
        def alw():
            vm = list(a.vm)
            a.e(f"s_cmp_lg_u32 s{sE}, 0")
            a.e("s_cbranch_scc1 L_ek3")
            a.e("s_waitcnt vmcnt(0)")
            a.e("L_ek3:")
            a.vm = vm
        et = 1 if "e1" in Cfg.x else 2
        at(0, 0, 1, poll_issue)
        if et == 1: EX[0][(1, 1)].insert(4, early)
        else: EX[0][(et, 1)].insert(0, early)
        at(0, 4, 3, late, 1); at(0, 5, 1, late, 2)
        if not JG: at(0, 6, 0, alw)
    else:
        for q in range(4): at(0, 4, 3, dma, 1, q)
        for q in range(4): at(0, 5, 1 if JG else 1 + q, dma, 2, q)
    at(JG, 6, 0, job_a, a); at(0, 6, 0, s0); at(0, 6, 3, s0)
    if "sm" in Cfg.x: at(JG, 6, 1, sm_setup, a)
    if "js" in Cfg.x:
        for c, (t, p) in enumerate([(6, 3), (6, 4), (7, 1), (7, 3)]):
            at(JG, t, p, ja_write, a, 2 * c, vA0); at(JG, t, p, ja_write, a, 2 * c + 1, vA0)
        at(JG, 7, 4, ja_raddr, a, vA0)
        at(JG + 1, 0, 3, lambda: (a.wait(lg="jw"), a.e("s_barrier")))
        for w, (t, p) in enumerate([(0, 3), (0, 4), (1, 1), (1, 3)]): at(JG + 1, t, p, ja_read, a, w, vA0)
        for w, (t, p) in enumerate([(2, 1), (2, 3), (3, 1)]): at(JG + 1, t, p, ja_add, a, w + 1)
        at(JG + 1, 3, 3, ja_store, a, vA1, sJ + 13)
    for g in range(1, 6):
        for q, (t, p) in enumerate([(6, 3), (6, 4), (7, 1), (7, 3)]): at(g, t, p, dma, g + 2, q)
    at(1 + JG, 0, 1, b_setup, a)
    spread([(df_load, a, j) for j in range(8)], 16 + 8 * JG, 1)
    spread([(wf_load, a, n) for n in range(28, 32)], 36, 2)
    at(1 + JG, 6, 3, flag_wg, a, FL_A, "L_fa")
    at(3, 5, 1, poll256_issue, a, FL_A, vJx)
    at(4, 0, 1, chk, FL_A, "L_pa"); at(4, 0, 1, uv_setup, a)
    spread([(uv_load, a, j) for j in range(8)], 32, 2)
    at(4, 4, 1, uv_extra, a)
    spread([(b_mfma, a, j) for j in range(8)], 40, 2)
    at(5, 4, 1, b_extra, a); at(5, 5, 1, b_write, a)
    spread([(wf_load, a, n) for n in range(0, 4)], 44, 2)
    spread([(wf_load, a, n) for n in range(4, 28)], 48, 2)
    for g in range(8):
        group(g, EX[g])
        if g == 0 or (g < 7 and 'gs' in Cfg.x and 'g0' not in Cfg.x): st()
    a.wait(lg="V2")
    a.e(f"v_mfma_f32_32x32x16_bf16 {vr(vO,16)}, {vr(vV+4,4)}, {vr(vP+4,4)}, {vr(vO,16)}")
    a.e(f"v_mfma_f32_16x16x32_bf16 {vr(vLs,4)}, {vr(vSel,4)}, {vr(vP+4,4)}, {vr(vLs,4)}")
    st()
    if "sm" in Cfg.x:
        a.e(f"v_add_f32 v{vSm}, v{vSm}, v{vSm+1}")
        a.e(f"v_add_f32 v{vLs}, v{vLs}, v{vSm}")
    o_store(a)
    a.e(f"v_mfma_f32_16x16x32_bf16 {vr(vS[0],4)}, {vr(vSel,4)}, {vr(vP,4)}, 0")
    a.e(f"v_mfma_f32_16x16x32_bf16 {vr(vS[0],4)}, {vr(vSel,4)}, {vr(vP+4,4)}, {vr(vS[0],4)}")
    a.e(f"s_mov_b32 s{sT2}, {hex(f2u(2.0**(-30 if 'fb' in Cfg.x else 100)))}")
    a.e(f"v_cmp_nge_f32_e64 {sr(sT0,2)}, s{sT2}, v{vLs}")
    a.e(f"v_mov_b32 v{vT}, 0x207")
    a.e(f"v_cmp_class_f32 vcc, v{vS[0]}, v{vT}")
    a.e(f"s_or_b64 vcc, vcc, {sr(sT0,2)}")
    a.e("s_cbranch_scc1 L_fb")
    a.e("L_fbret:")
def o_store(a):
    a.e(f"v_rcp_f32 v{vT}, v{vLs}")
    for i in range(16): a.e(f"v_mul_f32 v{vO+i}, v{vT}, v{vO+i}")
    pack(a, vP, vO, 8)
    for f in range(2):
        a.e(f"buffer_store_dwordx4 {vr(vP+4*f,4)}, v{vL16}, {sr(sWS,4)}, s{sOFo} offen offset:{f*1024} sc1", tag="ost")
def fallback(a):
    S = vS[0]
    a.e("L_fb:")
    a.e("s_waitcnt vmcnt(0) lgkmcnt(0)")
    a.e(f"s_lshl_b32 s{sT0}, s{sH}, 18")
    a.e(f"s_add_u32 s{sT1}, s{sT0}, {hex(1 << 18)}")
    a.e(f"v_mov_b32 v{vT}, 0xff800000")
    a.e("L_fb1:")
    for f in range(2):
        a.e(f"buffer_load_dwordx4 {vr(vK+4*f,4)}, v{vL16}, {sr(sWS,4)}, s{sT0} offen offset:{f*1024} sc1")
    a.e("s_waitcnt vmcnt(0)")
    a.e(f"v_mfma_f32_32x32x16_bf16 {vr(S,16)}, {vr(vK,4)}, {vr(vQ,4)}, 0")
    a.e(f"v_mfma_f32_32x32x16_bf16 {vr(S,16)}, {vr(vK+4,4)}, {vr(vQ+4,4)}, {vr(S,16)}")
    for i in range(0, 16, 2):
        a.e(f"v_max3_f32 v{vT}, v{vT}, v{S+i}, v{S+i+1}")
    a.e(f"s_add_u32 s{sT0}, s{sT0}, 4096")
    a.e(f"s_cmp_lt_u32 s{sT0}, s{sT1}")
    a.e("s_cbranch_scc1 L_fb1")
    a.e(f"v_mov_b32 v{vT+1}, v{vT}")
    a.e(f"v_permlane32_swap_b32 v{vT}, v{vT+1}")
    a.e(f"v_max_f32 v{vT}, v{vT}, v{vT+1}")
    for i in range(16): a.e(f"v_sub_f32 v{vM+i}, 0, v{vT}")
    for i in range(16): a.e(f"v_mov_b32 v{vO+i}, 0")
    for i in range(4): a.e(f"v_mov_b32 v{vLs+i}, 0")
    a.e(f"s_lshl_b32 s{sT0}, s{sH}, 18")
    a.e("L_fb2:")
    for f in range(4):
        a.e(f"buffer_load_dwordx4 {vr(vK+4*f,4)}, v{vL16}, {sr(sWS,4)}, s{sT0} offen offset:{f*1024} sc1")
    a.e("s_waitcnt vmcnt(0)")
    a.e(f"v_mfma_f32_32x32x16_bf16 {vr(S,16)}, {vr(vK,4)}, {vr(vQ,4)}, {vr(vM,16)}")
    a.e(f"v_mfma_f32_32x32x16_bf16 {vr(S,16)}, {vr(vK+4,4)}, {vr(vQ+4,4)}, {vr(S,16)}")
    for i in range(16): a.e(f"v_exp_f32 v{S+i}, v{S+i}")
    pack(a, vP, S, 8)
    for f in range(2):
        a.e(f"v_mfma_f32_32x32x16_bf16 {vr(vO,16)}, {vr(vV+4*f,4)}, {vr(vP+4*f,4)}, {vr(vO,16)}")
        a.e(f"v_mfma_f32_16x16x32_bf16 {vr(vLs,4)}, {vr(vSel,4)}, {vr(vP+4*f,4)}, {vr(vLs,4)}")
    a.e(f"s_add_u32 s{sT0}, s{sT0}, 4096")
    a.e(f"s_cmp_lt_u32 s{sT0}, s{sT1}")
    a.e("s_nop 15")
    a.e("s_cbranch_scc1 L_fb2")
    o_store(a)
    a.e("s_branch L_fbret")

sTB, sWFo = sJ + 11, sJ + 12
vBD, vBU, vBacc, vBR = 136, 168, 200, 216
TS = 4352
sDo, sUo, vUa = sJ + 6, sJ + 8, 22
def b_setup(a):
    a.e(f"s_and_b32 s{sT0}, s2, 7")
    a.e(f"s_bfe_u32 s{sT1}, s2, 0x20003")
    a.e(f"s_lshl2_add_u32 s{sTB}, s{sT0}, s{sT1}")
    a.e(f"s_lshr_b32 s{sT0}, s{sWAVE}, 1")
    a.e(f"s_lshl3_add_u32 s{sT0}, s{sT0}, s{sCb}")
    a.e(f"s_and_b32 s{sT1}, s{sWAVE}, 1")
    a.e(f"s_lshl1_add_u32 s{sT0}, s{sT0}, s{sT1}")
    a.e(f"s_lshl_b32 s{sT0}, s{sT0}, 13")
    a.e(f"s_add_u32 s{sDo}, s{sT0}, {hex(WS_DF)}")
    a.e(f"s_add_u32 s{sDo+1}, s{sDo}, 4096")
    a.e(f"s_lshl2_add_u32 s{sT0}, s{sCb}, s{sQ}")
    a.e(f"s_lshl{3 if 'hs' in Cfg.x else 1}_add_u32 s{sT0}, s{sT0}, s{sTt}")
    a.e(f"s_lshl_b32 s{sT0}, s{sT0}, {13 if 'hs' in Cfg.x else 15}")
    a.e(f"s_add_u32 s{sWFo}, s{sT0}, {hex(WS_WF)}")
    a.e(f"s_lshr_b32 s{sT0}, s{sWAVE}, 1")
    a.e(f"s_mul_i32 s{sT0}, s{sT0}, {hex(UVSTR)}")
    a.e(f"s_lshl1_add_u32 s{sT1}, s{sTB}, s{sT1}")
    a.e(f"s_lshl_b32 s{sT1}, s{sT1}, 13")
    a.e(f"s_add_u32 s{sT0}, s{sT0}, s{sT1}")
    a.e(f"s_add_u32 s{sUo}, s{sT0}, {hex(WS_UV)}")
    a.e(f"s_add_u32 s{sUo+1}, s{sUo}, 4096")
def df_load(a, j):
    a.e(f"buffer_load_dwordx4 {vr(vBD+4*j,4)}, v{vL16}, {sr(sWS,4)}, s{sDo+j//4} offen offset:{1024*(j%4)} sc1", tag="df")
def uv_setup(a):
    T = vT
    a.e(f"v_lshrrev_b32 v{T}, 5, v{vLANE}")
    a.e(f"v_lshlrev_b32 v{T}, 9, v{T}")
    a.e(f"v_and_b32 v{T+1}, 1, v{vLANE}")
    a.e(f"v_lshl_add_u32 v{T}, v{T+1}, 8, v{T}")
    a.e(f"v_bfe_u32 v{T+1}, v{vLANE}, 1, 4")
    a.e(f"v_lshl_add_u32 v{vUa}, v{T+1}, 4, v{T}")
def uv_load(a, j):
    a.e(f"buffer_load_dwordx4 {vr(vBU+4*j,4)}, v{vUa}, {sr(sWS,4)}, s{sUo+j//4} offen offset:{1024*(j%4)} sc1", tag=("u", j))
def uv_extra(a):
    vm = list(a.vm)
    a.e(f"s_or_b32 s{sT2}, s{sTB}, s{sTt}")
    a.e("s_cbranch_scc1 L_j5e")
    a.e(f"s_add_u32 s{sT0}, s{sUo}, {32*16384}")
    a.e(f"s_add_u32 s{sT1}, s{sUo+1}, {32*16384}")
    for j in range(8):
        a.e(f"buffer_load_dwordx4 {vr(vBR+4*j,4)}, v{vUa}, {sr(sWS,4)}, s{sT0+j//4} offen offset:{1024*(j%4)} sc1")
    a.e("L_j5e:")
    a.vm = vm
def wfreg(n): return 136 + 4 * n if n < 30 else 24 + 4 * (n - 30)
def wf_load(a, n):
    if n % 4 == 0: a.e(f"s_add_u32 s{sJ+10}, s{sWFo}, {(n//8)*16384 + (n//4%2)*4096 if 'hs' in Cfg.x else (n//4)*4096}")
    a.e(f"buffer_load_dwordx4 {vr(wfreg(n),4)}, v{vL16}, {sr(sWS,4)}, s{sJ+10} offen offset:{1024*(n%4)} sc1")
def tile_waddr(a, dst, T):
    a.e(f"v_lshrrev_b32 v{T}, 5, v{vLANE}")
    a.e(f"v_lshl_add_u32 v{dst}, v{T}, 5, v{vL16}")
def b_mfma(a, j):
    a.wait(vm=["df", ("u", j)])
    a.e(f"v_mfma_f32_32x32x16_bf16 {vr(vBacc,16)}, {vr(vBD+4*j,4)}, {vr(vBU+4*j,4)}, {vr(vBacc,16) if j else 0}")
def b_extra(a):
    tile_waddr(a, vUa, vT + 1)
    a.e(f"s_mul_i32 s{sT0}, s{sWAVE}, {TS}")
    a.e(f"v_add_u32 v{vUa}, s{sT0}, v{vUa}")
    vm = list(a.vm); lg = list(a.lg)
    a.e(f"s_or_b32 s{sT2}, s{sTB}, s{sTt}")
    a.e("s_cbranch_scc1 L_j6b")
    a.e("s_waitcnt vmcnt(0)")
    for j in range(8):
        a.e(f"v_mfma_f32_32x32x16_bf16 {vr(vBU,16)}, {vr(vBD+4*j,4)}, {vr(vBR+4*j,4)}, {vr(vBU,16) if j else 0}")
    for q in range(4):
        a.e(f"ds_write_b128 v{vUa}, {vr(vBU+4*q,4)} offset:{8*TS + q*1088}")
    a.e("s_waitcnt lgkmcnt(0)")
    a.e("L_j6b:")
    a.vm = vm; a.lg = lg
def b_write(a):
    for q in range(4):
        a.e(f"ds_write_b128 v{vUa}, {vr(vBacc+4*q,4)} offset:{q*1088}", tag="bw")

vAcc, vGY, vOmg, vFr = 32, 64, 80, 88
vOd0, vOd1, vFl, vRa, vRow, vSt = 81, 82, 83, 84, 85, 86
def rbf(a, r):
    a.e(f"v_cvt_pk_bf16_f32 v{r}, v{r}, v{r}")
    a.e(f"v_and_b32 v{r}, 0xffff0000, v{r}")
def FM(): return " sc1" if "f1" in Cfg.x else " nt" if "f2" in Cfg.x else " sc0 sc1" if "f3" in Cfg.x else ""
def phase3(a, st):
    T = vT
    def oaddr():
        a.e(f"s_lshl_b32 s{sT0}, s{sTB}, 16")
        a.e(f"v_add_u32 v{vOd0}, s{sT0}, v{vL16}")
        a.e(f"s_sub_u32 s{sT0}, 63, s{sTB}")
        a.e(f"s_sub_u32 s{sT1}, 64, s{sTB}")
        a.e(f"s_cmp_eq_u32 s{sTB}, 0")
        a.e(f"s_cselect_b32 s{sT1}, 32, s{sT1}")
        a.e(f"v_and_b32 v{T}, 31, v{vLANE}")
        a.e(f"v_cmp_eq_u32 vcc, 0, v{T}")
        a.e(f"v_mov_b32 v{T+2}, s{sT0}")
        a.e(f"v_mov_b32 v{T+3}, s{sT1}")
        a.e(f"v_cndmask_b32 v{T+2}, v{T+2}, v{T+3}, vcc")
        a.e(f"v_sub_u32 v{T}, 32, v{T}")
        a.e(f"v_and_b32 v{T}, 31, v{T}")
        a.e(f"v_and_b32 v{T+3}, 32, v{vLANE}")
        a.e(f"v_add_u32 v{T}, v{T}, v{T+3}")
        a.e(f"v_lshlrev_b32 v{T}, 4, v{T}")
        a.e(f"v_lshl_add_u32 v{vOd1}, v{T+2}, 16, v{T}")
        a.e(f"v_cmp_eq_u32 vcc, 0, v{T+3}")
        a.e(f"v_mov_b32 v{T}, s{sTB}")
        a.e(f"v_cndmask_b32 v{T+2}, v{T+2}, v{T}, vcc")
        a.e(f"v_lshlrev_b32 v{vFl}, 10, v{T+2}")
    vPo, sMk = 4, sJ + 8
    def opoll():
        a.e(f"s_mov_b64 exec, {sr(sMk,2)}")
        poll256_issue(a, (vFl, sJ + 6), vPo)
        a.e("s_mov_b64 exec, -1")
    if 'es' in Cfg.x:
        oaddr()
        a.e(f"s_lshl_b32 s{sJ+6}, s{sWAVE}, 7")
        a.e(f"s_add_u32 s{sJ+6}, s{sJ+6}, {hex(FL_O)}")
        a.e(f"s_mov_b32 s{sMk}, 1"); a.e(f"s_mov_b32 s{sMk+1}, 3")
        opoll()
    a.e(f"v_lshrrev_b32 v{T}, 3, v{vLANE}")
    a.e(f"s_lshl_b32 s{sT0}, s{sQ}, 3")
    a.e(f"v_add_u32 v{T}, s{sT0}, v{T}")
    a.e(f"v_and_b32 v{T+1}, 7, v{vLANE}")
    a.e(f"v_mul_u32_u24 v{vRa}, 544, v{T+1}")
    a.e(f"v_mov_b32 v{T+5}, v{vRa}")
    a.e(f"v_lshl_add_u32 v{vRa}, v{T}, 4, v{vRa}")
    for t in range(8):
        a.e(f"ds_read_b128 {vr(vFr+4*t,4)}, v{vRa} offset:{t*TS}", tag=("pm", t))
    a.e(f"s_lshl_b32 s{sT0}, s{sTB}, 5")
    a.e(f"v_add_u32 v{T}, s{sT0}, v{T}")
    a.e(f"v_sub_u32 v{T+2}, 2048, v{T}")
    a.e(f"v_cmp_eq_u32 vcc, 0, v{T}")
    a.e(f"v_mov_b32 v{T+3}, 1024")
    a.e(f"v_cndmask_b32 v{T+2}, v{T+2}, v{T+3}, vcc")
    a.e(f"v_cndmask_b32 v{T+3}, v{T}, v{T+3}, vcc")
    a.e(f"s_cmp_lg_u32 s{sTt}, 0")
    a.e(f"s_cselect_b64 vcc, -1, 0")
    a.e(f"v_cndmask_b32 v{vRow}, v{T}, v{T+2}, vcc")
    a.e(f"v_cndmask_b32 v{T+3}, v{T}, v{T+3}, vcc")
    a.e(f"v_lshlrev_b32 v{T+2}, 2, v{vRow}")
    a.e(f"v_lshlrev_b32 v{T+3}, 5, v{T+3}")
    a.e(f"v_lshlrev_b32 v{T}, 5, v{T}")
    a.e(f"s_mov_b32 s{sT0}, {hex(WS_GP)}")
    a.e(f"s_mov_b32 s{sT1}, {hex(WS_ZC)}")
    a.e(f"s_mov_b32 s{sT2}, {hex(WS_ZC+ZSTR)}")
    G, ZC, ZW, ZS = 32, 36, 40, 44
    a.e(f"buffer_load_dword v{G}, v{T+2}, {sr(sWS,4)}, s{sT0} offen sc1", tag="sm")
    a.e(f"buffer_load_dwordx4 {vr(ZC,4)}, v{T+3}, {sr(sWS,4)}, s{sT1} offen sc1", tag="sm")
    a.e(f"buffer_load_dwordx4 {vr(ZW,4)}, v{T+3}, {sr(sWS,4)}, s{sT1} offen offset:16 sc1", tag="sm")
    a.e(f"buffer_load_dwordx4 {vr(ZS,4)}, v{T}, {sr(sWS,4)}, s{sT2} offen sc1", tag="sm")
    if 'es' not in Cfg.x: oaddr()
    for t in range(0, 8, 2):
        a.wait(lg=("pm", t + 1))
        for i in range(4): a.e(f"v_add_f32 v{vFr+4*t+i}, v{vFr+4*t+i}, v{vFr+4*t+4+i}")
    a.e(f"s_xor_b32 s{sT0}, s{sWAVE}, 4")
    a.e(f"s_or_b32 s{sT0}, s{sT0}, s{sTB}")
    a.e(f"s_cmp_lg_u32 s{sT0}, 0")
    a.e("s_cbranch_scc1 L_norow")
    a.e("s_mov_b64 exec, 0xff")
    for pe in range(2):
        for k in range(8):
            d = vFr + 8 * pe if k == 0 else 48
            a.e(f"ds_read_b128 {vr(d,4)}, v{T+5} offset:{(8+2*pe+k//4)*TS + (k%4)*16}")
            a.e("s_waitcnt lgkmcnt(0)")
            if k:
                for i in range(4): a.e(f"v_add_f32 v{vFr+8*pe+i}, v{vFr+8*pe+i}, v{48+i}")
    a.e("s_mov_b64 exec, -1")
    a.e("L_norow:")
    a.wait(vm="ost")
    a.e(f"s_sub_u32 s{sT0}, s{sOFo}, {hex(WS_OF)}")
    if 'hs' in Cfg.x:
        a.e(f"s_lshr_b32 s{sT0}, s{sT0}, 16")
        a.e(f"s_lshl3_add_u32 s{sT0}, s{sT0}, s{sCb}")
        a.e(f"s_lshl_b32 s{sT0}, s{sT0}, 7")
        a.e(f"s_lshl2_add_u32 s{sT0}, s{sArr}, s{sT0}")
    else:
        a.e(f"s_lshr_b32 s{sT0}, s{sT0}, 13")
        a.e(f"s_lshl_b32 s{sT0}, s{sT0}, 7")
        a.e(f"s_and_b32 s{sT1}, s{sH}, 3")
        a.e(f"s_lshl2_add_u32 s{sT0}, s{sT1}, s{sT0}")
    a.e(f"s_add_u32 s{sT0}, s{sT0}, {hex(FL_O)}")
    a.e(f"v_mov_b32 v{T+4}, s{sTAG}")
    a.e(f"buffer_store_dword v{T+4}, v{vLz}, {sr(sWS,4)}, s{sT0} offen sc1")
    st()
    if 'es' not in Cfg.x:
        a.e(f"s_lshl_b32 s{sJ+6}, s{sWAVE}, 7")
        a.e(f"s_add_u32 s{sJ+6}, s{sJ+6}, {hex(FL_O)}")
        a.e("s_mov_b32 exec_lo, 1"); a.e("s_mov_b32 exec_hi, 3")
        poll256_issue(a, (vFl, sJ + 6), 48)
        a.e("s_mov_b64 exec, -1")
    a.wait(vm="sm")
    for r in (ZC, ZW, ZS):
        a.e(f"v_add_f32 v{r}, v{r}, v{r+1}")
        a.e(f"v_add_f32 v{r+2}, v{r+2}, v{r+3}")
        a.e(f"v_add_f32 v{r}, v{r}, v{r+2}")
    rbf(a, G)
    a.e(f"v_mul_f32 v{G}, {hex(f2u(-math.log2(math.e)))}, v{G}")
    a.e(f"v_exp_f32 v{G}, v{G}")
    a.e(f"v_add_f32 v{ZW}, v{ZW}, v{ZC}")
    a.e(f"v_add_f32 v{G}, 1.0, v{G}")
    a.e(f"v_rcp_f32 v{G}, v{G}")
    for i in range(4):
        a.e(f"v_{'sub' if i % 2 else 'add'}_f32 v{vFr+i}, v{vFr+i}, v{ZC}")
        a.e(f"v_{'add' if i % 2 else 'sub'}_f32 v{vFr+24+i}, v{vFr+24+i}, v{ZS}")
    rbf(a, G)
    a.e(f"v_sub_f32 v{vOmg}, 1.0, v{G}")
    rbf(a, vOmg)
    a.e(f"s_cmp_lg_u32 s{sTt}, 0")
    a.e(f"s_cselect_b32 s{sT0}, 1.0, -1.0")
    for pe in range(2):
        for i in range(4):
            P, Q = vFr + 8 * pe + i, vFr + 16 + 8 * pe + i
            a.e(f"v_fma_f32 v{vGY+4*pe+i}, v{Q}, s{sT0}, v{P}")
            a.e(f"v_fma_f32 v{vGY+8+4*pe+i}, v{Q}, -s{sT0}, v{P}")
    a.e(f"v_or_b32 v{T}, s{sCb}, v{T+1}")
    a.e(f"v_cmp_eq_u32 vcc, 0, v{T}")
    a.e(f"v_cndmask_b32 v{vGY+8}, v{vGY+8}, v{ZW}, vcc")
    for i in range(16): a.e(f"v_mul_f32 v{vGY+i}, v{G}, v{vGY+i}")
    a.e(f"s_lshl_b32 s{sT0}, s{sCb}, 7")
    a.e(f"v_lshl_add_u32 v{T}, v{T+1}, 4, s{sT0}")
    a.e(f"v_lshlrev_b32 v{vRow}, 11, v{vRow}")
    a.e(f"v_add_u32 v{vSt}, v{vRow}, v{T}")
    a.e(f"v_sub_u32 v{T}, {2048-16}, v{T}")
    a.e(f"v_add_u32 v{vSt+1}, v{vRow}, v{T}")
    a.e(f"v_add_u32 v{vRow}, {1024-16}, v{vRow}")
    a.e(f"v_cndmask_b32 v{vRow}, v{vSt+1}, v{vRow}, vcc")
    a.e(f"s_lshl_b32 s{sT0}, s{sTt}, 14")
    a.e(f"v_add_u32 v{T}, s{sT0}, v{vL16}")
    a.e(f"v_add_u32 v{T+1}, 65536, v{T}")
    es = 'es' in Cfg.x
    a.e("s_waitcnt lgkmcnt(0)" if es else "s_waitcnt vmcnt(0) lgkmcnt(0)")
    a.e("s_barrier")
    if not es:
        a.e("s_mov_b32 exec_lo, 1"); a.e("s_mov_b32 exec_hi, 3")
        poll256_check(a, (vFl, sJ + 6), 48, "L_po", slp=8 if "s8" in Cfg.x else 1)
        a.e("s_mov_b64 exec, -1")
        st()
    base = [65536, 98304, 0, 32768]
    a.e(f"s_lshl_b32 s{sT0}, s{sWAVE}, 12")
    a.e(f"s_lshl_b32 s{sT1}, s{sWAVE}, {11 if 'hs' in Cfg.x else 13}")
    a.e(f"s_add_u32 s{sT1}, s{sT1}, {hex(WS_OF)}")
    a.e(f"s_mov_b32 s{sSpin}, 0")
    ds = 'ds' in Cfg.x
    sN, sRd, sOl, sOs = sJ + 7, sJ + 10, sJ + 13, sJ + 12
    def bnd(j):
        vm = list(a.vm)
        if j == 0:
            a.e(f"s_add_u32 s{sOl}, s{sT0}, 65536")
            a.e(f"s_mov_b32 s{sOs}, s{sT1}")
            a.e(f"s_mov_b32 s{sN}, 0")
            a.e(f"s_branch L_bq{j}")
        else:
            a.e(f"s_cmp_eq_u32 s{sN}, 4")
            a.e(f"s_cbranch_scc1 L_be{j}")
        a.e(f"L_bw{j}:")
        a.e("s_waitcnt vmcnt(0)")
        a.e(f"L_bq{j}:")
        for k in range(j + 1 if j else 0, 4):
            a.e(f"v_cmp_ne_u32 vcc, s{sTAG}, v{vPo+k}")
            a.e(f"s_and_b64 vcc, vcc, {sr(sMk,2)}")
            first = k == (j + 1 if j else 0)
            a.e(f"s_cselect_b32 s{sRd if first else sT2}, 0, {1 << k}")
            if not first: a.e(f"s_or_b32 s{sRd}, s{sRd}, s{sT2}")
        a.e(f"L_bt{j}:")
        a.e(f"s_bitcmp1_b32 s{sRd}, s{sN}")
        a.e(f"s_cbranch_scc0 L_bn{j}")
        for rs in range(2):
            a.e(f"s_add_u32 m0, s{sOl}, {rs*2048}")
            for f in range(2):
                a.e(f"buffer_load_dwordx4 v{[vOd0, vOd1][rs]}, {sr(sWS,4)}, s{sOs} offen offset:{f*1024} sc1 lds")
        a.e(f"s_add_u32 s{sOs}, s{sOs}, {16384 if 'hs' in Cfg.x else 2048}")
        a.e(f"s_add_u32 s{sOl}, s{sOl}, 32768")
        a.e(f"s_and_b32 s{sOl}, s{sOl}, 0x1ffff")
        a.e(f"s_add_u32 s{sN}, s{sN}, 1")
        a.e(f"s_branch L_bt{j}")
        a.e(f"L_bn{j}:")
        a.e(f"s_cmp_eq_u32 s{sN}, 4")
        a.e(f"s_cbranch_scc1 L_be{j}")
        opoll()
        a.e(f"s_add_u32 s{sSpin}, s{sSpin}, 1")
        a.e(f"s_cmp_ge_u32 s{sSpin}, 0x40000")
        a.e(f"s_cbranch_scc1 L_be{j}")
        a.e(f"s_cmp_le_u32 s{sN}, {j+1}")
        a.e(f"s_cbranch_scc1 L_bw{j}")
        if j == 0: a.e("s_waitcnt vmcnt(5)")
        a.e(f"L_be{j}:")
        a.vm = vm + ([("O", k) for k in range(4) for _ in range(4)] if j == 0 else [])
        if j == 0: st()
    for j in range(0 if ds else 4):
        if es:
            vm = list(a.vm)
            a.e(f"L_po{j}:")
            a.e(f"v_cmp_ne_u32 vcc, s{sTAG}, v{vPo+j}")
            a.e(f"s_and_b64 vcc, vcc, {sr(sMk,2)}")
            a.e(f"s_cbranch_scc0 L_pk{j}")
            opoll()
            a.e("s_waitcnt vmcnt(0)")
            a.e(f"s_add_u32 s{sSpin}, s{sSpin}, 1")
            a.e(f"s_cmp_lt_u32 s{sSpin}, 0x40000")
            a.e(f"s_cbranch_scc1 L_po{j}")
            a.e(f"L_pk{j}:")
            a.vm = vm
            if j == 3: st()
        for rs in range(2):
            a.e(f"s_add_u32 m0, s{sT0}, {base[j] + rs*2048}")
            for f in range(2):
                a.e(f"buffer_load_dwordx4 v{[vOd0, vOd1][rs]}, {sr(sWS,4)}, s{sT1} offen offset:{f*1024} sc1 lds", tag=("O", j))
        if j < 3: a.e(f"s_add_u32 s{sT1}, s{sT1}, {16384 if 'hs' in Cfg.x else 2048}")
    D = 3
    def rd(n):
        j, k = divmod(n, 8)
        if k == 0:
            if ds and j < 3: bnd(j)
            a.wait(vm=("O", j)); a.e("s_barrier")
        for rs in range(2):
            a.e(f"ds_read_b128 {vr(vFr + (n % 6)*8 + 4*rs, 4)}, v{T+1 if j < 2 else T} offset:{(j%2)*32768 + (k//2)*4096 + rs*2048 + (k%2)*1024}", tag=("o", n))
    for n in range(D): rd(n)
    for n in range(32):
        j, k = divmod(n, 8)
        a.wait(lg=("o", n))
        wf = wfreg(n if 'hs' in Cfg.x else 8 * (k // 2) + 2 * j + k % 2)
        for rs in range(2):
            acc = vr(vAcc + 16 * rs, 16)
            a.e(f"v_mfma_f32_32x32x16_bf16 {acc}, {vr(wf,4)}, {vr(vFr + (n%6)*8 + 4*rs, 4)}, {acc if n else 0}")
        if n + D < 32: rd(n + D)
        if n == 2 and 'gs' not in Cfg.x: st()
    if 'gs' not in Cfg.x: st()
    tile_waddr(a, T, T + 1)
    a.e(f"s_lshl1_add_u32 s{sT0}, s{sQ}, s{sTt}")
    a.e(f"s_mul_i32 s{sT0}, s{sT0}, {TS}")
    a.e(f"s_add_u32 s{sT0}, s{sT0}, 65536")
    a.e(f"v_add_u32 v{T}, s{sT0}, v{T}")
    a.e(f"s_mul_i32 s{sT0}, s{sTt}, {8*TS}")
    a.e(f"s_add_u32 s{sT0}, s{sT0}, 65536")
    a.e(f"v_add_u32 v{vRa}, s{sT0}, v{vRa}")
    for rs in range(2):
        for q in range(4):
            a.e(f"ds_write_b128 v{T}, {vr(vAcc+16*rs+4*q,4)} offset:{rs*8*TS + q*1088}")
    a.e("s_waitcnt lgkmcnt(0)")
    a.e("s_barrier")
    for t in range(8):
        a.e(f"ds_read_b128 {vr(vFr+4*t,4)}, v{vRa} offset:{t*TS}", tag=("fb", t))
    for c in range(4):
        a.wait(lg=("fb", 2 * c + 1))
        for i in range(4):
            a.e(f"v_add_f32 v{vFr+8*c+i}, v{vFr+8*c+i}, v{vFr+8*c+4+i}")
        for i in range(4):
            a.e(f"v_fma_f32 v{vGY+4*c+i}, v{vFr+8*c+i}, v{vOmg}, v{vGY+4*c+i}")
        if c == 1:
            for i in range(4): a.e(f"v_cvt_pk_bf16_f32 v{32+i}, v{vGY+i}, v{vGY+4+i}")
            a.e(f"buffer_store_dwordx4 {vr(32,4)}, v{vSt}, {sr(sOUT,4)}, 0 offen{FM()}")
    E, Od = vGY + 8, vGY + 12
    for i in range(3): a.e(f"v_cvt_pk_bf16_f32 v{36+i}, v{E+3-i}, v{Od+2-i}")
    a.e(f"v_cvt_pk_bf16_f32 v40, v{Od+3}, v{E}")
    a.e(f"buffer_store_dwordx3 {vr(36,3)}, v{vSt+1}, {sr(sOUT,4)}, 0 offen offset:4{FM()}")
    a.e(f"buffer_store_short v40, v{vSt+1}, {sr(sOUT,4)}, 0 offen offset:2{FM()}")
    a.e(f"buffer_store_short_d16_hi v40, v{vRow}, {sr(sOUT,4)}, 0 offen offset:16{FM()}")


def kernel_a():
    a = Asm(); st = Stamper(a)
    if Cfg.stamps: a.e("s_memrealtime s[96:97]")
    st()
    prologue(a, st)
    phase1(a, st)
    epilogue1(a, st)
    attention(a, st)
    phase3(a, st)
    if Cfg.stamps or "nw" not in Cfg.x:
        a.e("s_waitcnt vmcnt(0) lgkmcnt(0)")
        st()
        st.dump()
        a.e("s_waitcnt vmcnt(0)")
    a.e("L_end:")
    a.e("s_endpgm")
    n0 = st.n
    if "lf" not in Cfg.x:
        st.n = 1; loader(a, st)
    st.n = 1; p0wave(a, st)
    fallback(a)
    a.verify_edges()
    return a

HEADER = open("cdna_kernels/" + NAME + ".s.ref").read().split("; Override launch")[0]

def wrap(kernels):
    out = HEADER
    if len(kernels) == 1:
        l, a, g, b, lds, nv = kernels[0]
        out += f"; @launch grid=({g},1,1) block=({b},1,1) lds={lds}\n"
    else:
        for l, a, g, b, lds, nv in kernels:
            out += f"; @launch kernel={l} grid=({g},1,1) block=({b},1,1) lds={lds}\n"
    out += '.amdgcn_target "amdgcn-amd-amdhsa--gfx950"\n.text\n'
    for l, a, g, b, lds, nv in kernels:
        out += f".globl {l}\n.p2align 8\n.type {l},@function\n{l}:\n" + a.text()
    out += '.section .rodata,"a"\n'
    for l, a, g, b, lds, nv in kernels:
        acc = (nv + 3) // 4 * 4
        out += f""".p2align 6
.amdhsa_kernel {l}
  .amdhsa_next_free_vgpr {nv}
  .amdhsa_next_free_sgpr 102
  .amdhsa_accum_offset {acc}
  .amdhsa_group_segment_fixed_size 0
  .amdhsa_kernarg_size 96
  .amdhsa_user_sgpr_count 2
  .amdhsa_user_sgpr_kernarg_segment_ptr 1
  .amdhsa_system_sgpr_workgroup_id_x 1
.end_amdhsa_kernel
"""
    return out

if __name__ == "__main__":
    outp = sys.argv[1] if len(sys.argv) > 1 else "dev.s"
    Cfg.stamps = "--stamps" in sys.argv
    Cfg.pf = "--nopf" not in sys.argv
    Cfg.x = {t[2:] for t in sys.argv if t.startswith("-x")}
    Cfg.jg = 1 if "jg" in Cfg.x else 0
    a = kernel_a()
    open(outp, "w").write(wrap([(NAME + "_kernel", a, 256, 512, 163840, NVGPR)]))
    print("instrs", len(a.ins), "auto nops", a.nops)
```

```python
import sys, math, struct
from asmlib import Asm, vr, sr

NAME = "gated_mix__spectral_fnet__mha_block__prompt"
MB = 1 << 20
WS_KV = 0
WS_OF = 8 * MB
WS_XF = 12 * MB
XSTR = 0x84000
WS_UV = 15 * MB
UVSTR = 33 * 16384
WS_WF = 18 * MB
WS_SM = 20 * MB
WS_GP = WS_SM
WS_XE = WS_SM + 0x10000
WS_ZC = WS_SM + 0x20000
ZSTR = 0x10000
OOB = 0x40000000
WS_FL = 21 * MB
WS_ST = 22 * MB
WS_CF = 24 * MB
WS_DF = 26 * MB
WS_SIZE = 28 * MB
FL_KV = WS_FL
FL_0 = WS_FL + 0x8000
FL_O = WS_FL + 0x10000
FL_A = WS_FL + 0xC000

def f2u(x): return struct.unpack("<I", struct.pack("<f", x))[0]

class Cfg:
    stamps = False
    pf = True
    wl = 4
    x = set()

def srd(a, d, koff, size):
    a.e(f"s_load_dwordx2 {sr(d,2)}, s[0:1], {koff}")
    a.e(f"s_mov_b32 s{d+2}, {hex(size)}")
    a.e(f"s_mov_b32 s{d+3}, 0x20000")

sX, sW, sWS, sDBG = 8, 12, 16, 20
sWAVE, sR, sH, sTAG = 3, 4, 5, 6
sT0, sT1, sT2, sT3 = 24, 25, 26, 27
sWo = 28
sWl, sXl, sXs = 31, 32, 33
sKVo, sF1o, sOFo = 34, 35, 36
sKVl = 37
sG = 38
sSpin = 39
sKVsrc = 40
sSlot = 41
sC1, sC2 = 42, 43
sGW, sWO, sMS, sMD, sOUT = 44, 48, 52, 56, 60
sRow = 98
sS = 7
sSTAMP = 78
sJ = 64
vLANE, vL16 = 1, 2
vXd = 4
vWd = 8
vWr = 9
vXr = 10
vT = 14
vAQ, vAK, vAV = 32, 48, 64
vXf = 80
vWf = 112
vS = [32, 48]
vO = 64
vM = 80
vQ = 96
vK = 104
vV = 112
vP = 120
vLs = 128
vSel = 132
vKVa = 3
NVGPR = 256

class Stamper:
    def __init__(self, a): self.a = a; self.n = 0
    def __call__(self):
        if not Cfg.stamps or self.n >= 16: return
        self.a.e("s_memrealtime s[94:95]" if "rt" in Cfg.x else "s_memtime s[94:95]")
        self.a.e("s_waitcnt lgkmcnt(0)")
        self.a.e(f"s_mov_b32 s{sSTAMP + self.n}, s94")
        self.n += 1
    def dump(self):
        if not Cfg.stamps: return
        a = self.a
        a.e(f"s_memrealtime {sr(sT0,2)}")
        a.e("s_waitcnt lgkmcnt(0)")
        a.e(f"s_lshl_b32 s{sT2}, s2, 3")
        a.e(f"s_add_u32 s{sT2}, s{sT2}, s{sWAVE}")
        a.e(f"s_lshl_b32 s{sT2}, s{sT2}, 7")
        a.e(f"s_add_u32 s{sT2}, s{sT2}, {hex(WS_ST)}")
        a.e(f"v_mov_b32 v{vT+1}, 0")
        for i in range(self.n):
            a.e(f"v_mov_b32 v{vT}, s{sSTAMP+i}")
            a.e(f"buffer_store_dword v{vT}, v{vT+1}, {sr(sWS,4)}, s{sT2} offen offset:{4*i}")
        a.e(f"v_mov_b32 v{vT}, s{sT0}")
        a.e(f"buffer_store_dword v{vT}, v{vT+1}, {sr(sWS,4)}, s{sT2} offen offset:{4*31}")
        a.e(f"v_mov_b32 v{vT}, s96")
        a.e(f"buffer_store_dword v{vT}, v{vT+1}, {sr(sWS,4)}, s{sT2} offen offset:{4*30}")


sPh, sOff, sXb, sLl, sWb, sK = 54, 55, 28, 29, 30, 31
sArr, sCb, sQ, sTt, sTrow = sJ, sJ + 1, sJ + 2, sJ + 3, sJ + 5
vLz = 21
LD_TAG = 61440
def prologue(a, st):
    a.e("s_cmp_ge_u32 s2, 256")
    a.e("s_cbranch_scc1 L_end")
    srd(a, sX, 0, 4 * MB)
    srd(a, sW, 48, 6 * MB)
    srd(a, sWS, 88, WS_SIZE)
    srd(a, sDBG, 80, 256)
    srd(a, sGW, 64, 2048)
    srd(a, sWO, 56, 2 * MB)
    srd(a, sOUT, 72, 4 * MB)
    a.e(f"v_and_b32 v{vLANE}, 63, v0")
    a.e(f"v_lshrrev_b32 v{vT}, 6, v0")
    a.e(f"v_lshlrev_b32 v{vL16}, 4, v{vLANE}")
    a.e(f"v_readfirstlane_b32 s{sWAVE}, v{vT}")
    a.e(f"s_bfe_u32 s{sT1}, s2, 0x20003")
    a.e(f"s_xor_b32 s{sT0}, s2, s{sT1}")
    a.e(f"s_and_b32 s{sT0}, s{sT0}, 1")
    a.e(f"s_lshl1_add_u32 s{sR}, s{sT1}, s{sT0}")
    a.e(f"s_bfe_u32 s{sT0}, s2, 0x20001")
    a.e(f"s_lshr_b32 s{sT1}, s2, 5")
    if "hx" in Cfg.x: a.e(f"s_xor_b32 s{sT1}, s{sT1}, 7")
    a.e(f"s_lshl3_add_u32 s{sH}, s{sT0}, s{sT1}")
    a.e(f"s_lshr_b32 s{sT0}, s{sWAVE}, 1")
    a.e(f"s_cmp_eq_u32 s{sT0}, 2")
    if "lf" in Cfg.x:
        a.e("s_cbranch_scc0 L_notload")
        vm, lg, n0 = list(a.vm), list(a.lg), st.n
        loader(a, st)
        a.vm, a.lg, st.n = vm, lg, n0
        a.e("L_notload:")
    else:
        a.e("s_cbranch_scc1 L_load")
    common(a)
    a.e(f"s_cmp_ge_u32 s{sWAVE}, 6")
    a.e("s_cbranch_scc1 L_p0")
def common(a):
    a.e(f"s_mul_i32 s{sXl}, s{sWAVE}, 12288")
    a.e(f"s_add_u32 s{sXl}, s{sXl}, 65536")
    a.e(f"s_lshr_b32 s{sArr}, s{sH}, 3")
    a.e(f"s_and_b32 s{sCb}, s{sH}, 7")
    a.e(f"s_and_b32 s{sQ}, s{sWAVE}, 3")
    a.e(f"s_lshr_b32 s{sTt}, s{sWAVE}, 2")
    a.e(f"s_lshl1_add_u32 s{sT0}, s{sR}, s{sTt}")
    a.e(f"s_lshl_b32 s{sT0}, s{sT0}, 6")
    a.e(f"s_and_b32 s{sT1}, s{sArr}, 1")
    a.e(f"s_add_u32 s{sTrow}, s{sT0}, s{sT1}")
    a.e(f"v_mov_b32 v{vT}, {hex(OOB)}")
    a.e(f"v_cmp_eq_u32 vcc, 63, v{vLANE}")
    a.e(f"v_cndmask_b32_e64 v{vLz}, v{vT}, 0, vcc")

vWd3 = 8
def issue_x(a, i):
    a.e(f"s_add_u32 s{sK}, s{sOff}, {i}")
    a.e(f"s_and_b32 s{sK}, s{sK}, 15")
    a.e(f"s_lshl_b32 s{sK}, s{sK}, 7")
    a.e(f"s_add_u32 s{sK}, s{sK}, s{sXb}")
    for t in range(4):
        a.e(f"s_add_u32 m0, s{sLl}, {t*12288 + (i % 3)*4096}")
        if t: a.e(f"s_add_u32 s{sK}, s{sK}, 65536")
        for q in range(4):
            a.e(f"buffer_load_dwordx4 v{vXd+q}, {sr(sX,4)}, s{sK} offen offset:{q*1024} lds", tag=("X", i))
def issue_w(a, i):
    a.e(f"s_add_u32 s{sK}, s{sOff}, {i}")
    a.e(f"s_and_b32 s{sK}, s{sK}, 15")
    a.e(f"s_mul_i32 s{sK}, s{sK}, {64*6144}")
    a.e(f"s_add_u32 s{sK}, s{sK}, s{sWb}")
    for j in range(2):
        a.e(f"s_add_u32 m0, s{sXs}, {(i % 5)*12288 + j*3072}")
        if j: a.e(f"s_add_u32 s{sK}, s{sK}, {16*6144}")
        for m in range(3):
            a.e(f"buffer_load_dwordx4 v{vWd3+m}, {sr(sW,4)}, s{sK} offen offset:{m*1024} lds", tag=("W", i))
def loader_start(a):
    if "o1" in Cfg.x:
        a.e(f"s_and_b32 s{sOff}, s2, 7"); a.e(f"s_lshl_b32 s{sOff}, s{sOff}, 1")
    elif "o8" in Cfg.x:
        a.e(f"s_andn2_b32 s{sOff}, s{sR}, 1"); a.e(f"s_add_u32 s{sOff}, s{sOff}, s{sH}"); a.e(f"s_and_b32 s{sOff}, s{sOff}, 7")
        a.e(f"s_bfe_u32 s{sT0}, s2, 0x10001"); a.e(f"s_lshl1_add_u32 s{sOff}, s{sOff}, s{sT0}")
    elif "o0" in Cfg.x:
        a.e(f"s_mov_b32 s{sOff}, 0")
    elif "o4" in Cfg.x:
        a.e(f"s_add_u32 s{sOff}, s{sR}, s{sH}"); a.e(f"s_and_b32 s{sOff}, s{sOff}, 2"); a.e(f"s_and_b32 s{sT0}, s{sH}, 1")
        a.e(f"s_add_u32 s{sOff}, s{sOff}, s{sT0}"); a.e(f"s_lshl_b32 s{sOff}, s{sOff}, 2")
        a.e(f"s_bfe_u32 s{sT0}, s2, 0x20001"); a.e(f"s_add_u32 s{sOff}, s{sOff}, s{sT0}")
    else:
        a.e(f"s_and_b32 s{sOff}, s{sH}, 1"); a.e(f"s_lshl_b32 s{sOff}, s{sOff}, 3")
        a.e(f"s_and_b32 s{sT0}, s2, 7"); a.e(f"s_add_u32 s{sOff}, s{sOff}, s{sT0}")
    a.e(f"s_and_b32 s{sT2}, s{sWAVE}, 1")
    a.e(f"s_lshl1_add_u32 s{sT0}, s{sR}, s{sT2}")
    a.e(f"s_lshl_b32 s{sXb}, s{sT0}, 18")
    a.e(f"s_mul_i32 s{sLl}, s{sT2}, {4*12288}")
    a.e(f"s_add_u32 s{sLl}, s{sLl}, 65536")
    a.e(f"s_mul_i32 s{sWb}, s{sT2}, {32*6144}")
    a.e(f"s_lshl_b32 s{sT0}, s{sH}, 6")
    a.e(f"s_add_u32 s{sWb}, s{sWb}, s{sT0}")
    a.e(f"s_mul_i32 s{sXs}, s{sT2}, 6144")
    a.e(f"v_lshrrev_b32 v{vT}, 3, v{vLANE}")
    a.e(f"v_lshlrev_b32 v{vT}, 11, v{vT}")
    a.e(f"v_and_b32 v{vT+1}, 7, v{vLANE}")
    a.e(f"v_lshrrev_b32 v{vT+2}, 4, v{vLANE}")
    a.e(f"v_xor_b32 v{vT+1}, v{vT+1}, v{vT+2}")
    a.e(f"v_lshlrev_b32 v{vT+1}, 4, v{vT+1}")
    a.e(f"v_add_u32 v{vXd}, v{vT}, v{vT+1}")
    a.e(f"v_xor_b32 v{vT+1}, 64, v{vT+1}")
    a.e(f"v_add_u32 v{vT}, v{vT}, v{vT+1}")
    a.e(f"v_add_u32 v{vXd+1}, {16384-1024}, v{vT}")
    a.e(f"v_add_u32 v{vXd+2}, {2*(16384-1024)}, v{vXd}")
    a.e(f"v_add_u32 v{vXd+3}, {3*(16384-1024)}, v{vT}")
    a.e(f"v_lshrrev_b32 v{vT}, 2, v{vLANE}")
    a.e(f"v_mul_u32_u24 v{vT}, 6144, v{vT}")
    a.e(f"v_and_b32 v{vT+1}, 3, v{vLANE}")
    a.e(f"v_lshl_add_u32 v{vWd3}, v{vT+1}, 4, v{vT}")
    a.e(f"v_add_u32 v{vWd3+1}, 1024, v{vWd3}")
    a.e(f"v_add_u32 v{vWd3+2}, 2048, v{vWd3}")
    a.e("s_waitcnt lgkmcnt(0)")
    issue_w(a, 0); issue_x(a, 0); issue_w(a, 1); issue_x(a, 1)

def c_stream():
    return [f"s_lshl_b32 s{sJ+7}, s{sQ}, 7", f"s_lshr_b32 s{sJ+8}, s{sArr}, 1"] + \
        cos_stream(vJC, 8, sTrow, sJ + 7, sJ + 8, 1.0 / 2048, 24, nine=True)

def loader(a, st):
    a.e("L_load:")
    a.vm = []; a.lg = []
    loader_start(a)
    common(a)
    side = c_stream()
    nw = 2
    for i in range(16):
        a.wait(vm=[("X", i), ("W", i)])
        a.e("s_barrier")
        if i in ((0,) if 'gs' in Cfg.x else (0, 4, 8, 12)): st()
        if i + 2 < 16: issue_x(a, i + 2)
        k = 0
        while nw < 16 and nw <= i + Cfg.wl and k < 2:
            issue_w(a, nw); nw += 1; k += 1
        if i >= 13:
            for _ in range(70 if i < 15 else 1000):
                if side: a.e(side.pop(0))
    st()
    a.e("s_branch L_epi")

vX0 = 32
vG = 96
vF = 112
vGp = 128
vU = 174
vPa, vPb, vMk, vL0 = range(192, 196)
vWa = 202
vWG = 208
vCd = 112

def cos_stream(dst, nfr, srow, scol, smat, inv, T, nine=False):
    q = []
    A, tf, t9, t0 = T, T + 1, T + 2, T + 3
    q.append(f"s_cmp_lg_u32 s{smat}, 0")
    q.append(f"s_cselect_b32 s{sPh}, 0x3e800000, 0")
    q.append(f"v_and_b32 v{tf}, 31, v{vLANE}")
    q.append(f"v_lshl_add_u32 v{tf}, v{tf}, 1, s{srow}")
    q.append(f"v_cvt_f32_u32 v{tf}, v{tf}")
    q.append(f"v_mul_f32 v{tf}, {hex(f2u(inv))}, v{tf}")
    q.append(f"v_lshrrev_b32 v{t0}, 5, v{vLANE}")
    q.append(f"v_lshl_add_u32 v{t0}, v{t0}, 3, s{scol}")
    q.append(f"v_cvt_f32_u32 v{t0}, v{t0}")
    q.append(f"v_fma_f32 v{A}, v{tf}, v{t0}, s{sPh}")
    q.append(f"v_fract_f32 v{A}, v{A}")
    q.append(f"v_mul_f32 v{t9}, {hex(f2u(9.0))}, v{tf}")
    if nine:
        q.append(f"v_mul_f32 v{t0}, {hex(f2u(512.0))}, v{tf}")
        q.append(f"v_add_f32 v{t0}, s{sPh}, v{t0}")
        q.append(f"v_fract_f32 v{t0}, v{t0}")
        q.append(f"v_cos_f32 v{t0}, v{t0}")
        for i in range(1, 4): q.append(f"v_mov_b32 v{dst+4*nfr+i}, 0")
        q.append(f"v_cvt_pk_bf16_f32 v{dst+4*nfr}, v{t0}, v{t0}")
    for k in range(4 * nfr):
        t = t0 + 2 * (k % 2)
        q.append(f"v_cos_f32 v{t}, v{A}")
        q.append(f"v_add_f32 v{A}, v{A}, v{tf}")
        q.append(f"v_cos_f32 v{t+1}, v{A}")
        q.append(f"v_add_f32 v{A}, v{A}, v{t9 if k % 4 == 3 else tf}")
        q.append(f"v_cvt_pk_bf16_f32 v{dst+k}, v{t}, v{t+1}")
    return q

def p0_setup(a):
    a.e(f"s_and_b32 s{sT0}, s2, 1")
    a.e(f"s_lshl_b32 s{sT0}, s{sT0}, 8")
    a.e(f"s_bfe_u32 s{sT1}, s2, 0x20001")
    a.e(f"s_lshl_b32 s{sT1}, s{sT1}, 6")
    a.e(f"s_add_u32 s{sT0}, s{sT0}, s{sT1}")
    a.e(f"s_lshr_b32 s{sT1}, s2, 3")
    a.e(f"s_lshl1_add_u32 s{sT0}, s{sT1}, s{sT0}")
    a.e(f"s_and_b32 s{sT3}, s{sWAVE}, 1")
    a.e(f"s_add_u32 s{sS}, s{sT0}, s{sT3}")
    a.e(f"s_lshl_b32 s{sRow}, s{sS}, 11")
    a.e(f"s_sub_u32 s{sRow+1}, {hex(2048*2048)}, s{sRow}")
    a.e(f"s_sub_u32 s{sRow+2}, {hex(1024*2048)}, s{sRow}")
    a.e(f"s_add_u32 s{sRow+3}, {hex(1024*2048)}, s{sRow}")
    a.e(f"s_cmp_eq_u32 s{sS}, 0")
    a.e(f"s_cselect_b32 s{sRow+1}, {hex(512*2048)}, s{sRow+1}")
    a.e(f"s_cselect_b32 s{sRow+2}, {hex(1536*2048)}, s{sRow+2}")
    a.e(f"s_cselect_b32 s{sC1}, 0, 1.0")
    a.e(f"v_lshlrev_b32 v{vPa}, 3, v{vLANE}")
    a.e(f"v_sub_u32 v{vPb}, {1024-8}, v{vPa}")
    a.e("s_waitcnt lgkmcnt(0)")
    p0_loads(a)
    a.e(f"v_cmp_eq_u32 vcc, 0, v{vLANE}")
    a.e(f"v_cndmask_b32_e64 v{vMk}, 1.0, 0, vcc")
    a.e(f"v_mov_b32 v{vU+1}, {hex(OOB)}")
    a.e(f"v_cndmask_b32_e64 v{vL0}, v{vU+1}, 0, vcc")
    a.e(f"s_mov_b32 s{sC2}, 0x3f803f80")
    a.e(f"s_and_b32 s{sT0}, s2, 7")
    a.e(f"s_lshr_b32 s{sT1}, s2, 7")
    a.e(f"s_bfe_u32 s{sT2}, s2, 0x40003")
    a.e(f"s_lshl_b32 s{sJ+7}, s{sT0}, 6")
    a.e(f"s_add_u32 s{sJ+7}, s{sJ+7}, s{sT1}")
    a.e(f"s_lshl_b32 s{sJ+8}, s{sT2}, 4")
    a.e(f"s_lshl1_add_u32 s{sT1}, s{sT3}, s{sT1}")
    a.e(f"s_lshl3_add_u32 s{sT1}, s{sT1}, s{sT0}")
    a.e(f"s_lshl4_add_u32 s{sT1}, s{sT1}, s{sT2}")
    a.e(f"s_lshl_b32 s{sT1}, s{sT1}, 10")
    a.e(f"s_add_u32 s{sJ+9}, s{sT1}, {hex(WS_DF)}")
    a.e(f"s_mov_b32 s{sJ+10}, s{sT3}")
    a.e(f"s_lshl_b32 s{sT1}, s{sT0}, 6")
    a.e(f"v_and_b32 v{vU}, 31, v{vLANE}")
    a.e(f"v_lshl_add_u32 v{vU}, v{vU}, 1, s{sT1}")
    a.e(f"v_sub_u32 v{vU+1}, 1024, v{vU}")
    a.e(f"v_cmp_eq_u32 vcc, 0, v{vU}")
    a.e(f"v_mov_b32 v{vU+2}, 512")
    a.e(f"v_cndmask_b32 v{vU+2}, v{vU+1}, v{vU+2}, vcc")
    a.e(f"v_lshrrev_b32 v{vU+3}, 5, v{vLANE}")
    a.e(f"v_lshlrev_b32 v{vU+3}, 13, v{vU+3}")
    a.e(f"v_lshl_add_u32 v{vWa}, v{vU}, 1, v{vU+3}")
    a.e(f"v_lshl_add_u32 v{vWa+2}, v{vU+2}, 1, v{vU+3}")
    a.e(f"v_lshl_add_u32 v{vWa+3}, v{vU+1}, 1, v{vU+3}")
    a.e(f"v_add_u32 v{vWa+3}, -2, v{vWa+3}")
    a.e(f"s_lshr_b32 s{sT1}, s2, 3")
    a.e(f"s_lshl1_add_u32 s{sT1}, s{sT1}, s{sT3}")
    a.e(f"s_lshl_b32 s{sT0}, s{sT0}, 8")
    a.e(f"s_add_u32 s{sT0}, s{sT0}, s{sT1}")
    a.e(f"s_lshl_b32 s{sT0}, s{sT0}, 10")
    a.e(f"s_add_u32 s{sJ+4}, s{sT0}, {hex(WS_WF)}")
    a.e(f"s_lshl_b32 s{sJ+6}, s{sT1}, 15")

def xr(row, slot, i): return vX0 + 16 * row + 4 * slot + (i if slot in (0, 3) else (4 - i) % 4)
def p0_loads(a):
    addr = [(vPa, 0), (vPb, 1024), (vPb, 0), (vPa, 1024)]
    for k in range(4):
        a.e(f"buffer_load_dwordx2 {vr(vG+4*k,2)}, v{addr[k][0]}, {sr(sGW,4)}, 0 offen offset:{addr[k][1]}", tag=("p0", 4))
    for r in range(4):
        for k in range(4):
            a.e(f"buffer_load_dwordx2 {vr(vX0+16*r+4*k,2)}, v{addr[k][0]}, {sr(sX,4)}, s{sRow+r} offen offset:{addr[k][1]}", tag=("p0", r))
def wf_loads(a, ct, ps=range(4)):
    op = "dword" if ct == 0 else "ushort"
    for p in ps:
        row = (0, 2, 8, 10)[p]
        a.e(f"s_add_u32 s{sT2}, s{sJ+6}, {row*2048}")
        a.e(f"buffer_load_{op} v{vWG+8*ct+p}, v{vWa+ct}, {sr(sWO,4)}, s{sT2} offen", tag=("wg", ct))
        a.e(f"buffer_load_{op} v{vWG+8*ct+4+p}, v{vWa+ct}, {sr(sWO,4)}, s{sT2} offen offset:2048", tag=("wg", ct))
def wf_store(a, ct):
    if ct < 2:
        a.e(f"s_mov_b32 s{sT1}, {['0x05040100', '0x07060302'][ct]}")
        D = vWG + 8 + 4 * ct
        for p in range(4): a.e(f"v_perm_b32 v{D+p}, v{vWG+4+p}, v{vWG+p}, s{sT1}")
    else:
        D = vWG + 8 * ct
        for p in range(4): a.e(f"v_lshl_or_b32 v{D+p}, v{D+4+p}, 16, v{D+p}")
    a.e(f"s_add_u32 s{sT2}, s{sJ+4}, {ct*65536}")
    a.e(f"buffer_store_dwordx4 {vr(D,4)}, v{vL16}, {sr(sWS,4)}, s{sT2} offen sc1")

def wf_stores(a):
    vm = list(a.vm)
    a.e(f"s_cmp_lt_u32 s{sWAVE}, 6")
    a.e("s_cbranch_scc1 L_nowf")
    for ct in range(4): wf_store(a, ct)
    a.e("L_nowf:")
    a.vm = vm

DPP = ["row_shr:1 row_mask:0xf bank_mask:0xf", "row_shr:2 row_mask:0xf bank_mask:0xf", "row_shr:4 row_mask:0xf bank_mask:0xf",
       "row_shr:8 row_mask:0xf bank_mask:0xf", "row_bcast:15 row_mask:0xa bank_mask:0xf", "row_bcast:31 row_mask:0xc bank_mask:0xf"]

vR = 240
def p0_dfold(a, i):
    H = vU + 8
    for ar in range(4):
        f = vF + 4 * ar
        if i == 0:
            ng = "" if ar < 2 else "-"
            a.e(f"v_fma_f32 v{vU}, v{f+1}, {ng}v{vMk}, v{f}")
            a.e(f"v_fma_f32 v{vU+1}, v{f+2}, {ng}v{vMk}, v{f+3}")
            a.e(f"v_{'add' if ar < 2 else 'sub'}_f32 v{vU+4+ar}, v{f+2}, v{f+1}")
        else:
            op = "add" if ar < 2 else "sub"
            a.e(f"v_{op}_f32 v{vU}, v{f}, v{f+1}")
            a.e(f"v_{op}_f32 v{vU+1}, v{f+3}, v{f+2}")
        E = H + 2 * ar if i % 2 == 0 else vU + 2
        a.e(f"v_add_f32 v{E}, v{vU}, v{vU+1}")
        a.e(f"v_sub_f32 v{E+1}, v{vU}, v{vU+1}")
        if ar < 2:
            if i == 0: a.e(f"v_mov_b32 v{vGp+4+ar}, v{E}")
            else:      a.e(f"v_{'sub' if i % 2 else 'add'}_f32 v{vGp+4+ar}, v{vGp+4+ar}, v{E}")
        if i % 2:
            a.e(f"v_cvt_pk_bf16_f32 v{vR+4*ar+i//2}, v{H+2*ar}, v{E}")
            a.e(f"v_cvt_pk_bf16_f32 v{vR+4*ar+2+i//2}, v{H+2*ar+1}, v{E+1}")
        if i == 3:
            if ar == 0: a.e(f"s_lshl_b32 s{sT0}, s{sS}, 10")
            a.e(f"s_add_u32 s{sT1}, s{sT0}, {hex(WS_XF + ar*XSTR)}")
            a.e(f"buffer_store_dwordx4 {vr(vR+4*ar,4)}, v{vL16}, {sr(sWS,4)}, s{sT1} offen sc1")
    if i == 0:
        a.e(f"v_cvt_pk_bf16_f32 v{vU+16}, v{vU+4}, v{vU+5}")
        a.e(f"v_cvt_pk_bf16_f32 v{vU+17}, v{vU+6}, v{vU+7}")
        a.e(f"s_lshl_b32 s{sT0}, s{sS}, 1")
        for ar in range(4):
            a.e(f"s_add_u32 s{sT1}, s{sT0}, {hex(WS_XE + ar*16384)}")
            a.e(f"buffer_store_short{'_d16_hi' if ar % 2 else ''} v{vU+16+ar//2}, v{vL0}, {sr(sWS,4)}, s{sT1} offen sc1")
def p0_reduce(a, red):
    for d in DPP:
        for r in red: a.e(f"v_add_f32_dpp v{r}, v{r}, v{r} {d}")
    a.e(f"v_cvt_pk_bf16_f32 v{vGp+4}, v{vGp+4}, v{vGp+5}")
    a.e(f"s_lshl_b32 s{sT0}, s{sS}, 1")
    for ar in range(2):
        a.e(f"s_add_u32 s{sT2}, s{sT0}, {hex(WS_XE + ar*16384 + 4*2048)}")
        a.e(f"buffer_store_short{'_d16_hi' if ar % 2 else ''} v{vGp+4}, v{vLz}, {sr(sWS,4)}, s{sT2} offen sc1")

def unpack4(a, b):
    a.e(f"v_and_b32 v{b+3}, 0xffff0000, v{b+1}")
    a.e(f"v_lshlrev_b32 v{b+2}, 16, v{b+1}")
    a.e(f"v_and_b32 v{b+1}, 0xffff0000, v{b}")
    a.e(f"v_lshlrev_b32 v{b}, 16, v{b}")
vOne, vGa = 196, 224
def p0_row(a, r):
    a.wait(vm=[("p0", 4), ("p0", r)])
    if r == 0:
        for k in range(4): unpack4(a, vG + 4 * k)
        for i in range(4): a.e(f"v_mov_b32 v{vOne+i}, s{sC2}")
    for k in range(4):
        x = vX0 + 16 * r + 4 * k
        unpack4(a, x)
        for i in range(4): a.e(f"v_mul_f32 v{vU+i}, v{x+i}, v{vG+4*k+i}")
        P = vU + 6 + 4 * (k // 2)
        a.e(f"v_cvt_pk_bf16_f32 v{P+2*(k%2)}, v{vU}, v{vU+1}")
        a.e(f"v_cvt_pk_bf16_f32 v{P+2*(k%2)+1}, v{vU+2}, v{vU+3}")
        if k in (1, 2): a.e(f"v_mov_b32_dpp v{x}, v{x} wave_ror:1 row_mask:0xf bank_mask:0xf")
        if k % 2: a.e(f"v_mfma_f32_16x16x32_bf16 {vr(vR+4*r,4)}, {vr(vOne,4)}, {vr(P,4)}, {vr(vR+4*r,4) if k == 3 else 0}")
    if r == 3:
        for d in DPP[:4]:
            for q in range(4): a.e(f"v_add_f32_dpp v{vR+4*q}, v{vR+4*q}, v{vR+4*q} {d}")
        for q in range(4):
            a.e(f"s_lshr_b32 s{sT2}, s{sRow+q}, 9")
            a.e(f"s_add_u32 s{sT2}, s{sT2}, {hex(WS_GP)}")
            a.e(f"buffer_store_dword v{vR+4*q}, v{vLz}, {sr(sWS,4)}, s{sT2} offen sc1")
def p0_quarter(a, i):
    for k in range(4):
        A, B, C, D = [xr(r, k, i) for r in range(4)]
        a.e(f"v_fma_f32 v{vU}, v{B}, s{sC1}, v{A}")
        a.e(f"v_fma_f32 v{vU+1}, v{C}, s{sC1}, v{D}")
        a.e(f"v_fma_f32 v{vU+2}, v{B}, -s{sC1}, v{A}")
        a.e(f"v_fma_f32 v{vU+3}, v{C}, -s{sC1}, v{D}")
        a.e(f"v_add_f32 v{vF+k}, v{vU}, v{vU+1}")
        a.e(f"v_sub_f32 v{vF+4+k}, v{vU}, v{vU+1}")
        a.e(f"v_add_f32 v{vF+8+k}, v{vU+2}, v{vU+3}")
        a.e(f"v_sub_f32 v{vF+12+k}, v{vU+2}, v{vU+3}")
    p0_dfold(a, i)
def p0_finish(a):
    p0_reduce(a, [vGp + 4, vGp + 5])

def p0_special(a, half):
    vm = list(a.vm)
    a.e(f"s_and_b32 s{sT0}, s{sS}, 511")
    a.e(f"s_cbranch_scc1 L_p0done{half}")
    a.e(f"s_mov_b32 s{sS}, 512")
    for i in (2 * half, 2 * half + 1):
        for k in range(4):
            B, C = xr(1, k, i), xr(2, k, i)
            a.e(f"v_add_f32 v{vF+k}, v{B}, v{C}")
            a.e(f"v_add_f32 v{vF+4+k}, v{B}, v{C}")
            a.e(f"v_sub_f32 v{vF+8+k}, v{B}, v{C}")
            a.e(f"v_sub_f32 v{vF+12+k}, v{B}, v{C}")
        p0_dfold(a, i)
    if half: p0_reduce(a, [vGp + 4, vGp + 5])
    a.e(f"L_p0done{half}:")
    a.vm = vm

def flag_wg(a, off, lbl, wave=0):
    vm = list(a.vm)
    a.e(f"s_cmp_lg_u32 s{sWAVE}, {wave}")
    a.e(f"s_cbranch_scc1 {lbl}")
    a.e(f"s_and_b32 s{sT0}, s2, 7")
    a.e(f"s_lshl_b32 s{sT0}, s{sT0}, 7")
    a.e(f"s_lshr_b32 s{sT1}, s2, 3")
    a.e(f"s_lshl2_add_u32 s{sT0}, s{sT1}, s{sT0}")
    a.e(f"s_add_u32 s{sT0}, s{sT0}, {hex(off)}")
    a.e(f"v_mov_b32 v{vT+4}, s{sTAG}")
    a.e(f"buffer_store_dword v{vT+4}, v{vLz}, {sr(sWS,4)}, s{sT0} offen sc1")
    a.e(f"{lbl}:")
    a.vm = vm

def p0wave(a, st):
    a.e("L_p0:")
    a.vm = []; a.lg = []
    p0_setup(a)
    a.e(f"s_cmp_lg_u32 s{sS}, 0")
    a.e("s_cbranch_scc1 L_notag")
    a.e(f"s_memrealtime {sr(sT0,2)}")
    a.e("s_waitcnt lgkmcnt(0)")
    a.e(f"s_or_b32 s{sT0}, s{sT0}, 1")
    a.e(f"v_mov_b32 v{vT}, s{sT0}")
    a.e(f"v_mov_b32 v{vT+1}, 0")
    a.e(f"buffer_store_dword v{vT}, v{vT+1}, {sr(sDBG,4)}, 0 offen sc1")
    a.vm.pop()
    a.e("L_notag:")
    def dfrag():
        for t in cos_stream(vCd, 1, sJ + 7, sJ + 8, sJ + 10, 1.0 / 1024, 24): a.e(t)
        a.e(f"buffer_store_dwordx4 {vr(vCd,4)}, v{vL16}, {sr(sWS,4)}, s{sJ+9} offen sc1")
    def tag_issue():
        a.e(f"v_mov_b32 v{vT+1}, 0")
        a.e(f"buffer_load_dword v{vT}, v{vT+1}, {sr(sDBG,4)}, 0 offen sc1", tag="tag")
    def tag_lds():
        a.e(f"v_mov_b32 v{vT}, s{sTAG}")
        a.e(f"v_and_b32 v{vT+1}, 7, v{vLANE}")
        a.e(f"v_mul_u32_u24 v{vT+1}, 12288, v{vT+1}")
        a.e(f"v_add_u32 v{vT+1}, 65536, v{vT+1}")
        a.e(f"ds_write_b32 v{vT+1}, v{vT} offset:6144")
    side = c_stream()
    def cs(n):
        for _ in range(n):
            if side: a.e(side.pop(0))
    L = lambda f, *x: (lambda: f(a, *x))
    seg = {-1: [dfrag, lambda: cs(1000)],
           0: [tag_issue, L(p0_row, 0)], 1: [L(p0_row, 1), L(p0_row, 2)],
           2: [L(p0_row, 3), L(p0_quarter, 0)], 3: [L(p0_quarter, 1), L(p0_quarter, 2)], 4: [L(p0_quarter, 3), L(p0_finish)],
           5: [L(p0_special, 0), L(get_tag)], 6: [L(p0_special, 1), lambda: a.e("s_waitcnt vmcnt(0)")],
           7: [L(flag_wg, FL_0, "L_f0", 6)], 14: [tag_lds, L(wf_loads, 0), L(wf_loads, 2)], 15: [L(wf_loads, 3)]}
    for i in range(-1, 16):
        if i >= 0: a.e("s_barrier")
        if i in ((0,) if 'gs' in Cfg.x else (0, 4, 8, 12)): st()
        for f in seg.get(i, []): f()
    assert not side
    st()
    a.e("s_branch L_epi")

vA2, vXf2 = 172, 220
def phase1(a, st):
    a.vm = []; a.lg = []
    a.e(f"v_lshrrev_b32 v{vT}, 5, v{vLANE}")
    a.e(f"v_lshlrev_b32 v{vT}, 9, v{vT}")
    a.e(f"v_bfe_u32 v{vT+1}, v{vLANE}, 2, 2")
    a.e(f"v_lshl_add_u32 v{vT}, v{vT+1}, 6, v{vT}")
    a.e(f"v_bfe_u32 v{vT+1}, v{vLANE}, 4, 1")
    a.e(f"v_lshl_add_u32 v{vT}, v{vT+1}, 5, v{vT}")
    a.e(f"v_and_b32 v{vT+1}, 3, v{vLANE}")
    a.e(f"v_lshl_add_u32 v{vWr}, v{vT+1}, 3, v{vT}")
    a.e(f"v_and_b32 v{vT}, 31, v{vLANE}")
    a.e(f"v_bfe_u32 v{vT+1}, v{vLANE}, 1, 3")
    a.e(f"v_lshrrev_b32 v{vT+2}, 5, v{vLANE}")
    a.e(f"v_xor_b32 v{vT+1}, v{vT+1}, v{vT+2}")
    a.e(f"v_lshlrev_b32 v{vT+1}, 4, v{vT+1}")
    a.e(f"v_lshl_add_u32 v{vT}, v{vT}, 7, v{vT+1}")
    for s in range(4):
        a.e(f"v_xor_b32 v{vT+1}, {32*s}, v{vT}")
        a.e(f"v_add_u32 v{vXr+s}, s{sXl}, v{vT+1}")
    for t in c_stream(): a.e(t)
    a.e("s_waitcnt lgkmcnt(0)")
    def rd_w(n, m):
        i, s = divmod(n, 4)
        for t in range(2):
            a.e(f"ds_read_b64_tr_b16 {vr(vWf + (n % 2) * 12 + 4 * m + 2 * t, 2)}, v{vWr} offset:{((i % 5)*12 + 3*s + m) * 1024 + 256 * t}", tag=("w", n, m))
    def xreg(i, s, b): return [vXf, vXf2][b] + (i % 2) * 16 + 4 * s
    def rd_x(i, s, b):
        a.e(f"ds_read_b128 {vr(xreg(i,s,b), 4)}, v{vXr+s} offset:{(i % 3) * 4096 + b*49152}", tag=("x", i, s, b))
    a.e("s_barrier")
    st()
    rd_x(0, 0, 0); rd_w(0, 0); rd_x(0, 0, 1); rd_w(0, 1); rd_w(0, 2)
    for s in range(1, 4): rd_x(0, s, 0); rd_x(0, s, 1)
    for n in range(64):
        i, s = divmod(n, 4)
        fill = [[] for _ in range(6)]
        if s == 3 and i < 15:
            a.wait(lg=[("w", n, 2)])
            a.e("s_barrier")
            if (i + 1) % 4 == 0 and 'gs' not in Cfg.x: st()
        if n < 63:
            for m in range(3): fill[m].append(lambda m=m: rd_w(n + 1, m))
            if s == 3:
                fill[0].insert(0, lambda: rd_x(i + 1, 0, 0)); fill[1].insert(0, lambda: rd_x(i + 1, 0, 1))
                for s2 in range(1, 4):
                    for b in range(2): fill[2 + s2].append(lambda s2=s2, b=b: rd_x(i + 1, s2, b))
        for m in range(3):
            for b in range(2):
                a.wait(lg=[("w", n, m), ("x", i, s, b)])
                xf = vr(xreg(i, s, b), 4); wf = vr(vWf + (n % 2) * 12 + 4 * m, 4)
                acc = vr([vAQ, vA2][b] + 16 * m, 16)
                c = "0" if n == 0 else acc
                if m < 2: a.e(f"v_mfma_f32_32x32x16_bf16 {acc}, {wf}, {xf}, {c}")
                else:     a.e(f"v_mfma_f32_32x32x16_bf16 {acc}, {xf}, {wf}, {c}")
                for f in fill[2 * m + b]: f()
    st()

def get_tag(a):
    a.e(f"s_mov_b32 s{sSpin}, 0")
    a.wait(vm="tag")
    vm = list(a.vm)
    a.e("L_tagspin:")
    a.e(f"v_readfirstlane_b32 s{sTAG}, v{vT}")
    a.e(f"s_cmp_lg_u32 s{sTAG}, 0")
    a.e("s_cbranch_scc1 L_tagok")
    a.e(f"buffer_load_dword v{vT}, v{vT+1}, {sr(sDBG,4)}, 0 offen sc1")
    a.e("s_waitcnt vmcnt(0)")
    a.e(f"s_add_u32 s{sSpin}, s{sSpin}, 1")
    a.e(f"s_cmp_lt_u32 s{sSpin}, 0x40000")
    a.e("s_cbranch_scc1 L_tagspin")
    a.e("L_tagok:")
    a.vm = vm

def pack(a, dst, src, n):
    for i in range(n):
        a.e(f"v_cvt_pk_bf16_f32 v{dst+i}, v{src+2*i}, v{src+2*i+1}")

def epilogue1(a, st):
    a.e(f"s_lshl3_add_u32 s{sT0}, s{sR}, s{sWAVE}")
    a.e(f"s_lshl_b32 s{sT1}, s{sH}, 6")
    a.e(f"s_add_u32 s{sT1}, s{sT1}, s{sT0}")
    a.e(f"s_lshl_b32 s{sT1}, s{sT1}, 12")
    a.e(f"s_add_u32 s{sT2}, s{sT1}, {4*4096}")
    a.e(f"v_add_u32 v{vT}, s{sXl}, v{vL16}")
    for b in range(2):
        A = [vAQ, vA2][b]; P = vXf + 16 * b
        for f in range(4):
            pack(a, P + 4 * f, A + 16 + 8 * f, 4)
            a.e(f"buffer_store_dwordx4 {vr(P+4*f,4)}, v{vL16}, {sr(sWS,4)}, s{sT1+b} offen offset:{f*1024} sc1", tag="kvst")
            a.e(f"ds_write_b128 v{vT}, {vr(P+4*f,4)} offset:{b*49152 + f*1024}")
    a.e(f"s_mov_b32 s{sT0}, {hex(f2u(math.log2(math.e) / math.sqrt(32.0)))}")
    for b in range(2):
        A = [vAQ, vA2][b]; P = vWf + 8 * b
        for f in range(2):
            for i in range(8): a.e(f"v_mul_f32 v{A+8*f+i}, s{sT0}, v{A+8*f+i}")
            pack(a, P + 4 * f, A + 8 * f, 4)
            a.e(f"ds_write_b128 v{vT}, {vr(P+4*f,4)} offset:{b*49152 + 4096 + f*1024}")
    a.e("L_epi:")
    poll256_issue(a, FL_0, vJx)
    a.e(f"s_lshl3_add_u32 s{sT0}, s{sR}, s{sWAVE}")
    a.e(f"s_lshl_b32 s{sT1}, s{sH}, 6")
    a.e(f"s_add_u32 s{sT1}, s{sT1}, s{sT0}")
    a.e(f"s_lshl_b32 s{sKVo}, s{sT1}, 12")
    a.e(f"s_lshl3_add_u32 s{sF1o}, s{sH}, s{sWAVE}")
    a.e(f"s_lshl_b32 s{sF1o}, s{sF1o}, 7")
    a.e(f"s_add_u32 s{sF1o}, s{sF1o}, {hex(FL_KV)}")
    a.e(f"s_lshl2_add_u32 s{sT3}, s{sR}, s{sF1o}")
    a.e(f"s_lshl_b32 s{sT0}, s{sT0}, 5")
    a.e(f"s_add_u32 s{sT0}, s{sT0}, s{sH}")
    a.e(f"s_lshl_b32 s{sT0}, s{sT0}, 11")
    a.e(f"s_add_u32 s{sOFo}, s{sT0}, {hex(WS_OF)}")
    a.e(f"v_add_u32 v{vKVa}, 65536, v{vL16}")
    a.e(f"v_add_u32 v{vT}, s{sXl}, v{vL16}")
    a.e("s_waitcnt lgkmcnt(0)")
    a.e("s_barrier")
    for f in range(2):
        a.e(f"ds_read_b128 {vr(vQ+4*f,4)}, v{vT} offset:{4096 + f*1024}", tag="K")
        a.e(f"ds_read_b128 {vr(vK+4*f,4)}, v{vKVa} offset:{f*1024}", tag="K")
    a.e(f"ds_read_b32 v{vT+2}, v{vT} offset:6144", tag="K")
    a.e(f"v_bfe_u32 v{vT}, v{vLANE}, 4, 1")
    a.e(f"v_bfe_u32 v{vT+1}, v{vLANE}, 2, 1")
    a.e(f"v_cmp_eq_u32 vcc, v{vT}, v{vT+1}")
    a.e(f"v_mov_b32 v{vT}, 0x3f803f80")
    a.e(f"v_cndmask_b32 v{vSel}, 0, v{vT}, vcc")
    for i in range(1, 4): a.e(f"v_mov_b32 v{vSel+i}, v{vSel}")
    a.wait(lg="K")
    S = vS[0]
    a.e(f"v_mfma_f32_32x32x16_bf16 {vr(S,16)}, {vr(vK,4)}, {vr(vQ,4)}, 0")
    a.e(f"v_mfma_f32_32x32x16_bf16 {vr(S,16)}, {vr(vK+4,4)}, {vr(vQ+4,4)}, {vr(S,16)}")
    a.e(f"v_readfirstlane_b32 s{sTAG}, v{vT+2}")
    a.e(f"v_mov_b32 v{vKVa2}, v{vKVa}")
    for i in range(16): a.e(f"v_mov_b32 v{vO+i}, 0")
    rd_k(a, 1)
    rd_v(a, 0, 1)
    rd_v(a, 0, 0)
    for i in range(4): a.e(f"v_mov_b32 v{vLs+i}, 0")
    for i in range(4): a.e(f"v_mov_b32 v{vP+4+i}, 0")
    a.e(f"v_max3_f32 v{vT}, v{S}, v{S+1}, v{S+2}")
    for i in range(3, 15, 2):
        a.e(f"v_max3_f32 v{vT}, v{vT}, v{S+i}, v{S+i+1}")
    a.e(f"v_max_f32 v{vT}, v{vT}, v{S+15}")
    a.e(f"v_mov_b32 v{vT+1}, v{vT}")
    a.e(f"v_permlane32_swap_b32 v{vT}, v{vT+1}")
    a.e(f"v_max_f32 v{vT}, v{vT}, v{vT+1}")
    for i in range(16): a.e(f"v_sub_f32 v{vM+i}, 0, v{vT}")
    for i in range(16): a.e(f"v_sub_f32 v{S+i}, v{S+i}, v{vT}")
    st()

vJC, vJE, vJacc, vJx, vX9, vJz, vSelS, vA0, vA1 = 136, 172, 208, 240, 24, 4, 8, 12, 13

def a_loads():
    T = vT
    steps = []
    def setup(a):
        a.e(f"s_mul_i32 s{sJ+6}, s{sArr}, {hex(XSTR)}")
        a.e(f"s_lshl_b32 s{sT0}, s{sCb}, 7")
        a.e(f"s_add_u32 s{sJ+6}, s{sJ+6}, s{sT0}")
        a.e(f"s_add_u32 s{sJ+6}, s{sJ+6}, {hex(WS_XF)}")
        a.e(f"s_lshl_b32 s{sT0}, s{sWAVE}, 16")
        a.e(f"s_add_u32 s{sJ+7}, s{sJ+6}, s{sT0}")
        a.e(f"s_lshl_b32 s{sJ+8}, s{sWAVE}, 13")
        a.e(f"v_lshrrev_b32 v{T}, 2, v{vLANE}")
        a.e(f"v_and_b32 v{T+1}, 3, v{vLANE}")
        a.e(f"v_lshlrev_b32 v{T+1}, 4, v{T+1}")
        a.e(f"v_lshl_add_u32 v{T}, v{T}, 10, v{T+1}")
    steps.append(setup)
    for p in range(8):
        def f(a, p=p):
            a.e(f"s_add_u32 m0, s{sJ+8}, {p*1024}")
            a.e(f"s_add_u32 s{sT0}, s{sJ+7}, {(p//2)*16384 + (p%2)*64}")
            a.e(f"buffer_load_dwordx4 v{T}, {sr(sWS,4)}, s{sT0} offen sc1 lds", tag="al")
        steps.append(f)
    def esetup(a):
        a.e(f"v_lshrrev_b32 v{T+1}, 5, v{vLANE}")
        a.e(f"v_lshlrev_b32 v{T+1}, 4, v{T+1}")
        a.e(f"v_and_b32 v{T}, 3, v{vLANE}")
        a.e(f"v_bfe_u32 v{T+2}, v{vLANE}, 3, 1")
        a.e(f"v_lshl_add_u32 v{T}, v{T+2}, 2, v{T}")
        a.e(f"v_and_b32 v{T+2}, 3, v{T}")
        a.e(f"v_lshl_add_u32 v{T}, v{T}, 11, v{T+1}")
        a.e(f"v_cmp_eq_u32 vcc, 0, v{T+2}")
        a.e(f"v_mov_b32 v{T+2}, {hex(OOB)}")
        a.e(f"v_cndmask_b32 v{T}, v{T+2}, v{T}, vcc")
        a.e(f"v_cmp_ne_u32 vcc, 0, v{vSel}")
        a.e(f"v_cndmask_b32 v{T}, v{T+2}, v{T}, vcc")
        if "eo" in Cfg.x:
            a.e(f"s_xor_b32 s{sT0}, s{sR}, s{sCb}")
            a.e(f"s_and_b32 s{sT0}, s{sT0}, 1")
            a.e(f"s_lshr_b32 s{sT1}, s{sCb}, 1")
            a.e(f"s_or_b32 s{sT0}, s{sT0}, s{sT1}")
            a.e(f"s_cselect_b32 s{sT0}, {hex(OOB)}, 0")
            a.e(f"v_or_b32 v{T}, s{sT0}, v{T}")
        a.e(f"s_lshl_b32 s{sJ+7}, s{sArr}, 14")
        a.e(f"s_add_u32 s{sJ+7}, s{sJ+7}, {hex(WS_XE)}")
        a.e(f"s_lshl_b32 s{sT0}, s{sQ}, 8")
        a.e(f"s_add_u32 s{sJ+8}, s{sJ+7}, s{sT0}")
    steps.append(esetup)
    for j in range(8):
        steps.append(lambda a, j=j: a.e(f"buffer_load_dwordx4 {vr(vJE+4*j,4)}, v{T}, {sr(sWS,4)}, s{sJ+8} offen offset:{32*j} sc1", tag="al"))
    def nine(a):
        a.e(f"s_cmp_lg_u32 s{sQ}, 0")
        a.e(f"s_cselect_b32 s{sT0}, {hex(OOB)}, 0")
        a.e(f"v_lshlrev_b32 v{T+1}, 26, v{T+1}")
        a.e(f"v_or_b32 v{T+1}, s{sT0}, v{T+1}")
        a.e(f"v_or_b32 v{T}, v{T}, v{T+1}")
        a.e(f"buffer_load_ushort v{vJE+32}, v{T}, {sr(sWS,4)}, s{sJ+7} offen offset:1024 sc1")
        a.e(f"v_bfrev_b32 v{T}, v{vLANE}")
        a.e(f"v_bfe_u32 v{T}, v{T}, 27, 3")
        a.e(f"v_and_b32 v{T+2}, 3, v{vLANE}")
        a.e(f"v_lshl_add_u32 v{T}, v{T}, 2, v{T+2}")
        a.e(f"v_lshl_or_b32 v{T}, v{T}, 1, v{T+1}")
        a.e(f"s_lshl_b32 s{sT0}, s{sTt}, 6")
        a.e(f"s_add_u32 s{sT1}, s{sJ+6}, {512*1024}")
        a.e(f"s_add_u32 s{sT2}, s{sT1}, s{sT0}")
        a.e(f"buffer_load_ushort v{vX9}, v{T}, {sr(sWS,4)}, s{sT2} offen sc1")
        a.e(f"s_xor_b32 s{sT2}, s{sT2}, 64")
        a.e(f"buffer_load_ushort v{vX9+4}, v{T}, {sr(sWS,4)}, s{sT2} offen sc1", tag="al")
    steps.append(nine)
    return steps

def job_a(a):
    T = vT
    a.e(f"v_lshrrev_b32 v{T}, 5, v{vLANE}")
    a.e(f"v_lshlrev_b32 v{T}, 9, v{T}")
    a.e(f"v_bfe_u32 v{T+1}, v{vLANE}, 2, 2")
    a.e(f"v_lshl_add_u32 v{T}, v{T+1}, 6, v{T}")
    a.e(f"v_and_b32 v{T+1}, 1, v{vLANE}")
    a.e(f"v_lshl_add_u32 v{T}, v{T+1}, 5, v{T}")
    a.e(f"v_bfe_u32 v{T+1}, v{vLANE}, 1, 1")
    a.e(f"v_lshl_add_u32 v{T}, v{T+1}, 4, v{T}")
    a.e(f"v_bfe_u32 v{T+1}, v{vLANE}, 4, 1")
    a.e(f"v_lshl_add_u32 v{T}, v{T+1}, 3, v{T}")
    a.e(f"s_lshl_b32 s{sT0}, s{sQ}, 14")
    a.e(f"s_lshl_b32 s{sT1}, s{sTt}, 10")
    a.e(f"s_add_u32 s{sT0}, s{sT0}, s{sT1}")
    a.e(f"v_add_u32 v{vA0}, s{sT0}, v{T}")
    a.e(f"v_xor_b32 v{vA1}, 1024, v{vA0}")
    def rd(j):
        for sg in range(2):
            for t in range(2):
                a.e(f"ds_read_b64_tr_b16 {vr(vJx + (j%2)*8 + 4*sg + 2*t, 2)}, v{[vA0, vA1][sg]} offset:{j*2048 + 256*t}", tag=("xa", j))
    a.wait(vm="al")
    a.e("s_barrier")
    Cfg.s0()
    vm0 = list(a.vm)
    rd(0); rd(1)
    for r in (vX9 + 1, vX9 + 2, vX9 + 3, vX9 + 5, vX9 + 6, vX9 + 7, vJE + 33, vJE + 34, vJE + 35):
        a.e(f"v_mov_b32 v{r}, 0")
    a.e(f"v_lshlrev_b32 v{T}, 2, v{vSel}")
    a.e(f"v_and_b32 v{T}, 0x80000000, v{T}")
    for i in range(4): a.e(f"v_or_b32 v{vSelS+i}, v{T}, v{vSel}")
    a.e(f"s_xor_b32 s{sT0}, s{sR}, s{sCb}")
    a.e(f"s_bitcmp1_b32 s{sT0}, 0")
    a.e("s_cbranch_scc1 L_jaY")
    lg = list(a.lg)
    z = vr(vJz, 4)
    for ver in "XY":
        if ver == "Y":
            a.e("L_jaY:"); a.lg = list(lg)
        for sg in range(2):
            a.e(f"v_mfma_f32_32x32x16_bf16 {vr(vJacc+16*sg,16)}, {vr(vX9+4*sg,4)}, {vr(vJC+32,4)}, 0")
        if ver == "X": a.e(f"v_mfma_f32_16x16x32_bf16 {z}, {vr(vJE+32,4)}, {vr(vJC+32,4)}, 0")
        else:          a.e(f"v_mfma_f32_16x16x32_bf16 {z}, {vr(vSelS,4)}, {vr(vX9,4)}, 0")
        for j in range(8):
            a.wait(lg=("xa", j))
            x = vJx + (j % 2) * 8
            for sg in range(2):
                a.e(f"v_mfma_f32_32x32x16_bf16 {vr(vJacc+16*sg,16)}, {vr(x+4*sg,4)}, {vr(vJC+4*j,4)}, {vr(vJacc+16*sg,16)}")
            if ver == "X": a.e(f"v_mfma_f32_16x16x32_bf16 {z}, {vr(vJE+4*j,4)}, {vr(vJC+4*j,4)}, {z}")
            else:          a.e(f"v_mfma_f32_16x16x32_bf16 {z}, {vr(vSelS,4)}, {vr(x,4)}, {z}")
            if j + 2 < 8: rd(j + 2)
        a.e(f"v_and_b32 v{T}, 31, v{vLANE}")
        a.e(f"v_lshrrev_b32 v{T+1}, 5, v{vLANE}")
        if ver == "X":
            a.e(f"s_cmp_ge_u32 s{sCb}, 2")
            a.e("s_cbranch_scc1 L_jaC")
            a.e(f"v_lshlrev_b32 v{T+3}, 4, v{T+1}")
            a.e(f"v_lshl_add_u32 v{T+2}, v{T}, 6, v{T+3}")
            a.e(f"s_lshr_b32 s{sT0}, s{sArr}, 1")
            a.e(f"s_lshl_b32 s{sT0}, s{sT0}, 16")
            a.e(f"s_lshl2_add_u32 s{sT0}, s{sQ}, s{sT0}")
            a.e(f"s_add_u32 s{sT0}, s{sT0}, {hex(WS_ZC)}")
            a.e(f"s_lshl_b32 s{sT1}, s{sTrow}, 5")
            a.e(f"s_add_u32 s{sT1}, s{sT1}, s{sT0}")
            def zsum():
                a.e(f"v_add_f32 v{vJz}, v{vJz}, v{vJz+1}")
                a.e(f"v_add_f32 v{vJz+2}, v{vJz+2}, v{vJz+3}")
                a.e(f"v_add_f32 v{T+4}, v{vJz}, v{vJz+2}")
            zsum()
            a.e(f"buffer_store_dword v{T+4}, v{T+2}, {sr(sWS,4)}, s{sT1} offen sc1")
            a.e(f"s_or_b32 s{sT1}, s{sH}, s{sTrow}")
            a.e(f"s_cmp_lg_u32 s{sT1}, 0")
            a.e("s_cbranch_scc1 L_jaC")
            for i in range(4): a.e(f"v_mov_b32 v{vSelS+i}, 0xbf803f80")
            for j in range(9):
                a.e(f"v_mfma_f32_16x16x32_bf16 {z}, {vr(vJE+4*j,4)}, {vr(vSelS,4)}, {z if j else 0}")
            a.e(f"s_add_u32 s{sT1}, s{sT0}, {1024*32}")
            zsum()
            a.e(f"buffer_store_dword v{T+4}, v{T+3}, {sr(sWS,4)}, s{sT1} offen sc1")
            a.e("s_branch L_jaC")
        else:
            a.e(f"s_lshr_b32 s{sT0}, s{sR}, 1")
            a.e(f"s_or_b32 s{sT0}, s{sT0}, s{sArr}")
            a.e(f"s_cmp_lg_u32 s{sT0}, 0")
            a.e("s_cbranch_scc1 L_jaC")
            a.e(f"v_lshrrev_b32 v{T+2}, 4, v{T}")
            a.e(f"v_mul_u32_u24 v{T+2}, {hex(UVSTR)}, v{T+2}")
            a.e(f"v_bfe_u32 v{T+3}, v{T}, 2, 1")
            a.e(f"v_lshl_add_u32 v{T+2}, v{T+3}, 9, v{T+2}")
            a.e(f"v_bfe_u32 v{T+3}, v{T}, 3, 1")
            a.e(f"v_lshl_add_u32 v{T+2}, v{T+3}, 3, v{T+2}")
            a.e(f"v_and_b32 v{T+3}, 3, v{T}")
            a.e(f"v_lshl_add_u32 v{T+2}, v{T+3}, 1, v{T+2}")
            a.e(f"v_lshl_or_b32 v{T+2}, v{T+1}, 30, v{T+2}")
            a.e(f"s_lshl1_add_u32 s{sT0}, s{sCb}, s{sTt}")
            a.e(f"s_lshl_b32 s{sT0}, s{sT0}, 10")
            a.e(f"s_and_b32 s{sT1}, s{sQ}, 1")
            a.e(f"s_lshl_b32 s{sT1}, s{sT1}, 8")
            a.e(f"s_add_u32 s{sT0}, s{sT0}, s{sT1}")
            a.e(f"s_lshr_b32 s{sT1}, s{sQ}, 1")
            a.e(f"s_lshl4_add_u32 s{sT0}, s{sT1}, s{sT0}")
            a.e(f"s_add_u32 s{sT0}, s{sT0}, {hex(WS_UV + 32*16384)}")
            a.e(f"v_cvt_pk_bf16_f32 v{T+4}, v{vJz}, v{vJz}")
            a.e(f"buffer_store_short v{T+4}, v{T+2}, {sr(sWS,4)}, s{sT0} offen sc1")
    a.e("L_jaC:")
    a.vm = vm0
    Cfg.s0()
    js = "js" in Cfg.x
    vW, vG, sG_ = (vA0, vA1, sJ + 13) if js else (T + 2, T + 3, sT0)
    if not js: a.e("s_barrier")
    a.e(f"s_lshl_b32 s{sT0}, s{sWAVE}, 13")
    a.e(f"v_add_u32 v{vW}, s{sT0}, v{vL16}")
    if not js:
        a.e("s_nop 7")
        for c in range(8): ja_write(a, c, vW)
        ja_raddr(a, vW)
    a.e(f"v_lshrrev_b32 v{vG}, 4, v{T}")
    a.e(f"v_lshlrev_b32 v{vG}, 14, v{vG}")
    a.e(f"v_lshl_add_u32 v{vG}, v{T+1}, 9, v{vG}")
    a.e(f"v_and_b32 v{T}, 15, v{T}")
    a.e(f"v_lshl_add_u32 v{vG}, v{T}, 4, v{vG}")
    a.e(f"s_and_b32 s{sT0}, s{sArr}, 2")
    a.e(f"s_and_b32 s{sT1}, s{sQ}, 1")
    a.e(f"s_add_u32 s{sT0}, s{sT0}, s{sT1}")
    a.e(f"s_mul_i32 s{sT0}, s{sT0}, {hex(UVSTR)}")
    a.e(f"s_lshr_b32 s{sT1}, s{sTrow}, 6")
    a.e(f"s_lshl_b32 s{sT1}, s{sT1}, 15")
    a.e(f"s_add_u32 s{sT0}, s{sT0}, s{sT1}")
    a.e(f"s_lshr_b32 s{sT1}, s{sQ}, 1")
    a.e(f"s_xor_b32 s{sT1}, s{sT1}, s{sTt}")
    a.e(f"s_lshl1_add_u32 s{sT1}, s{sCb}, s{sT1}")
    a.e(f"s_lshl_b32 s{sT1}, s{sT1}, 10")
    a.e(f"s_add_u32 s{sT0}, s{sT0}, s{sT1}")
    a.e(f"s_and_b32 s{sT1}, s{sArr}, 1")
    a.e(f"s_lshl_b32 s{sT1}, s{sT1}, 8")
    a.e(f"s_add_u32 s{sT0}, s{sT0}, s{sT1}")
    a.e(f"s_add_u32 s{sG_}, s{sT0}, {hex(WS_UV)}")
    if js: return
    a.e("s_waitcnt lgkmcnt(0)")
    a.e("s_barrier")
    for w in range(4): ja_read(a, w, vW)
    for w in range(1, 4): ja_add(a, w)
    ja_store(a, vG, sG_)
def ja_write(a, c, vW):
    a.e(f"ds_write_b128 v{vW}, {vr(vJacc+4*c,4)} offset:{c*1024}", tag="jw")
def ja_raddr(a, vW):
    a.e(f"s_lshl_b32 s{sT0}, s{sTt}, 15")
    a.e(f"s_lshl_b32 s{sT1}, s{sQ}, 11")
    a.e(f"s_add_u32 s{sT0}, s{sT0}, s{sT1}")
    a.e(f"v_add_u32 v{vW}, s{sT0}, v{vL16}")
def ja_read(a, w, vW):
    for c in range(2):
        a.e(f"ds_read_b128 {vr(vJC+8*w+4*c,4)}, v{vW} offset:{w*8192 + c*1024}", tag=("ra", w))
def ja_add(a, w):
    a.wait(lg=("ra", w))
    for i in range(8): a.e(f"v_add_f32 v{vJC+i}, v{vJC+i}, v{vJC+8*w+i}")
def ja_store(a, vG, sG_):
    pack(a, vJC + 8, vJC, 4)
    a.e(f"buffer_store_dwordx4 {vr(vJC+8,4)}, v{vG}, {sr(sWS,4)}, s{sG_} offen sc1", tag="uv")

def poll256_issue(a, off, reg):
    if isinstance(off, tuple):
        a.e(f"buffer_load_dwordx4 {vr(reg,4)}, v{off[0]}, {sr(sWS,4)}, s{off[1]} offen sc1", tag="poll")
        return
    a.e(f"s_mov_b32 s{sT0}, {hex(off)}")
    a.e(f"buffer_load_dwordx4 {vr(reg,4)}, v{vL16}, {sr(sWS,4)}, s{sT0} offen sc1", tag="poll")
def poll256_check(a, off, reg, lbl, slp=8):
    a.e(f"s_mov_b32 s{sSpin}, 0")
    a.e(f"{lbl}_spin:")
    a.e(f"v_xor_b32 v{reg}, s{sTAG}, v{reg}")
    a.e(f"v_xor_b32 v{reg+1}, s{sTAG}, v{reg+1}")
    a.e(f"v_xor_b32 v{reg+2}, s{sTAG}, v{reg+2}")
    a.e(f"v_xor_b32 v{reg+3}, s{sTAG}, v{reg+3}")
    a.e(f"v_or3_b32 v{reg}, v{reg}, v{reg+1}, v{reg+2}")
    a.e(f"v_or_b32 v{reg}, v{reg}, v{reg+3}")
    a.e(f"v_cmp_ne_u32 vcc, 0, v{reg}")
    a.e(f"s_cmp_eq_u64 vcc, 0")
    a.e(f"s_cbranch_scc1 {lbl}_ok")
    vm = list(a.vm)
    a.e(f"s_sleep {slp}")
    poll256_issue(a, off, reg)
    a.e("s_waitcnt vmcnt(0)")
    a.e(f"s_add_u32 s{sSpin}, s{sSpin}, 1")
    a.e(f"s_cmp_lt_u32 s{sSpin}, 0x40000")
    a.e(f"s_cbranch_scc1 {lbl}_spin")
    a.e(f"{lbl}_ok:")
    a.vm = vm

def rd_k(a, t):
    for f in range(2):
        a.e(f"ds_read_b128 {vr(vK+4*f,4)}, v{vKVa} offset:{t*12288 + f*1024}", tag="K")
def rd_v(a, t, f):
    a.e(f"ds_read_b128 {vr(vV+4*f,4)}, v{vKVa2} offset:{t*12288 + (2+f)*1024}", tag=f"V{f+1}")
vKVa2 = 20

vSm, vSa, vSi = 4, 8, 23
def sm_setup(a):
    a.e(f"v_and_b32 v{vSi}, 4, v{vLANE}")
    a.e(f"v_cmp_eq_u32 vcc, 0, v{vSi}")
    a.e(f"v_mov_b32 v{vSi}, 0x3f803f80")
    for i in range(2): a.e(f"v_cndmask_b32 v{vSa+i}, 0, v{vSi}, vcc")
    for i in range(2): a.e(f"v_xor_b32 v{vSa+2+i}, v{vSi}, v{vSa}")
    a.e(f"v_and_b32 v{vSi}, 1, v{vLANE}")
    a.e(f"v_mul_u32_u24 v{vSi}, 0xaaaa, v{vSi}")
    a.e(f"v_or_b32 v{vSi}, 0x4444, v{vSi}")
    for i in range(4): a.e(f"v_mov_b32 v{vSm+i}, 0")
def att_body(a, par, hooks, last=False, sm=False):
    S = vS[par]; N = vS[1 - par]
    def ex(*idx):
        for i in idx: a.e(f"v_exp_f32 v{S+i}, v{S+i}")
    def cv(j): a.e(f"v_cvt_pk_bf16_f32 v{vP+j}, v{S+2*j}, v{S+2*j+1}")
    def hk(p):
        for f in hooks.get(p, []): f()
    S1 = lambda: last or a.e(f"v_mfma_f32_32x32x16_bf16 {vr(N,16)}, {vr(vK,4)}, {vr(vQ,4)}, {vr(vM,16)}")
    S2 = lambda: last or a.e(f"v_mfma_f32_32x32x16_bf16 {vr(N,16)}, {vr(vK+4,4)}, {vr(vQ+4,4)}, {vr(N,16)}")
    PV = lambda f: a.e(f"v_mfma_f32_32x32x16_bf16 {vr(vO,16)}, {vr(vV+4*f,4)}, {vr(vP+4*f,4)}, {vr(vO,16)}")
    LS = lambda f: a.e(f"v_mfma_f32_16x16x32_bf16 {vr(vLs,4)}, {vr(vSel,4)}, {vr(vP+4*f,4)}, {vr(vLs,4)}")
    if "b2" in Cfg.x:
        a.wait(lg=["K", "V2"])
        S1(); ex(0, 1); hk(1); ex(2, 3); cv(0); cv(1)
        PV(1); ex(4, 5); LS(1); ex(6, 7); cv(2); cv(3)
        S2(); hk(2); ex(8, 9, 10, 11); cv(4); cv(5)
        a.wait(lg="V1")
        PV(0); ex(12, 13); hk(3); LS(0); hk(4); ex(14, 15); cv(6); cv(7)
        return
    if sm:
        SM = lambda: a.e(f"v_smfmac_f32_16x16x64_bf16 {vr(vSm,4)}, {vr(vSa,4)}, {vr(vP,8)}, v{vSi}")
        a.wait(lg=["K", "V2"])
        if "m3" in Cfg.x:
            S1(); ex(0, 1); hk(1); ex(2, 3); cv(0); cv(1); ex(4)
            PV(1); ex(5, 6, 7); cv(2); cv(3); ex(8)
            S2(); hk(2); ex(9); SM(); ex(10, 11); cv(4)
            a.wait(lg="V1")
            PV(0); hk(3); cv(5); ex(12, 13); hk(4); ex(14, 15); cv(6); cv(7)
            return
        if "m4" in Cfg.x:
            S1(); ex(0, 1); hk(1); ex(2, 3); cv(0); cv(1)
            PV(1); ex(4, 5, 6, 7); cv(2); cv(3)
            S2(); hk(2); ex(8, 9, 10, 11)
            a.wait(lg="V1")
            PV(0); hk(3); ex(12, 13); SM(); hk(4); ex(14, 15); cv(4); cv(5); cv(6); cv(7)
            return
        if "m5" in Cfg.x:
            S1(); ex(0, 1); hk(1); cv(0); ex(2, 3); cv(1)
            PV(1); ex(4, 5); cv(2); ex(6, 7); cv(3)
            S2(); hk(2); ex(8, 9); SM(); ex(10); cv(4); ex(11); cv(5)
            a.wait(lg="V1")
            PV(0); hk(3); ex(12, 13); hk(4); cv(6); ex(14, 15); cv(7)
            return
        if "m2" in Cfg.x:
            S1(); ex(0, 1); hk(1); ex(2, 3); cv(0); cv(1)
            PV(1); ex(4, 5, 6, 7); cv(2); cv(3)
            S2(); hk(2); ex(8, 9); SM(); ex(10, 11); cv(4); cv(5)
            a.wait(lg="V1")
            PV(0); hk(3); ex(12, 13); hk(4); ex(14, 15); cv(6); cv(7)
            return
        S1(); ex(0, 1); hk(1); ex(2, 3); cv(0); cv(1); ex(4)
        PV(1); ex(5, 6, 7); cv(2); cv(3)
        S2(); hk(2); ex(8, 9, 10); SM(); ex(11); cv(4); cv(5); ex(12)
        a.wait(lg="V1")
        PV(0); hk(3); ex(13); hk(4); ex(14, 15); cv(6); cv(7)
        return
    if "b3" in Cfg.x:
        a.wait(lg=["K", "V2"])
        S1(); ex(0, 1); hk(1); ex(2, 3); LS(1); cv(0); cv(1); ex(4)
        PV(1); ex(5, 6, 7); cv(2); cv(3)
        S2(); hk(2); ex(8, 9, 10, 11); LS(0); cv(4); cv(5); ex(12)
        a.wait(lg="V1")
        PV(0); hk(3); ex(13); hk(4); ex(14, 15); cv(6); cv(7)
        return
    a.wait(lg=["K", "V2"])
    if not last: a.e(f"v_mfma_f32_32x32x16_bf16 {vr(N,16)}, {vr(vK,4)}, {vr(vQ,4)}, {vr(vM,16)}")
    ex(0, 1)
    hk(1)
    a.e(f"v_mfma_f32_32x32x16_bf16 {vr(vO,16)}, {vr(vV+4,4)}, {vr(vP+4,4)}, {vr(vO,16)}")
    ex(2, 3)
    a.e(f"v_mfma_f32_16x16x32_bf16 {vr(vLs,4)}, {vr(vSel,4)}, {vr(vP+4,4)}, {vr(vLs,4)}")
    ex(4, 5); cv(0); cv(1)
    if not last: a.e(f"v_mfma_f32_32x32x16_bf16 {vr(N,16)}, {vr(vK+4,4)}, {vr(vQ+4,4)}, {vr(N,16)}")
    hk(2)
    ex(6, 7); cv(2); ex(8); cv(3); ex(9, 10)
    a.wait(lg="V1")
    a.e(f"v_mfma_f32_32x32x16_bf16 {vr(vO,16)}, {vr(vV,4)}, {vr(vP,4)}, {vr(vO,16)}")
    ex(11, 12)
    hk(3)
    a.e(f"v_mfma_f32_16x16x32_bf16 {vr(vLs,4)}, {vr(vSel,4)}, {vr(vP,4)}, {vr(vLs,4)}")
    hk(4)
    ex(13, 14); cv(4); ex(15); cv(5); cv(6); cv(7)

def kv_dma(a, q):
    a.e(f"buffer_load_dwordx4 v{vL16}, {sr(sWS,4)}, s{sKVsrc} offen offset:{q*1024} sc1 lds", tag="kv")

def kv_dma_setup(a):
    a.e(f"s_add_u32 s{sT0}, s{sKVsrc}, {8*4096}")
    a.e(f"s_and_b32 s{sT0}, s{sT0}, 0x3ffff")
    a.e(f"s_andn2_b32 s{sKVsrc}, s{sKVsrc}, 0x3ffff")
    a.e(f"s_or_b32 s{sKVsrc}, s{sKVsrc}, s{sT0}")
    a.e(f"s_add_u32 s{sSlot}, s{sSlot}, 4096")
    a.e(f"s_cmp_eq_u32 s{sSlot}, {3*4096}")
    a.e(f"s_cselect_b32 s{sSlot}, 0, s{sSlot}")
    a.e(f"s_add_u32 m0, s{sXl}, s{sSlot}")

def attention(a, st):
    a.e(f"s_mov_b32 s{sKVsrc}, s{sKVo}")
    a.e(f"s_mov_b32 s{sSlot}, 0")
    a.e(f"s_mov_b32 s{sKVl}, 65536")
    def adv_k(second_half_next):
        if second_half_next:
            a.e(f"v_add_u32 v{vKVa}, 49152, v{vKVa}")
        else:
            a.e(f"s_add_u32 s{sKVl}, s{sKVl}, 4096")
            a.e(f"s_cmp_eq_u32 s{sKVl}, {65536+3*4096}")
            a.e(f"s_cselect_b32 s{sKVl}, 65536, s{sKVl}")
            a.e(f"v_add_u32 v{vKVa}, s{sKVl}, v{vL16}")
    def group(g, extra):
        for t in range(8):
            h = {1: [], 2: [], 3: [], 4: []}
            tk = (t + 2) % 4
            last = g == 7 and t >= 6
            for f in extra.get((t, 0), []): f()
            if tk == 0 and not last:
                if t == 6:
                    h[2].append(lambda: (a.wait(vm=[("kv", g + 1)] + (["uv"] if g == 1 + Cfg.jg else [])), a.e("s_barrier")))
                h[2].append(lambda t=t: adv_k(t == 2))
            if not last: h[2].append(lambda tk=tk: rd_k(a, tk))
            h[2].append(lambda t=t: rd_v(a, t % 4, 1))
            if not (g == 7 and t == 7):
                if (t + 1) % 4 == 0:
                    h[4].append(lambda: a.e(f"v_mov_b32 v{vKVa2}, v{vKVa}"))
                h[4].append(lambda t=t: rd_v(a, (t + 1) % 4, 0))
            for p in (1, 2, 3, 4):
                h[p] += extra.get((t, p), [])
            att_body(a, t % 2, h, g == 7 and t == 7, sm="sm" in Cfg.x and (g, t) >= (Cfg.jg, 7))
    def flag_store():
        a.wait(vm="kvst")
        a.e(f"v_mov_b32 v{vT}, s{sTAG}")
        a.e(f"s_lshl_b32 s{sT0}, s{sTt}, 30")
        a.e(f"v_lshl_or_b32 v{vT+1}, v{vL16}, 5, s{sT0}")
        a.e("s_mov_b64 exec, 3")
        a.e(f"buffer_store_dword v{vT}, v{vT+1}, {sr(sWS,4)}, s{sT3} offen sc1")
        a.e("s_mov_b64 exec, -1")
    def poll_issue():
        a.e(f"v_and_b32 v{vT+4}, 7, v{vLANE}")
        a.e(f"v_lshlrev_b32 v{vT+4}, 2, v{vT+4}")
        a.e(f"buffer_load_dword v{vT+5}, v{vT+4}, {sr(sWS,4)}, s{sF1o} offen sc1", tag="kpoll")
    def poll_check():
        a.e(f"s_mov_b32 s{sSpin}, 0")
        a.wait(vm="kpoll")
        vm = list(a.vm)
        a.e("L_kvspin:")
        a.e(f"v_cmp_eq_u32 vcc, s{sTAG}, v{vT+5}")
        a.e("s_cmp_eq_u64 vcc, -1")
        a.e("s_cbranch_scc1 L_kvok")
        a.e(f"buffer_load_dword v{vT+5}, v{vT+4}, {sr(sWS,4)}, s{sF1o} offen sc1")
        a.e("s_waitcnt vmcnt(0)")
        a.e(f"s_add_u32 s{sSpin}, s{sSpin}, 1")
        a.e(f"s_cmp_lt_u32 s{sSpin}, 0x40000")
        a.e("s_cbranch_scc1 L_kvspin")
        a.e("L_kvok:")
        a.vm = vm
    def dma(g, q):
        if q == 0: kv_dma_setup(a)
        kv_dma(a, q); a.vm[-1] = ("kv", g)
    def chk(off, lbl):
        a.wait(vm="poll"); poll256_check(a, off, vJx, lbl)
    EX = [dict() for _ in range(8)]
    def at(g, t, p, f, *x): EX[g].setdefault((t, p), []).append(lambda: f(*x))
    def spread(items, n0, per=2):
        for i, (f, *x) in enumerate(items):
            n = n0 + i // per
            at(n // 8, n % 8, {1: [1], 2: [1, 3], 4: [1, 2, 3, 4]}[per][i % per], f, *x)
    steps = a_loads()
    s0 = st if "g0" in Cfg.x else (lambda: None)
    Cfg.s0 = s0
    at(0, 1, 1, s0); at(0, *((0, 4) if "k0" in Cfg.x else (1, 1)), flag_store); at(0, 1, 1, s0); at(0, 1, 1, chk, FL_0, "L_pf0"); at(0, 1, 1, s0); at(0, 4, 3, s0); at(0, 6, 0, s0); at(0, 1, 1, wf_stores, a)
    JG = Cfg.jg
    at(0, 3, 1, poll_issue)
    if JG:
        sl = [(n // 8, n % 8, p) for n in range(2, 14) for p in (1, 4)] if "l2" in Cfg.x else \
             [(n // 8, n % 8, p) for n in range(5, 14) for p in (1, 3, 4)][1:]
        at(*sl[0], steps[0], a)
        for i in range(8): at(*sl[i], steps[1 + i], a)
        at(*sl[8], steps[9], a)
        for i in range(9): at(*sl[8 + i], steps[10 + i], a)
        EX[0].setdefault((2, 1), [])
    else:
        at(0, 1, 1, steps[0], a)
        for i in range(8): at(0, 1 + (i + 1) // 4, 1 + (i + 1) % 4, steps[1 + i], a)
        at(0, 3, 1, steps[9], a)
        for i in range(9): at(0, 3 + (i // 2 + 1) // 4, 1 + (i // 2 + 1) % 4, steps[10 + i], a)
    at(0, 4, 3, poll_check); at(0, 4, 3, st)
    if "ek" in Cfg.x:
        sE = sJ + 9
        def early():
            a.wait(vm="kpoll")
            vm = list(a.vm)
            a.e(f"v_cmp_eq_u32 vcc, s{sTAG}, v{vT+5}")
            a.e(f"s_add_u32 s{sT0}, s{sR}, 1")
            a.e(f"s_lshr_b32 s{sT0}, vcc_lo, s{sT0}")
            a.e(f"s_andn2_b32 s{sE}, 3, s{sT0}")
            a.e("s_cbranch_scc1 L_ek0")
            for g in (1, 2):
                for q in range(4): dma(g, q)
            a.e("L_ek0:")
            a.vm = vm
        def late(g):
            a.e(f"s_cmp_eq_u32 s{sE}, 0")
            a.e(f"s_cbranch_scc1 L_ek{g}")
            for q in range(4): dma(g, q)
            a.e(f"L_ek{g}:")
        def alw():
            vm = list(a.vm)
            a.e(f"s_cmp_lg_u32 s{sE}, 0")
            a.e("s_cbranch_scc1 L_ek3")
            a.e("s_waitcnt vmcnt(0)")
            a.e("L_ek3:")
            a.vm = vm
        et = 1 if "e1" in Cfg.x else 2
        at(0, 0, 1, poll_issue)
        if et == 1: EX[0][(1, 1)].insert(4, early)
        else: EX[0][(et, 1)].insert(0, early)
        at(0, 4, 3, late, 1); at(0, 5, 1, late, 2)
        if not JG: at(0, 6, 0, alw)
    else:
        for q in range(4): at(0, 4, 3, dma, 1, q)
        for q in range(4): at(0, 5, 1 if JG else 1 + q, dma, 2, q)
    at(JG, 6, 0, job_a, a); at(0, 6, 0, s0); at(0, 6, 3, s0)
    if "sm" in Cfg.x: at(JG, 6, 1, sm_setup, a)
    if "js" in Cfg.x:
        for c, (t, p) in enumerate([(6, 3), (6, 4), (7, 1), (7, 3)]):
            at(JG, t, p, ja_write, a, 2 * c, vA0); at(JG, t, p, ja_write, a, 2 * c + 1, vA0)
        at(JG, 7, 4, ja_raddr, a, vA0)
        at(JG + 1, 0, 3, lambda: (a.wait(lg="jw"), a.e("s_barrier")))
        for w, (t, p) in enumerate([(0, 3), (0, 4), (1, 1), (1, 3)]): at(JG + 1, t, p, ja_read, a, w, vA0)
        for w, (t, p) in enumerate([(2, 1), (2, 3), (3, 1)]): at(JG + 1, t, p, ja_add, a, w + 1)
        at(JG + 1, 3, 3, ja_store, a, vA1, sJ + 13)
    for g in range(1, 6):
        for q, (t, p) in enumerate([(6, 3), (6, 4), (7, 1), (7, 3)]): at(g, t, p, dma, g + 2, q)
    at(1 + JG, 0, 1, b_setup, a)
    spread([(df_load, a, j) for j in range(8)], 16 + 8 * JG, 1)
    spread([(wf_load, a, n) for n in range(28, 32)], 36, 2)
    at(1 + JG, 6, 3, flag_wg, a, FL_A, "L_fa")
    at(3, 5, 1, poll256_issue, a, FL_A, vJx)
    at(4, 0, 1, chk, FL_A, "L_pa"); at(4, 0, 1, uv_setup, a)
    spread([(uv_load, a, j) for j in range(8)], 32, 2)
    at(4, 4, 1, uv_extra, a)
    spread([(b_mfma, a, j) for j in range(8)], 40, 2)
    at(5, 4, 1, b_extra, a); at(5, 5, 1, b_write, a)
    spread([(wf_load, a, n) for n in range(0, 4)], 44, 2)
    spread([(wf_load, a, n) for n in range(4, 28)], 48, 2)
    for g in range(8):
        group(g, EX[g])
        if g == 0 or (g < 7 and 'gs' in Cfg.x and 'g0' not in Cfg.x): st()
    a.wait(lg="V2")
    a.e(f"v_mfma_f32_32x32x16_bf16 {vr(vO,16)}, {vr(vV+4,4)}, {vr(vP+4,4)}, {vr(vO,16)}")
    a.e(f"v_mfma_f32_16x16x32_bf16 {vr(vLs,4)}, {vr(vSel,4)}, {vr(vP+4,4)}, {vr(vLs,4)}")
    st()
    if "sm" in Cfg.x:
        a.e(f"v_add_f32 v{vSm}, v{vSm}, v{vSm+1}")
        a.e(f"v_add_f32 v{vLs}, v{vLs}, v{vSm}")
    o_store(a)
    a.e(f"v_mfma_f32_16x16x32_bf16 {vr(vS[0],4)}, {vr(vSel,4)}, {vr(vP,4)}, 0")
    a.e(f"v_mfma_f32_16x16x32_bf16 {vr(vS[0],4)}, {vr(vSel,4)}, {vr(vP+4,4)}, {vr(vS[0],4)}")
    a.e(f"s_mov_b32 s{sT2}, {hex(f2u(2.0**(-30 if 'fb' in Cfg.x else 100)))}")
    a.e(f"v_cmp_nge_f32_e64 {sr(sT0,2)}, s{sT2}, v{vLs}")
    a.e(f"v_mov_b32 v{vT}, 0x207")
    a.e(f"v_cmp_class_f32 vcc, v{vS[0]}, v{vT}")
    a.e(f"s_or_b64 vcc, vcc, {sr(sT0,2)}")
    a.e("s_cbranch_scc1 L_fb")
    a.e("L_fbret:")
def o_store(a):
    a.e(f"v_rcp_f32 v{vT}, v{vLs}")
    for i in range(16): a.e(f"v_mul_f32 v{vO+i}, v{vT}, v{vO+i}")
    pack(a, vP, vO, 8)
    for f in range(2):
        a.e(f"buffer_store_dwordx4 {vr(vP+4*f,4)}, v{vL16}, {sr(sWS,4)}, s{sOFo} offen offset:{f*1024} sc1", tag="ost")
def fallback(a):
    S = vS[0]
    a.e("L_fb:")
    a.e("s_waitcnt vmcnt(0) lgkmcnt(0)")
    a.e(f"s_lshl_b32 s{sT0}, s{sH}, 18")
    a.e(f"s_add_u32 s{sT1}, s{sT0}, {hex(1 << 18)}")
    a.e(f"v_mov_b32 v{vT}, 0xff800000")
    a.e("L_fb1:")
    for f in range(2):
        a.e(f"buffer_load_dwordx4 {vr(vK+4*f,4)}, v{vL16}, {sr(sWS,4)}, s{sT0} offen offset:{f*1024} sc1")
    a.e("s_waitcnt vmcnt(0)")
    a.e(f"v_mfma_f32_32x32x16_bf16 {vr(S,16)}, {vr(vK,4)}, {vr(vQ,4)}, 0")
    a.e(f"v_mfma_f32_32x32x16_bf16 {vr(S,16)}, {vr(vK+4,4)}, {vr(vQ+4,4)}, {vr(S,16)}")
    for i in range(0, 16, 2):
        a.e(f"v_max3_f32 v{vT}, v{vT}, v{S+i}, v{S+i+1}")
    a.e(f"s_add_u32 s{sT0}, s{sT0}, 4096")
    a.e(f"s_cmp_lt_u32 s{sT0}, s{sT1}")
    a.e("s_cbranch_scc1 L_fb1")
    a.e(f"v_mov_b32 v{vT+1}, v{vT}")
    a.e(f"v_permlane32_swap_b32 v{vT}, v{vT+1}")
    a.e(f"v_max_f32 v{vT}, v{vT}, v{vT+1}")
    for i in range(16): a.e(f"v_sub_f32 v{vM+i}, 0, v{vT}")
    for i in range(16): a.e(f"v_mov_b32 v{vO+i}, 0")
    for i in range(4): a.e(f"v_mov_b32 v{vLs+i}, 0")
    a.e(f"s_lshl_b32 s{sT0}, s{sH}, 18")
    a.e("L_fb2:")
    for f in range(4):
        a.e(f"buffer_load_dwordx4 {vr(vK+4*f,4)}, v{vL16}, {sr(sWS,4)}, s{sT0} offen offset:{f*1024} sc1")
    a.e("s_waitcnt vmcnt(0)")
    a.e(f"v_mfma_f32_32x32x16_bf16 {vr(S,16)}, {vr(vK,4)}, {vr(vQ,4)}, {vr(vM,16)}")
    a.e(f"v_mfma_f32_32x32x16_bf16 {vr(S,16)}, {vr(vK+4,4)}, {vr(vQ+4,4)}, {vr(S,16)}")
    for i in range(16): a.e(f"v_exp_f32 v{S+i}, v{S+i}")
    pack(a, vP, S, 8)
    for f in range(2):
        a.e(f"v_mfma_f32_32x32x16_bf16 {vr(vO,16)}, {vr(vV+4*f,4)}, {vr(vP+4*f,4)}, {vr(vO,16)}")
        a.e(f"v_mfma_f32_16x16x32_bf16 {vr(vLs,4)}, {vr(vSel,4)}, {vr(vP+4*f,4)}, {vr(vLs,4)}")
    a.e(f"s_add_u32 s{sT0}, s{sT0}, 4096")
    a.e(f"s_cmp_lt_u32 s{sT0}, s{sT1}")
    a.e("s_nop 15")
    a.e("s_cbranch_scc1 L_fb2")
    o_store(a)
    a.e("s_branch L_fbret")

sTB, sWFo = sJ + 11, sJ + 12
vBD, vBU, vBacc, vBR = 136, 168, 200, 216
TS = 4352
sDo, sUo, vUa = sJ + 6, sJ + 8, 22
def b_setup(a):
    a.e(f"s_and_b32 s{sT0}, s2, 7")
    a.e(f"s_bfe_u32 s{sT1}, s2, 0x20003")
    a.e(f"s_lshl2_add_u32 s{sTB}, s{sT0}, s{sT1}")
    a.e(f"s_lshr_b32 s{sT0}, s{sWAVE}, 1")
    a.e(f"s_lshl3_add_u32 s{sT0}, s{sT0}, s{sCb}")
    a.e(f"s_and_b32 s{sT1}, s{sWAVE}, 1")
    a.e(f"s_lshl1_add_u32 s{sT0}, s{sT0}, s{sT1}")
    a.e(f"s_lshl_b32 s{sT0}, s{sT0}, 13")
    a.e(f"s_add_u32 s{sDo}, s{sT0}, {hex(WS_DF)}")
    a.e(f"s_add_u32 s{sDo+1}, s{sDo}, 4096")
    a.e(f"s_lshl2_add_u32 s{sT0}, s{sCb}, s{sQ}")
    a.e(f"s_lshl{3 if 'hs' in Cfg.x else 1}_add_u32 s{sT0}, s{sT0}, s{sTt}")
    a.e(f"s_lshl_b32 s{sT0}, s{sT0}, {13 if 'hs' in Cfg.x else 15}")
    a.e(f"s_add_u32 s{sWFo}, s{sT0}, {hex(WS_WF)}")
    a.e(f"s_lshr_b32 s{sT0}, s{sWAVE}, 1")
    a.e(f"s_mul_i32 s{sT0}, s{sT0}, {hex(UVSTR)}")
    a.e(f"s_lshl1_add_u32 s{sT1}, s{sTB}, s{sT1}")
    a.e(f"s_lshl_b32 s{sT1}, s{sT1}, 13")
    a.e(f"s_add_u32 s{sT0}, s{sT0}, s{sT1}")
    a.e(f"s_add_u32 s{sUo}, s{sT0}, {hex(WS_UV)}")
    a.e(f"s_add_u32 s{sUo+1}, s{sUo}, 4096")
def df_load(a, j):
    a.e(f"buffer_load_dwordx4 {vr(vBD+4*j,4)}, v{vL16}, {sr(sWS,4)}, s{sDo+j//4} offen offset:{1024*(j%4)} sc1", tag="df")
def uv_setup(a):
    T = vT
    a.e(f"v_lshrrev_b32 v{T}, 5, v{vLANE}")
    a.e(f"v_lshlrev_b32 v{T}, 9, v{T}")
    a.e(f"v_and_b32 v{T+1}, 1, v{vLANE}")
    a.e(f"v_lshl_add_u32 v{T}, v{T+1}, 8, v{T}")
    a.e(f"v_bfe_u32 v{T+1}, v{vLANE}, 1, 4")
    a.e(f"v_lshl_add_u32 v{vUa}, v{T+1}, 4, v{T}")
def uv_load(a, j):
    a.e(f"buffer_load_dwordx4 {vr(vBU+4*j,4)}, v{vUa}, {sr(sWS,4)}, s{sUo+j//4} offen offset:{1024*(j%4)} sc1", tag=("u", j))
def uv_extra(a):
    vm = list(a.vm)
    a.e(f"s_or_b32 s{sT2}, s{sTB}, s{sTt}")
    a.e("s_cbranch_scc1 L_j5e")
    a.e(f"s_add_u32 s{sT0}, s{sUo}, {32*16384}")
    a.e(f"s_add_u32 s{sT1}, s{sUo+1}, {32*16384}")
    for j in range(8):
        a.e(f"buffer_load_dwordx4 {vr(vBR+4*j,4)}, v{vUa}, {sr(sWS,4)}, s{sT0+j//4} offen offset:{1024*(j%4)} sc1")
    a.e("L_j5e:")
    a.vm = vm
def wfreg(n): return 136 + 4 * n if n < 30 else 24 + 4 * (n - 30)
def wf_load(a, n):
    if n % 4 == 0: a.e(f"s_add_u32 s{sJ+10}, s{sWFo}, {(n//8)*16384 + (n//4%2)*4096 if 'hs' in Cfg.x else (n//4)*4096}")
    a.e(f"buffer_load_dwordx4 {vr(wfreg(n),4)}, v{vL16}, {sr(sWS,4)}, s{sJ+10} offen offset:{1024*(n%4)} sc1")
def tile_waddr(a, dst, T):
    a.e(f"v_lshrrev_b32 v{T}, 5, v{vLANE}")
    a.e(f"v_lshl_add_u32 v{dst}, v{T}, 5, v{vL16}")
def b_mfma(a, j):
    a.wait(vm=["df", ("u", j)])
    a.e(f"v_mfma_f32_32x32x16_bf16 {vr(vBacc,16)}, {vr(vBD+4*j,4)}, {vr(vBU+4*j,4)}, {vr(vBacc,16) if j else 0}")
def b_extra(a):
    tile_waddr(a, vUa, vT + 1)
    a.e(f"s_mul_i32 s{sT0}, s{sWAVE}, {TS}")
    a.e(f"v_add_u32 v{vUa}, s{sT0}, v{vUa}")
    vm = list(a.vm); lg = list(a.lg)
    a.e(f"s_or_b32 s{sT2}, s{sTB}, s{sTt}")
    a.e("s_cbranch_scc1 L_j6b")
    a.e("s_waitcnt vmcnt(0)")
    for j in range(8):
        a.e(f"v_mfma_f32_32x32x16_bf16 {vr(vBU,16)}, {vr(vBD+4*j,4)}, {vr(vBR+4*j,4)}, {vr(vBU,16) if j else 0}")
    for q in range(4):
        a.e(f"ds_write_b128 v{vUa}, {vr(vBU+4*q,4)} offset:{8*TS + q*1088}")
    a.e("s_waitcnt lgkmcnt(0)")
    a.e("L_j6b:")
    a.vm = vm; a.lg = lg
def b_write(a):
    for q in range(4):
        a.e(f"ds_write_b128 v{vUa}, {vr(vBacc+4*q,4)} offset:{q*1088}", tag="bw")

vAcc, vGY, vOmg, vFr = 32, 64, 80, 88
vOd0, vOd1, vFl, vRa, vRow, vSt = 81, 82, 83, 84, 85, 86
def rbf(a, r):
    a.e(f"v_cvt_pk_bf16_f32 v{r}, v{r}, v{r}")
    a.e(f"v_and_b32 v{r}, 0xffff0000, v{r}")
def FM(): return " sc1" if "f1" in Cfg.x else " nt" if "f2" in Cfg.x else " sc0 sc1" if "f3" in Cfg.x else ""
def phase3(a, st):
    T = vT
    def oaddr():
        a.e(f"s_lshl_b32 s{sT0}, s{sTB}, 16")
        a.e(f"v_add_u32 v{vOd0}, s{sT0}, v{vL16}")
        a.e(f"s_sub_u32 s{sT0}, 63, s{sTB}")
        a.e(f"s_sub_u32 s{sT1}, 64, s{sTB}")
        a.e(f"s_cmp_eq_u32 s{sTB}, 0")
        a.e(f"s_cselect_b32 s{sT1}, 32, s{sT1}")
        a.e(f"v_and_b32 v{T}, 31, v{vLANE}")
        a.e(f"v_cmp_eq_u32 vcc, 0, v{T}")
        a.e(f"v_mov_b32 v{T+2}, s{sT0}")
        a.e(f"v_mov_b32 v{T+3}, s{sT1}")
        a.e(f"v_cndmask_b32 v{T+2}, v{T+2}, v{T+3}, vcc")
        a.e(f"v_sub_u32 v{T}, 32, v{T}")
        a.e(f"v_and_b32 v{T}, 31, v{T}")
        a.e(f"v_and_b32 v{T+3}, 32, v{vLANE}")
        a.e(f"v_add_u32 v{T}, v{T}, v{T+3}")
        a.e(f"v_lshlrev_b32 v{T}, 4, v{T}")
        a.e(f"v_lshl_add_u32 v{vOd1}, v{T+2}, 16, v{T}")
        a.e(f"v_cmp_eq_u32 vcc, 0, v{T+3}")
        a.e(f"v_mov_b32 v{T}, s{sTB}")
        a.e(f"v_cndmask_b32 v{T+2}, v{T+2}, v{T}, vcc")
        a.e(f"v_lshlrev_b32 v{vFl}, 10, v{T+2}")
    vPo, sMk = 4, sJ + 8
    def opoll(r=vPo):
        a.e(f"s_mov_b64 exec, {sr(sMk,2)}")
        poll256_issue(a, (vFl, sJ + 6), r)
        a.e("s_mov_b64 exec, -1")
    if 'es' in Cfg.x:
        oaddr()
        a.e(f"s_lshl_b32 s{sJ+6}, s{sWAVE}, 7")
        a.e(f"s_add_u32 s{sJ+6}, s{sJ+6}, {hex(FL_O)}")
        a.e(f"s_mov_b32 s{sMk}, 1"); a.e(f"s_mov_b32 s{sMk+1}, 3")
        opoll()
    a.e(f"v_lshrrev_b32 v{T}, 3, v{vLANE}")
    a.e(f"s_lshl_b32 s{sT0}, s{sQ}, 3")
    a.e(f"v_add_u32 v{T}, s{sT0}, v{T}")
    a.e(f"v_and_b32 v{T+1}, 7, v{vLANE}")
    a.e(f"v_mul_u32_u24 v{vRa}, 544, v{T+1}")
    a.e(f"v_mov_b32 v{T+5}, v{vRa}")
    a.e(f"v_lshl_add_u32 v{vRa}, v{T}, 4, v{vRa}")
    for t in range(8):
        a.e(f"ds_read_b128 {vr(vFr+4*t,4)}, v{vRa} offset:{t*TS}", tag=("pm", t))
    a.e(f"s_lshl_b32 s{sT0}, s{sTB}, 5")
    a.e(f"v_add_u32 v{T}, s{sT0}, v{T}")
    a.e(f"v_sub_u32 v{T+2}, 2048, v{T}")
    a.e(f"v_cmp_eq_u32 vcc, 0, v{T}")
    a.e(f"v_mov_b32 v{T+3}, 1024")
    a.e(f"v_cndmask_b32 v{T+2}, v{T+2}, v{T+3}, vcc")
    a.e(f"v_cndmask_b32 v{T+3}, v{T}, v{T+3}, vcc")
    a.e(f"s_cmp_lg_u32 s{sTt}, 0")
    a.e(f"s_cselect_b64 vcc, -1, 0")
    a.e(f"v_cndmask_b32 v{vRow}, v{T}, v{T+2}, vcc")
    a.e(f"v_cndmask_b32 v{T+3}, v{T}, v{T+3}, vcc")
    a.e(f"v_lshlrev_b32 v{T+2}, 2, v{vRow}")
    a.e(f"v_lshlrev_b32 v{T+3}, 5, v{T+3}")
    a.e(f"v_lshlrev_b32 v{T}, 5, v{T}")
    a.e(f"s_mov_b32 s{sT0}, {hex(WS_GP)}")
    a.e(f"s_mov_b32 s{sT1}, {hex(WS_ZC)}")
    a.e(f"s_mov_b32 s{sT2}, {hex(WS_ZC+ZSTR)}")
    G, ZC, ZW, ZS = 32, 36, 40, 44
    a.e(f"buffer_load_dword v{G}, v{T+2}, {sr(sWS,4)}, s{sT0} offen sc1", tag="sm")
    a.e(f"buffer_load_dwordx4 {vr(ZC,4)}, v{T+3}, {sr(sWS,4)}, s{sT1} offen sc1", tag="sm")
    a.e(f"buffer_load_dwordx4 {vr(ZW,4)}, v{T+3}, {sr(sWS,4)}, s{sT1} offen offset:16 sc1", tag="sm")
    a.e(f"buffer_load_dwordx4 {vr(ZS,4)}, v{T}, {sr(sWS,4)}, s{sT2} offen sc1", tag="sm")
    if 'es' not in Cfg.x: oaddr()
    for t in range(0, 8, 2):
        a.wait(lg=("pm", t + 1))
        for i in range(4): a.e(f"v_add_f32 v{vFr+4*t+i}, v{vFr+4*t+i}, v{vFr+4*t+4+i}")
    a.e(f"s_xor_b32 s{sT0}, s{sWAVE}, 4")
    a.e(f"s_or_b32 s{sT0}, s{sT0}, s{sTB}")
    a.e(f"s_cmp_lg_u32 s{sT0}, 0")
    a.e("s_cbranch_scc1 L_norow")
    a.e("s_mov_b64 exec, 0xff")
    for pe in range(2):
        for k in range(8):
            d = vFr + 8 * pe if k == 0 else 48
            a.e(f"ds_read_b128 {vr(d,4)}, v{T+5} offset:{(8+2*pe+k//4)*TS + (k%4)*16}")
            a.e("s_waitcnt lgkmcnt(0)")
            if k:
                for i in range(4): a.e(f"v_add_f32 v{vFr+8*pe+i}, v{vFr+8*pe+i}, v{48+i}")
    a.e("s_mov_b64 exec, -1")
    a.e("L_norow:")
    a.wait(vm="ost")
    a.e(f"s_sub_u32 s{sT0}, s{sOFo}, {hex(WS_OF)}")
    if 'hs' in Cfg.x:
        a.e(f"s_lshr_b32 s{sT0}, s{sT0}, 16")
        a.e(f"s_lshl3_add_u32 s{sT0}, s{sT0}, s{sCb}")
        a.e(f"s_lshl_b32 s{sT0}, s{sT0}, 7")
        a.e(f"s_lshl2_add_u32 s{sT0}, s{sArr}, s{sT0}")
    else:
        a.e(f"s_lshr_b32 s{sT0}, s{sT0}, 13")
        a.e(f"s_lshl_b32 s{sT0}, s{sT0}, 7")
        a.e(f"s_and_b32 s{sT1}, s{sH}, 3")
        a.e(f"s_lshl2_add_u32 s{sT0}, s{sT1}, s{sT0}")
    a.e(f"s_add_u32 s{sT0}, s{sT0}, {hex(FL_O)}")
    a.e(f"v_mov_b32 v{T+4}, s{sTAG}")
    a.e(f"buffer_store_dword v{T+4}, v{vLz}, {sr(sWS,4)}, s{sT0} offen sc1")
    st()
    if 'p2' in Cfg.x: opoll(vPo + 4)
    if 'es' not in Cfg.x:
        a.e(f"s_lshl_b32 s{sJ+6}, s{sWAVE}, 7")
        a.e(f"s_add_u32 s{sJ+6}, s{sJ+6}, {hex(FL_O)}")
        a.e("s_mov_b32 exec_lo, 1"); a.e("s_mov_b32 exec_hi, 3")
        poll256_issue(a, (vFl, sJ + 6), 48)
        a.e("s_mov_b64 exec, -1")
    a.wait(vm="sm")
    for r in (ZC, ZW, ZS):
        a.e(f"v_add_f32 v{r}, v{r}, v{r+1}")
        a.e(f"v_add_f32 v{r+2}, v{r+2}, v{r+3}")
        a.e(f"v_add_f32 v{r}, v{r}, v{r+2}")
    rbf(a, G)
    a.e(f"v_mul_f32 v{G}, {hex(f2u(-math.log2(math.e)))}, v{G}")
    a.e(f"v_exp_f32 v{G}, v{G}")
    a.e(f"v_add_f32 v{ZW}, v{ZW}, v{ZC}")
    a.e(f"v_add_f32 v{G}, 1.0, v{G}")
    a.e(f"v_rcp_f32 v{G}, v{G}")
    for i in range(4):
        a.e(f"v_{'sub' if i % 2 else 'add'}_f32 v{vFr+i}, v{vFr+i}, v{ZC}")
        a.e(f"v_{'add' if i % 2 else 'sub'}_f32 v{vFr+24+i}, v{vFr+24+i}, v{ZS}")
    rbf(a, G)
    a.e(f"v_sub_f32 v{vOmg}, 1.0, v{G}")
    rbf(a, vOmg)
    a.e(f"s_cmp_lg_u32 s{sTt}, 0")
    a.e(f"s_cselect_b32 s{sT0}, 1.0, -1.0")
    for pe in range(2):
        for i in range(4):
            P, Q = vFr + 8 * pe + i, vFr + 16 + 8 * pe + i
            a.e(f"v_fma_f32 v{vGY+4*pe+i}, v{Q}, s{sT0}, v{P}")
            a.e(f"v_fma_f32 v{vGY+8+4*pe+i}, v{Q}, -s{sT0}, v{P}")
    a.e(f"v_or_b32 v{T}, s{sCb}, v{T+1}")
    a.e(f"v_cmp_eq_u32 vcc, 0, v{T}")
    a.e(f"v_cndmask_b32 v{vGY+8}, v{vGY+8}, v{ZW}, vcc")
    for i in range(16): a.e(f"v_mul_f32 v{vGY+i}, v{G}, v{vGY+i}")
    a.e(f"s_lshl_b32 s{sT0}, s{sCb}, 7")
    a.e(f"v_lshl_add_u32 v{T}, v{T+1}, 4, s{sT0}")
    a.e(f"v_lshlrev_b32 v{vRow}, 11, v{vRow}")
    a.e(f"v_add_u32 v{vSt}, v{vRow}, v{T}")
    a.e(f"v_sub_u32 v{T}, {2048-16}, v{T}")
    a.e(f"v_add_u32 v{vSt+1}, v{vRow}, v{T}")
    a.e(f"v_add_u32 v{vRow}, {1024-16}, v{vRow}")
    a.e(f"v_cndmask_b32 v{vRow}, v{vSt+1}, v{vRow}, vcc")
    a.e(f"s_lshl_b32 s{sT0}, s{sTt}, 14")
    a.e(f"v_add_u32 v{T}, s{sT0}, v{vL16}")
    a.e(f"v_add_u32 v{T+1}, 65536, v{T}")
    es = 'es' in Cfg.x
    a.e("s_waitcnt lgkmcnt(0)" if es else "s_waitcnt vmcnt(0) lgkmcnt(0)")
    a.e("s_barrier")
    if not es:
        a.e("s_mov_b32 exec_lo, 1"); a.e("s_mov_b32 exec_hi, 3")
        poll256_check(a, (vFl, sJ + 6), 48, "L_po", slp=8 if "s8" in Cfg.x else 1)
        a.e("s_mov_b64 exec, -1")
        st()
    base = [65536, 98304, 0, 32768]
    a.e(f"s_lshl_b32 s{sT0}, s{sWAVE}, 12")
    a.e(f"s_lshl_b32 s{sT1}, s{sWAVE}, {11 if 'hs' in Cfg.x else 13}")
    a.e(f"s_add_u32 s{sT1}, s{sT1}, {hex(WS_OF)}")
    a.e(f"s_mov_b32 s{sSpin}, 0")
    ds = 'ds' in Cfg.x
    sN, sRd, sOl, sOs = sJ + 7, sJ + 10, sJ + 13, sJ + 12
    def bnd(j):
        vm = list(a.vm)
        if j == 0:
            a.e(f"s_add_u32 s{sOl}, s{sT0}, 65536")
            a.e(f"s_mov_b32 s{sOs}, s{sT1}")
            a.e(f"s_mov_b32 s{sN}, 0")
            a.e(f"s_branch L_bq{j}")
        else:
            a.e(f"s_cmp_eq_u32 s{sN}, 4")
            a.e(f"s_cbranch_scc1 L_be{j}")
        a.e(f"L_bw{j}:")
        a.e("s_waitcnt vmcnt(0)")
        a.e(f"L_bq{j}:")
        for k in range(j + 1 if j else 0, 4):
            a.e(f"v_cmp_ne_u32 vcc, s{sTAG}, v{vPo+k}")
            a.e(f"s_and_b64 vcc, vcc, {sr(sMk,2)}")
            first = k == (j + 1 if j else 0)
            a.e(f"s_cselect_b32 s{sRd if first else sT2}, 0, {1 << k}")
            if not first: a.e(f"s_or_b32 s{sRd}, s{sRd}, s{sT2}")
        a.e(f"L_bt{j}:")
        a.e(f"s_bitcmp1_b32 s{sRd}, s{sN}")
        a.e(f"s_cbranch_scc0 L_bn{j}")
        for rs in range(2):
            a.e(f"s_add_u32 m0, s{sOl}, {rs*2048}")
            for f in range(2):
                a.e(f"buffer_load_dwordx4 v{[vOd0, vOd1][rs]}, {sr(sWS,4)}, s{sOs} offen offset:{f*1024} sc1 lds")
        a.e(f"s_add_u32 s{sOs}, s{sOs}, {16384 if 'hs' in Cfg.x else 2048}")
        a.e(f"s_add_u32 s{sOl}, s{sOl}, 32768")
        a.e(f"s_and_b32 s{sOl}, s{sOl}, 0x1ffff")
        a.e(f"s_add_u32 s{sN}, s{sN}, 1")
        a.e(f"s_branch L_bt{j}")
        a.e(f"L_bn{j}:")
        a.e(f"s_cmp_eq_u32 s{sN}, 4")
        a.e(f"s_cbranch_scc1 L_be{j}")
        opoll()
        a.e(f"s_add_u32 s{sSpin}, s{sSpin}, 1")
        a.e(f"s_cmp_ge_u32 s{sSpin}, 0x40000")
        a.e(f"s_cbranch_scc1 L_be{j}")
        a.e(f"s_cmp_le_u32 s{sN}, {j+1}")
        a.e(f"s_cbranch_scc1 L_bw{j}")
        if j == 0: a.e("s_waitcnt vmcnt(5)")
        a.e(f"L_be{j}:")
        a.vm = vm + ([("O", k) for k in range(4) for _ in range(4)] if j == 0 else [])
        if j == 0: st()
    for j in range(0 if ds else 4):
        if es:
            vm = list(a.vm)
            a.e(f"L_po{j}:")
            a.e(f"v_cmp_ne_u32 vcc, s{sTAG}, v{vPo+j}")
            a.e(f"s_and_b64 vcc, vcc, {sr(sMk,2)}")
            a.e(f"s_cbranch_scc0 L_pk{j}")
            if 'p2' in Cfg.x:
                a.e(f"s_cmp_lg_u32 s{sSpin}, 0")
                a.e(f"s_cbranch_scc1 L_pn{j}")
                a.e(f"s_waitcnt vmcnt({4*j})")
                for i in range(4): a.e(f"v_mov_b32 v{vPo+i}, v{vPo+4+i}")
                a.e(f"s_mov_b32 s{sSpin}, 1")
                a.e(f"s_branch L_po{j}")
                a.e(f"L_pn{j}:")
            for z in (1, 3, 6):
                if f"z{z}" in Cfg.x: a.e(f"s_sleep {z}")
            opoll()
            a.e("s_waitcnt vmcnt(0)")
            a.e(f"s_add_u32 s{sSpin}, s{sSpin}, 1")
            a.e(f"s_cmp_lt_u32 s{sSpin}, 0x40000")
            a.e(f"s_cbranch_scc1 L_po{j}")
            a.e(f"L_pk{j}:")
            a.vm = vm
            if j == 3: st()
        for rs in range(2):
            a.e(f"s_add_u32 m0, s{sT0}, {base[j] + rs*2048}")
            for f in range(2):
                a.e(f"buffer_load_dwordx4 v{[vOd0, vOd1][rs]}, {sr(sWS,4)}, s{sT1} offen offset:{f*1024} sc1 lds", tag=("O", j))
        if j < 3: a.e(f"s_add_u32 s{sT1}, s{sT1}, {16384 if 'hs' in Cfg.x else 2048}")
    D = 3
    w3 = 'w3' in Cfg.x
    def item(n, i):
        j, k = divmod(n, 8)
        return (2 * (k % 4) + i, k // 4) if (w3 and j == 3) else (k, i)
    W = T + 2 if w3 else T
    def waddr():
        tile_waddr(a, W, W + 1)
        a.e(f"s_lshl1_add_u32 s{sT0}, s{sQ}, s{sTt}")
        a.e(f"s_mul_i32 s{sT0}, s{sT0}, {TS}")
        a.e(f"s_add_u32 s{sT0}, s{sT0}, 65536")
        a.e(f"v_add_u32 v{W}, s{sT0}, v{W}")
        a.e(f"s_mul_i32 s{sT0}, s{sTt}, {8*TS}")
        a.e(f"s_add_u32 s{sT0}, s{sT0}, 65536")
        a.e(f"v_add_u32 v{vRa}, s{sT0}, v{vRa}")
    def wr(rs, q): a.e(f"ds_write_b128 v{W}, {vr(vAcc+16*rs+4*q,4)} offset:{rs*8*TS + q*1088}")
    def rd(n):
        j, k = divmod(n, 8)
        if k == 0:
            if ds and j < 3: bnd(j)
            a.wait(vm=("O", j)); a.e("s_barrier")
        for i in range(2):
            kk, rs = item(n, i)
            a.e(f"ds_read_b128 {vr(vFr + (n % 6)*8 + 4*i, 4)}, v{T+1 if j < 2 else T} offset:{(j%2)*32768 + (kk//2)*4096 + rs*2048 + (kk%2)*1024}", tag=("o", n))
    for n in range(D): rd(n)
    for n in range(32):
        j, k = divmod(n, 8)
        a.wait(lg=("o", n))
        for i in range(2):
            kk, rs = item(n, i)
            wf = wfreg(8 * j + kk if 'hs' in Cfg.x else 8 * (kk // 2) + 2 * j + kk % 2)
            acc = vr(vAcc + 16 * rs, 16)
            a.e(f"v_mfma_f32_32x32x16_bf16 {acc}, {vr(wf,4)}, {vr(vFr + (n%6)*8 + 4*i, 4)}, {acc if n else 0}")
            if w3 and n >= 30: wr(0, 2 * (n - 30) + i)
        if w3 and n == 4: waddr()
        if n + D < 32: rd(n + D)
        if n == 2 and 'gs' not in Cfg.x: st()
    if 'gs' not in Cfg.x: st()
    if not w3: waddr()
    for rs in range(1 if w3 else 0, 2):
        for q in range(4): wr(rs, q)
    a.e("s_waitcnt lgkmcnt(0)")
    a.e("s_barrier")
    for t in range(8):
        a.e(f"ds_read_b128 {vr(vFr+4*t,4)}, v{vRa} offset:{t*TS}", tag=("fb", t))
    for c in range(4):
        a.wait(lg=("fb", 2 * c + 1))
        for i in range(4):
            a.e(f"v_add_f32 v{vFr+8*c+i}, v{vFr+8*c+i}, v{vFr+8*c+4+i}")
        for i in range(4):
            a.e(f"v_fma_f32 v{vGY+4*c+i}, v{vFr+8*c+i}, v{vOmg}, v{vGY+4*c+i}")
        if c == 1:
            for i in range(4): a.e(f"v_cvt_pk_bf16_f32 v{32+i}, v{vGY+i}, v{vGY+4+i}")
            a.e(f"buffer_store_dwordx4 {vr(32,4)}, v{vSt}, {sr(sOUT,4)}, 0 offen{FM()}")
    E, Od = vGY + 8, vGY + 12
    for i in range(3): a.e(f"v_cvt_pk_bf16_f32 v{36+i}, v{E+3-i}, v{Od+2-i}")
    a.e(f"v_cvt_pk_bf16_f32 v40, v{Od+3}, v{E}")
    a.e(f"buffer_store_dwordx3 {vr(36,3)}, v{vSt+1}, {sr(sOUT,4)}, 0 offen offset:4{FM()}")
    a.e(f"buffer_store_short v40, v{vSt+1}, {sr(sOUT,4)}, 0 offen offset:2{FM()}")
    a.e(f"buffer_store_short_d16_hi v40, v{vRow}, {sr(sOUT,4)}, 0 offen offset:16{FM()}")


def kernel_a():
    a = Asm(); st = Stamper(a)
    if Cfg.stamps: a.e("s_memrealtime s[96:97]")
    st()
    prologue(a, st)
    phase1(a, st)
    epilogue1(a, st)
    attention(a, st)
    phase3(a, st)
    if Cfg.stamps or "nw" not in Cfg.x:
        a.e("s_waitcnt vmcnt(0) lgkmcnt(0)")
        st()
        st.dump()
        a.e("s_waitcnt vmcnt(0)")
    a.e("L_end:")
    a.e("s_endpgm")
    n0 = st.n
    if "lf" not in Cfg.x:
        st.n = 1; loader(a, st)
    st.n = 1; p0wave(a, st)
    fallback(a)
    a.verify_edges()
    return a

HEADER = open("cdna_kernels/" + NAME + ".s.ref").read().split("; Override launch")[0]

def wrap(kernels):
    out = HEADER
    if len(kernels) == 1:
        l, a, g, b, lds, nv = kernels[0]
        out += f"; @launch grid=({g},1,1) block=({b},1,1) lds={lds}\n"
    else:
        for l, a, g, b, lds, nv in kernels:
            out += f"; @launch kernel={l} grid=({g},1,1) block=({b},1,1) lds={lds}\n"
    out += '.amdgcn_target "amdgcn-amd-amdhsa--gfx950"\n.text\n'
    for l, a, g, b, lds, nv in kernels:
        out += f".globl {l}\n.p2align 8\n.type {l},@function\n{l}:\n" + a.text()
    out += '.section .rodata,"a"\n'
    for l, a, g, b, lds, nv in kernels:
        acc = (nv + 3) // 4 * 4
        out += f""".p2align 6
.amdhsa_kernel {l}
  .amdhsa_next_free_vgpr {nv}
  .amdhsa_next_free_sgpr 102
  .amdhsa_accum_offset {acc}
  .amdhsa_group_segment_fixed_size 0
  .amdhsa_kernarg_size 96
  .amdhsa_user_sgpr_count 2
  .amdhsa_user_sgpr_kernarg_segment_ptr 1
  .amdhsa_system_sgpr_workgroup_id_x 1
.end_amdhsa_kernel
"""
    return out

if __name__ == "__main__":
    outp = sys.argv[1] if len(sys.argv) > 1 else "dev.s"
    Cfg.stamps = "--stamps" in sys.argv
    Cfg.pf = "--nopf" not in sys.argv
    Cfg.x = {t[2:] for t in sys.argv if t.startswith("-x")}
    Cfg.jg = 1 if "jg" in Cfg.x else 0
    a = kernel_a()
    open(outp, "w").write(wrap([(NAME + "_kernel", a, 256, 512, 163840, NVGPR)]))
    print("instrs", len(a.ins), "auto nops", a.nops)
```

```python
import sys, math, struct
from asmlib import Asm, vr, sr

NAME = "gated_mix__spectral_fnet__mha_block__prompt"
MB = 1 << 20
WS_KV = 0
WS_OF = 8 * MB
WS_XF = 12 * MB
XSTR = 0x84000
WS_UV = 15 * MB
UVSTR = 33 * 16384
WS_WF = 18 * MB
WS_SM = 20 * MB
WS_GP = WS_SM
WS_XE = WS_SM + 0x10000
WS_ZC = WS_SM + 0x20000
ZSTR = 0x10000
OOB = 0x40000000
WS_FL = 21 * MB
WS_ST = 22 * MB
WS_CF = 24 * MB
WS_DF = 26 * MB
WS_SIZE = 28 * MB
FL_KV = WS_FL
FL_0 = WS_FL + 0x8000
FL_O = WS_FL + 0x10000
FL_A = WS_FL + 0xC000

def f2u(x): return struct.unpack("<I", struct.pack("<f", x))[0]

class Cfg:
    stamps = False
    pf = True
    wl = 4
    x = set()

def srd(a, d, koff, size):
    a.e(f"s_load_dwordx2 {sr(d,2)}, s[0:1], {koff}")
    a.e(f"s_mov_b32 s{d+2}, {hex(size)}")
    a.e(f"s_mov_b32 s{d+3}, 0x20000")

sX, sW, sWS, sDBG = 8, 12, 16, 20
sWAVE, sR, sH, sTAG = 3, 4, 5, 6
sT0, sT1, sT2, sT3 = 24, 25, 26, 27
sWo = 28
sWl, sXl, sXs = 31, 32, 33
sKVo, sF1o, sOFo = 34, 35, 36
sKVl = 37
sG = 38
sSpin = 39
sKVsrc = 40
sSlot = 41
sC1, sC2 = 42, 43
sGW, sWO, sMS, sMD, sOUT = 44, 48, 52, 56, 60
sRow = 98
sS = 7
sSTAMP = 78
sJ = 64
vLANE, vL16 = 1, 2
vXd = 4
vWd = 8
vWr = 9
vXr = 10
vT = 14
vAQ, vAK, vAV = 32, 48, 64
vXf = 80
vWf = 112
vS = [32, 48]
vO = 64
vM = 80
vQ = 96
vK = 104
vV = 112
vP = 120
vLs = 128
vSel = 132
vKVa = 3
NVGPR = 256

class Stamper:
    def __init__(self, a): self.a = a; self.n = 0
    def __call__(self):
        if not Cfg.stamps or self.n >= 16: return
        self.a.e("s_memrealtime s[94:95]" if "rt" in Cfg.x else "s_memtime s[94:95]")
        self.a.e("s_waitcnt lgkmcnt(0)")
        self.a.e(f"s_mov_b32 s{sSTAMP + self.n}, s94")
        self.n += 1
    def dump(self):
        if not Cfg.stamps: return
        a = self.a
        a.e(f"s_memrealtime {sr(sT0,2)}")
        a.e("s_waitcnt lgkmcnt(0)")
        a.e(f"s_lshl_b32 s{sT2}, s2, 3")
        a.e(f"s_add_u32 s{sT2}, s{sT2}, s{sWAVE}")
        a.e(f"s_lshl_b32 s{sT2}, s{sT2}, 7")
        a.e(f"s_add_u32 s{sT2}, s{sT2}, {hex(WS_ST)}")
        a.e(f"v_mov_b32 v{vT+1}, 0")
        for i in range(self.n):
            a.e(f"v_mov_b32 v{vT}, s{sSTAMP+i}")
            a.e(f"buffer_store_dword v{vT}, v{vT+1}, {sr(sWS,4)}, s{sT2} offen offset:{4*i}")
        a.e(f"v_mov_b32 v{vT}, s{sT0}")
        a.e(f"buffer_store_dword v{vT}, v{vT+1}, {sr(sWS,4)}, s{sT2} offen offset:{4*31}")
        a.e(f"v_mov_b32 v{vT}, s96")
        a.e(f"buffer_store_dword v{vT}, v{vT+1}, {sr(sWS,4)}, s{sT2} offen offset:{4*30}")


sPh, sOff, sXb, sLl, sWb, sK = 54, 55, 28, 29, 30, 31
sArr, sCb, sQ, sTt, sTrow = sJ, sJ + 1, sJ + 2, sJ + 3, sJ + 5
vLz = 21
LD_TAG = 61440
def prologue(a, st):
    a.e("s_cmp_ge_u32 s2, 256")
    a.e("s_cbranch_scc1 L_end")
    srd(a, sX, 0, 4 * MB)
    srd(a, sW, 48, 6 * MB)
    srd(a, sWS, 88, WS_SIZE)
    srd(a, sDBG, 80, 256)
    srd(a, sGW, 64, 2048)
    srd(a, sWO, 56, 2 * MB)
    srd(a, sOUT, 72, 4 * MB)
    a.e(f"v_and_b32 v{vLANE}, 63, v0")
    a.e(f"v_lshrrev_b32 v{vT}, 6, v0")
    a.e(f"v_lshlrev_b32 v{vL16}, 4, v{vLANE}")
    a.e(f"v_readfirstlane_b32 s{sWAVE}, v{vT}")
    a.e(f"s_bfe_u32 s{sT1}, s2, 0x20003")
    a.e(f"s_xor_b32 s{sT0}, s2, s{sT1}")
    a.e(f"s_and_b32 s{sT0}, s{sT0}, 1")
    a.e(f"s_lshl1_add_u32 s{sR}, s{sT1}, s{sT0}")
    a.e(f"s_bfe_u32 s{sT0}, s2, 0x20001")
    a.e(f"s_lshr_b32 s{sT1}, s2, 5")
    if "hx" in Cfg.x: a.e(f"s_xor_b32 s{sT1}, s{sT1}, 7")
    a.e(f"s_lshl3_add_u32 s{sH}, s{sT0}, s{sT1}")
    a.e(f"s_lshr_b32 s{sT0}, s{sWAVE}, 1")
    a.e(f"s_cmp_eq_u32 s{sT0}, 2")
    if "lf" in Cfg.x:
        a.e("s_cbranch_scc0 L_notload")
        vm, lg, n0 = list(a.vm), list(a.lg), st.n
        loader(a, st)
        a.vm, a.lg, st.n = vm, lg, n0
        a.e("L_notload:")
    else:
        a.e("s_cbranch_scc1 L_load")
    common(a)
    a.e(f"s_cmp_ge_u32 s{sWAVE}, 6")
    a.e("s_cbranch_scc1 L_p0")
def common(a):
    a.e(f"s_mul_i32 s{sXl}, s{sWAVE}, 12288")
    a.e(f"s_add_u32 s{sXl}, s{sXl}, 65536")
    a.e(f"s_lshr_b32 s{sArr}, s{sH}, 3")
    a.e(f"s_and_b32 s{sCb}, s{sH}, 7")
    a.e(f"s_and_b32 s{sQ}, s{sWAVE}, 3")
    a.e(f"s_lshr_b32 s{sTt}, s{sWAVE}, 2")
    a.e(f"s_lshl1_add_u32 s{sT0}, s{sR}, s{sTt}")
    a.e(f"s_lshl_b32 s{sT0}, s{sT0}, 6")
    a.e(f"s_and_b32 s{sT1}, s{sArr}, 1")
    a.e(f"s_add_u32 s{sTrow}, s{sT0}, s{sT1}")
    a.e(f"v_mov_b32 v{vT}, {hex(OOB)}")
    a.e(f"v_cmp_eq_u32 vcc, 63, v{vLANE}")
    a.e(f"v_cndmask_b32_e64 v{vLz}, v{vT}, 0, vcc")

vWd3 = 8
def issue_x(a, i):
    a.e(f"s_add_u32 s{sK}, s{sOff}, {i}")
    a.e(f"s_and_b32 s{sK}, s{sK}, 15")
    a.e(f"s_lshl_b32 s{sK}, s{sK}, 7")
    a.e(f"s_add_u32 s{sK}, s{sK}, s{sXb}")
    for t in range(4):
        a.e(f"s_add_u32 m0, s{sLl}, {t*12288 + (i % 3)*4096}")
        if t: a.e(f"s_add_u32 s{sK}, s{sK}, 65536")
        for q in range(4):
            a.e(f"buffer_load_dwordx4 v{vXd+q}, {sr(sX,4)}, s{sK} offen offset:{q*1024} lds", tag=("X", i))
def issue_w(a, i):
    a.e(f"s_add_u32 s{sK}, s{sOff}, {i}")
    a.e(f"s_and_b32 s{sK}, s{sK}, 15")
    a.e(f"s_mul_i32 s{sK}, s{sK}, {64*6144}")
    a.e(f"s_add_u32 s{sK}, s{sK}, s{sWb}")
    for j in range(2):
        a.e(f"s_add_u32 m0, s{sXs}, {(i % 5)*12288 + j*3072}")
        if j: a.e(f"s_add_u32 s{sK}, s{sK}, {16*6144}")
        for m in range(3):
            a.e(f"buffer_load_dwordx4 v{vWd3+m}, {sr(sW,4)}, s{sK} offen offset:{m*1024} lds", tag=("W", i))
def loader_start(a):
    if "o1" in Cfg.x:
        a.e(f"s_and_b32 s{sOff}, s2, 7"); a.e(f"s_lshl_b32 s{sOff}, s{sOff}, 1")
    elif "o8" in Cfg.x:
        a.e(f"s_andn2_b32 s{sOff}, s{sR}, 1"); a.e(f"s_add_u32 s{sOff}, s{sOff}, s{sH}"); a.e(f"s_and_b32 s{sOff}, s{sOff}, 7")
        a.e(f"s_bfe_u32 s{sT0}, s2, 0x10001"); a.e(f"s_lshl1_add_u32 s{sOff}, s{sOff}, s{sT0}")
    elif "o5" in Cfg.x:
        a.e(f"s_and_b32 s{sOff}, s{sH}, 3"); a.e(f"s_lshl_b32 s{sOff}, s{sOff}, 2")
        a.e(f"s_bfe_u32 s{sT0}, s2, 0x20001"); a.e(f"s_add_u32 s{sOff}, s{sOff}, s{sT0}")
    elif "o6" in Cfg.x:
        a.e(f"s_lshr_b32 s{sOff}, s{sR}, 1"); a.e(f"s_add_u32 s{sOff}, s{sOff}, s{sH}"); a.e(f"s_and_b32 s{sOff}, s{sOff}, 3")
        a.e(f"s_lshl_b32 s{sOff}, s{sOff}, 2")
        a.e(f"s_bfe_u32 s{sT0}, s2, 0x20001"); a.e(f"s_add_u32 s{sOff}, s{sOff}, s{sT0}")
    elif "o7" in Cfg.x:
        a.e(f"s_add_u32 s{sOff}, s{sR}, s{sH}"); a.e(f"s_and_b32 s{sOff}, s{sOff}, 2"); a.e(f"s_and_b32 s{sT0}, s{sH}, 1")
        a.e(f"s_add_u32 s{sOff}, s{sOff}, s{sT0}"); a.e(f"s_lshl_b32 s{sOff}, s{sOff}, 2")
        a.e(f"s_lshr_b32 s{sT0}, s2, 1"); a.e(f"s_lshl1_add_u32 s{sT0}, s2, s{sT0}"); a.e(f"s_and_b32 s{sT0}, s{sT0}, 3")
        a.e(f"s_add_u32 s{sOff}, s{sOff}, s{sT0}")
    elif "oA" in Cfg.x or "oB" in Cfg.x:
        a.e(f"s_add_u32 s{sOff}, s{sR}, s{sH}"); a.e(f"s_and_b32 s{sOff}, s{sOff}, 2"); a.e(f"s_and_b32 s{sT0}, s{sH}, 1")
        a.e(f"s_add_u32 s{sOff}, s{sOff}, s{sT0}"); a.e(f"s_lshl_b32 s{sOff}, s{sOff}, 2")
        if "oB" in Cfg.x:
            a.e(f"s_and_b32 s{sT0}, s2, 2"); a.e(f"s_add_u32 s{sOff}, s{sOff}, s{sT0}")
    elif "o0" in Cfg.x:
        a.e(f"s_mov_b32 s{sOff}, 0")
    elif "o4" in Cfg.x:
        a.e(f"s_add_u32 s{sOff}, s{sR}, s{sH}"); a.e(f"s_and_b32 s{sOff}, s{sOff}, 2"); a.e(f"s_and_b32 s{sT0}, s{sH}, 1")
        a.e(f"s_add_u32 s{sOff}, s{sOff}, s{sT0}"); a.e(f"s_lshl_b32 s{sOff}, s{sOff}, 2")
        a.e(f"s_bfe_u32 s{sT0}, s2, 0x20001"); a.e(f"s_add_u32 s{sOff}, s{sOff}, s{sT0}")
    else:
        a.e(f"s_and_b32 s{sOff}, s{sH}, 1"); a.e(f"s_lshl_b32 s{sOff}, s{sOff}, 3")
        a.e(f"s_and_b32 s{sT0}, s2, 7"); a.e(f"s_add_u32 s{sOff}, s{sOff}, s{sT0}")
    a.e(f"s_and_b32 s{sT2}, s{sWAVE}, 1")
    a.e(f"s_lshl1_add_u32 s{sT0}, s{sR}, s{sT2}")
    a.e(f"s_lshl_b32 s{sXb}, s{sT0}, 18")
    a.e(f"s_mul_i32 s{sLl}, s{sT2}, {4*12288}")
    a.e(f"s_add_u32 s{sLl}, s{sLl}, 65536")
    a.e(f"s_mul_i32 s{sWb}, s{sT2}, {32*6144}")
    a.e(f"s_lshl_b32 s{sT0}, s{sH}, 6")
    a.e(f"s_add_u32 s{sWb}, s{sWb}, s{sT0}")
    a.e(f"s_mul_i32 s{sXs}, s{sT2}, 6144")
    a.e(f"v_lshrrev_b32 v{vT}, 3, v{vLANE}")
    a.e(f"v_lshlrev_b32 v{vT}, 11, v{vT}")
    a.e(f"v_and_b32 v{vT+1}, 7, v{vLANE}")
    a.e(f"v_lshrrev_b32 v{vT+2}, 4, v{vLANE}")
    a.e(f"v_xor_b32 v{vT+1}, v{vT+1}, v{vT+2}")
    a.e(f"v_lshlrev_b32 v{vT+1}, 4, v{vT+1}")
    a.e(f"v_add_u32 v{vXd}, v{vT}, v{vT+1}")
    a.e(f"v_xor_b32 v{vT+1}, 64, v{vT+1}")
    a.e(f"v_add_u32 v{vT}, v{vT}, v{vT+1}")
    a.e(f"v_add_u32 v{vXd+1}, {16384-1024}, v{vT}")
    a.e(f"v_add_u32 v{vXd+2}, {2*(16384-1024)}, v{vXd}")
    a.e(f"v_add_u32 v{vXd+3}, {3*(16384-1024)}, v{vT}")
    a.e(f"v_lshrrev_b32 v{vT}, 2, v{vLANE}")
    a.e(f"v_mul_u32_u24 v{vT}, 6144, v{vT}")
    a.e(f"v_and_b32 v{vT+1}, 3, v{vLANE}")
    a.e(f"v_lshl_add_u32 v{vWd3}, v{vT+1}, 4, v{vT}")
    a.e(f"v_add_u32 v{vWd3+1}, 1024, v{vWd3}")
    a.e(f"v_add_u32 v{vWd3+2}, 2048, v{vWd3}")
    a.e("s_waitcnt lgkmcnt(0)")
    issue_w(a, 0); issue_x(a, 0); issue_w(a, 1); issue_x(a, 1)

def c_stream():
    return [f"s_lshl_b32 s{sJ+7}, s{sQ}, 7", f"s_lshr_b32 s{sJ+8}, s{sArr}, 1"] + \
        cos_stream(vJC, 8, sTrow, sJ + 7, sJ + 8, 1.0 / 2048, 24, nine=True)

def loader(a, st):
    a.e("L_load:")
    a.vm = []; a.lg = []
    loader_start(a)
    common(a)
    side = c_stream()
    nw = 2
    for i in range(16):
        a.wait(vm=[("X", i), ("W", i)])
        a.e("s_barrier")
        if i in ((0,) if 'gs' in Cfg.x else (0, 4, 8, 12)): st()
        if i + 2 < 16: issue_x(a, i + 2)
        k = 0
        while nw < 16 and nw <= i + Cfg.wl and k < 2:
            issue_w(a, nw); nw += 1; k += 1
        if i >= 13:
            for _ in range(70 if i < 15 else 1000):
                if side: a.e(side.pop(0))
    st()
    a.e("s_branch L_epi")

vX0 = 32
vG = 96
vF = 112
vGp = 128
vU = 174
vPa, vPb, vMk, vL0 = range(192, 196)
vWa = 202
vWG = 208
vCd = 112

def cos_stream(dst, nfr, srow, scol, smat, inv, T, nine=False):
    q = []
    A, tf, t9, t0 = T, T + 1, T + 2, T + 3
    q.append(f"s_cmp_lg_u32 s{smat}, 0")
    q.append(f"s_cselect_b32 s{sPh}, 0x3e800000, 0")
    q.append(f"v_and_b32 v{tf}, 31, v{vLANE}")
    q.append(f"v_lshl_add_u32 v{tf}, v{tf}, 1, s{srow}")
    q.append(f"v_cvt_f32_u32 v{tf}, v{tf}")
    q.append(f"v_mul_f32 v{tf}, {hex(f2u(inv))}, v{tf}")
    q.append(f"v_lshrrev_b32 v{t0}, 5, v{vLANE}")
    q.append(f"v_lshl_add_u32 v{t0}, v{t0}, 3, s{scol}")
    q.append(f"v_cvt_f32_u32 v{t0}, v{t0}")
    q.append(f"v_fma_f32 v{A}, v{tf}, v{t0}, s{sPh}")
    q.append(f"v_fract_f32 v{A}, v{A}")
    q.append(f"v_mul_f32 v{t9}, {hex(f2u(9.0))}, v{tf}")
    if nine:
        q.append(f"v_mul_f32 v{t0}, {hex(f2u(512.0))}, v{tf}")
        q.append(f"v_add_f32 v{t0}, s{sPh}, v{t0}")
        q.append(f"v_fract_f32 v{t0}, v{t0}")
        q.append(f"v_cos_f32 v{t0}, v{t0}")
        for i in range(1, 4): q.append(f"v_mov_b32 v{dst+4*nfr+i}, 0")
        q.append(f"v_cvt_pk_bf16_f32 v{dst+4*nfr}, v{t0}, v{t0}")
    for k in range(4 * nfr):
        t = t0 + 2 * (k % 2)
        q.append(f"v_cos_f32 v{t}, v{A}")
        q.append(f"v_add_f32 v{A}, v{A}, v{tf}")
        q.append(f"v_cos_f32 v{t+1}, v{A}")
        q.append(f"v_add_f32 v{A}, v{A}, v{t9 if k % 4 == 3 else tf}")
        q.append(f"v_cvt_pk_bf16_f32 v{dst+k}, v{t}, v{t+1}")
    return q

def p0_setup(a):
    a.e(f"s_and_b32 s{sT0}, s2, 1")
    a.e(f"s_lshl_b32 s{sT0}, s{sT0}, 8")
    a.e(f"s_bfe_u32 s{sT1}, s2, 0x20001")
    a.e(f"s_lshl_b32 s{sT1}, s{sT1}, 6")
    a.e(f"s_add_u32 s{sT0}, s{sT0}, s{sT1}")
    a.e(f"s_lshr_b32 s{sT1}, s2, 3")
    a.e(f"s_lshl1_add_u32 s{sT0}, s{sT1}, s{sT0}")
    a.e(f"s_and_b32 s{sT3}, s{sWAVE}, 1")
    a.e(f"s_add_u32 s{sS}, s{sT0}, s{sT3}")
    a.e(f"s_lshl_b32 s{sRow}, s{sS}, 11")
    a.e(f"s_sub_u32 s{sRow+1}, {hex(2048*2048)}, s{sRow}")
    a.e(f"s_sub_u32 s{sRow+2}, {hex(1024*2048)}, s{sRow}")
    a.e(f"s_add_u32 s{sRow+3}, {hex(1024*2048)}, s{sRow}")
    a.e(f"s_cmp_eq_u32 s{sS}, 0")
    a.e(f"s_cselect_b32 s{sRow+1}, {hex(512*2048)}, s{sRow+1}")
    a.e(f"s_cselect_b32 s{sRow+2}, {hex(1536*2048)}, s{sRow+2}")
    a.e(f"s_cselect_b32 s{sC1}, 0, 1.0")
    a.e(f"v_lshlrev_b32 v{vPa}, 3, v{vLANE}")
    a.e(f"v_sub_u32 v{vPb}, {1024-8}, v{vPa}")
    a.e("s_waitcnt lgkmcnt(0)")
    p0_loads(a)
    a.e(f"v_cmp_eq_u32 vcc, 0, v{vLANE}")
    a.e(f"v_cndmask_b32_e64 v{vMk}, 1.0, 0, vcc")
    a.e(f"v_mov_b32 v{vU+1}, {hex(OOB)}")
    a.e(f"v_cndmask_b32_e64 v{vL0}, v{vU+1}, 0, vcc")
    a.e(f"s_mov_b32 s{sC2}, 0x3f803f80")
    a.e(f"s_and_b32 s{sT0}, s2, 7")
    a.e(f"s_lshr_b32 s{sT1}, s2, 7")
    a.e(f"s_bfe_u32 s{sT2}, s2, 0x40003")
    a.e(f"s_lshl_b32 s{sJ+7}, s{sT0}, 6")
    a.e(f"s_add_u32 s{sJ+7}, s{sJ+7}, s{sT1}")
    a.e(f"s_lshl_b32 s{sJ+8}, s{sT2}, 4")
    a.e(f"s_lshl1_add_u32 s{sT1}, s{sT3}, s{sT1}")
    a.e(f"s_lshl3_add_u32 s{sT1}, s{sT1}, s{sT0}")
    a.e(f"s_lshl4_add_u32 s{sT1}, s{sT1}, s{sT2}")
    a.e(f"s_lshl_b32 s{sT1}, s{sT1}, 10")
    a.e(f"s_add_u32 s{sJ+9}, s{sT1}, {hex(WS_DF)}")
    a.e(f"s_mov_b32 s{sJ+10}, s{sT3}")
    a.e(f"s_lshl_b32 s{sT1}, s{sT0}, 6")
    a.e(f"v_and_b32 v{vU}, 31, v{vLANE}")
    a.e(f"v_lshl_add_u32 v{vU}, v{vU}, 1, s{sT1}")
    a.e(f"v_sub_u32 v{vU+1}, 1024, v{vU}")
    a.e(f"v_cmp_eq_u32 vcc, 0, v{vU}")
    a.e(f"v_mov_b32 v{vU+2}, 512")
    a.e(f"v_cndmask_b32 v{vU+2}, v{vU+1}, v{vU+2}, vcc")
    a.e(f"v_lshrrev_b32 v{vU+3}, 5, v{vLANE}")
    a.e(f"v_lshlrev_b32 v{vU+3}, 13, v{vU+3}")
    a.e(f"v_lshl_add_u32 v{vWa}, v{vU}, 1, v{vU+3}")
    a.e(f"v_lshl_add_u32 v{vWa+2}, v{vU+2}, 1, v{vU+3}")
    a.e(f"v_lshl_add_u32 v{vWa+3}, v{vU+1}, 1, v{vU+3}")
    a.e(f"v_add_u32 v{vWa+3}, -2, v{vWa+3}")
    a.e(f"s_lshr_b32 s{sT1}, s2, 3")
    a.e(f"s_lshl1_add_u32 s{sT1}, s{sT1}, s{sT3}")
    a.e(f"s_lshl_b32 s{sT0}, s{sT0}, 8")
    a.e(f"s_add_u32 s{sT0}, s{sT0}, s{sT1}")
    a.e(f"s_lshl_b32 s{sT0}, s{sT0}, 10")
    a.e(f"s_add_u32 s{sJ+4}, s{sT0}, {hex(WS_WF)}")
    a.e(f"s_lshl_b32 s{sJ+6}, s{sT1}, 15")

def xr(row, slot, i): return vX0 + 16 * row + 4 * slot + (i if slot in (0, 3) else (4 - i) % 4)
def p0_loads(a):
    addr = [(vPa, 0), (vPb, 1024), (vPb, 0), (vPa, 1024)]
    for k in range(4):
        a.e(f"buffer_load_dwordx2 {vr(vG+4*k,2)}, v{addr[k][0]}, {sr(sGW,4)}, 0 offen offset:{addr[k][1]}", tag=("p0", 4))
    for r in range(4):
        for k in range(4):
            a.e(f"buffer_load_dwordx2 {vr(vX0+16*r+4*k,2)}, v{addr[k][0]}, {sr(sX,4)}, s{sRow+r} offen offset:{addr[k][1]}", tag=("p0", r))
def wf_loads(a, ct, ps=range(4)):
    op = "dword" if ct == 0 else "ushort"
    for p in ps:
        row = (0, 2, 8, 10)[p]
        a.e(f"s_add_u32 s{sT2}, s{sJ+6}, {row*2048}")
        a.e(f"buffer_load_{op} v{vWG+8*ct+p}, v{vWa+ct}, {sr(sWO,4)}, s{sT2} offen", tag=("wg", ct))
        a.e(f"buffer_load_{op} v{vWG+8*ct+4+p}, v{vWa+ct}, {sr(sWO,4)}, s{sT2} offen offset:2048", tag=("wg", ct))
def wf_store(a, ct):
    if ct < 2:
        a.e(f"s_mov_b32 s{sT1}, {['0x05040100', '0x07060302'][ct]}")
        D = vWG + 8 + 4 * ct
        for p in range(4): a.e(f"v_perm_b32 v{D+p}, v{vWG+4+p}, v{vWG+p}, s{sT1}")
    else:
        D = vWG + 8 * ct
        for p in range(4): a.e(f"v_lshl_or_b32 v{D+p}, v{D+4+p}, 16, v{D+p}")
    a.e(f"s_add_u32 s{sT2}, s{sJ+4}, {ct*65536}")
    a.e(f"buffer_store_dwordx4 {vr(D,4)}, v{vL16}, {sr(sWS,4)}, s{sT2} offen sc1")

def wf_stores(a):
    vm = list(a.vm)
    a.e(f"s_cmp_lt_u32 s{sWAVE}, 6")
    a.e("s_cbranch_scc1 L_nowf")
    for ct in range(4): wf_store(a, ct)
    a.e("L_nowf:")
    a.vm = vm

DPP = ["row_shr:1 row_mask:0xf bank_mask:0xf", "row_shr:2 row_mask:0xf bank_mask:0xf", "row_shr:4 row_mask:0xf bank_mask:0xf",
       "row_shr:8 row_mask:0xf bank_mask:0xf", "row_bcast:15 row_mask:0xa bank_mask:0xf", "row_bcast:31 row_mask:0xc bank_mask:0xf"]

vR = 240
def p0_dfold(a, i):
    H = vU + 8
    for ar in range(4):
        f = vF + 4 * ar
        if i == 0:
            ng = "" if ar < 2 else "-"
            a.e(f"v_fma_f32 v{vU}, v{f+1}, {ng}v{vMk}, v{f}")
            a.e(f"v_fma_f32 v{vU+1}, v{f+2}, {ng}v{vMk}, v{f+3}")
            a.e(f"v_{'add' if ar < 2 else 'sub'}_f32 v{vU+4+ar}, v{f+2}, v{f+1}")
        else:
            op = "add" if ar < 2 else "sub"
            a.e(f"v_{op}_f32 v{vU}, v{f}, v{f+1}")
            a.e(f"v_{op}_f32 v{vU+1}, v{f+3}, v{f+2}")
        E = H + 2 * ar if i % 2 == 0 else vU + 2
        a.e(f"v_add_f32 v{E}, v{vU}, v{vU+1}")
        a.e(f"v_sub_f32 v{E+1}, v{vU}, v{vU+1}")
        if ar < 2:
            if i == 0: a.e(f"v_mov_b32 v{vGp+4+ar}, v{E}")
            else:      a.e(f"v_{'sub' if i % 2 else 'add'}_f32 v{vGp+4+ar}, v{vGp+4+ar}, v{E}")
        if i % 2:
            a.e(f"v_cvt_pk_bf16_f32 v{vR+4*ar+i//2}, v{H+2*ar}, v{E}")
            a.e(f"v_cvt_pk_bf16_f32 v{vR+4*ar+2+i//2}, v{H+2*ar+1}, v{E+1}")
        if i == 3:
            if ar == 0: a.e(f"s_lshl_b32 s{sT0}, s{sS}, 10")
            a.e(f"s_add_u32 s{sT1}, s{sT0}, {hex(WS_XF + ar*XSTR)}")
            a.e(f"buffer_store_dwordx4 {vr(vR+4*ar,4)}, v{vL16}, {sr(sWS,4)}, s{sT1} offen sc1")
    if i == 0:
        a.e(f"v_cvt_pk_bf16_f32 v{vU+16}, v{vU+4}, v{vU+5}")
        a.e(f"v_cvt_pk_bf16_f32 v{vU+17}, v{vU+6}, v{vU+7}")
        a.e(f"s_lshl_b32 s{sT0}, s{sS}, 1")
        for ar in range(4):
            a.e(f"s_add_u32 s{sT1}, s{sT0}, {hex(WS_XE + ar*16384)}")
            a.e(f"buffer_store_short{'_d16_hi' if ar % 2 else ''} v{vU+16+ar//2}, v{vL0}, {sr(sWS,4)}, s{sT1} offen sc1")
def p0_reduce(a, red):
    for d in DPP:
        for r in red: a.e(f"v_add_f32_dpp v{r}, v{r}, v{r} {d}")
    a.e(f"v_cvt_pk_bf16_f32 v{vGp+4}, v{vGp+4}, v{vGp+5}")
    a.e(f"s_lshl_b32 s{sT0}, s{sS}, 1")
    for ar in range(2):
        a.e(f"s_add_u32 s{sT2}, s{sT0}, {hex(WS_XE + ar*16384 + 4*2048)}")
        a.e(f"buffer_store_short{'_d16_hi' if ar % 2 else ''} v{vGp+4}, v{vLz}, {sr(sWS,4)}, s{sT2} offen sc1")

def unpack4(a, b):
    a.e(f"v_and_b32 v{b+3}, 0xffff0000, v{b+1}")
    a.e(f"v_lshlrev_b32 v{b+2}, 16, v{b+1}")
    a.e(f"v_and_b32 v{b+1}, 0xffff0000, v{b}")
    a.e(f"v_lshlrev_b32 v{b}, 16, v{b}")
vOne, vGa = 196, 224
def p0_row(a, r):
    a.wait(vm=[("p0", 4), ("p0", r)])
    if r == 0:
        for k in range(4): unpack4(a, vG + 4 * k)
        for i in range(4): a.e(f"v_mov_b32 v{vOne+i}, s{sC2}")
    for k in range(4):
        x = vX0 + 16 * r + 4 * k
        unpack4(a, x)
        for i in range(4): a.e(f"v_mul_f32 v{vU+i}, v{x+i}, v{vG+4*k+i}")
        P = vU + 6 + 4 * (k // 2)
        a.e(f"v_cvt_pk_bf16_f32 v{P+2*(k%2)}, v{vU}, v{vU+1}")
        a.e(f"v_cvt_pk_bf16_f32 v{P+2*(k%2)+1}, v{vU+2}, v{vU+3}")
        if k in (1, 2): a.e(f"v_mov_b32_dpp v{x}, v{x} wave_ror:1 row_mask:0xf bank_mask:0xf")
        if k % 2: a.e(f"v_mfma_f32_16x16x32_bf16 {vr(vR+4*r,4)}, {vr(vOne,4)}, {vr(P,4)}, {vr(vR+4*r,4) if k == 3 else 0}")
    if r == 3:
        for d in DPP[:4]:
            for q in range(4): a.e(f"v_add_f32_dpp v{vR+4*q}, v{vR+4*q}, v{vR+4*q} {d}")
        for q in range(4):
            a.e(f"s_lshr_b32 s{sT2}, s{sRow+q}, 9")
            a.e(f"s_add_u32 s{sT2}, s{sT2}, {hex(WS_GP)}")
            a.e(f"buffer_store_dword v{vR+4*q}, v{vLz}, {sr(sWS,4)}, s{sT2} offen sc1")
def p0_quarter(a, i):
    for k in range(4):
        A, B, C, D = [xr(r, k, i) for r in range(4)]
        a.e(f"v_fma_f32 v{vU}, v{B}, s{sC1}, v{A}")
        a.e(f"v_fma_f32 v{vU+1}, v{C}, s{sC1}, v{D}")
        a.e(f"v_fma_f32 v{vU+2}, v{B}, -s{sC1}, v{A}")
        a.e(f"v_fma_f32 v{vU+3}, v{C}, -s{sC1}, v{D}")
        a.e(f"v_add_f32 v{vF+k}, v{vU}, v{vU+1}")
        a.e(f"v_sub_f32 v{vF+4+k}, v{vU}, v{vU+1}")
        a.e(f"v_add_f32 v{vF+8+k}, v{vU+2}, v{vU+3}")
        a.e(f"v_sub_f32 v{vF+12+k}, v{vU+2}, v{vU+3}")
    p0_dfold(a, i)
def p0_finish(a):
    p0_reduce(a, [vGp + 4, vGp + 5])

def p0_special(a, half):
    vm = list(a.vm)
    a.e(f"s_and_b32 s{sT0}, s{sS}, 511")
    a.e(f"s_cbranch_scc1 L_p0done{half}")
    a.e(f"s_mov_b32 s{sS}, 512")
    for i in (2 * half, 2 * half + 1):
        for k in range(4):
            B, C = xr(1, k, i), xr(2, k, i)
            a.e(f"v_add_f32 v{vF+k}, v{B}, v{C}")
            a.e(f"v_add_f32 v{vF+4+k}, v{B}, v{C}")
            a.e(f"v_sub_f32 v{vF+8+k}, v{B}, v{C}")
            a.e(f"v_sub_f32 v{vF+12+k}, v{B}, v{C}")
        p0_dfold(a, i)
    if half: p0_reduce(a, [vGp + 4, vGp + 5])
    a.e(f"L_p0done{half}:")
    a.vm = vm

def flag_wg(a, off, lbl, wave=0):
    vm = list(a.vm)
    a.e(f"s_cmp_lg_u32 s{sWAVE}, {wave}")
    a.e(f"s_cbranch_scc1 {lbl}")
    a.e(f"s_and_b32 s{sT0}, s2, 7")
    a.e(f"s_lshl_b32 s{sT0}, s{sT0}, 7")
    a.e(f"s_lshr_b32 s{sT1}, s2, 3")
    a.e(f"s_lshl2_add_u32 s{sT0}, s{sT1}, s{sT0}")
    a.e(f"s_add_u32 s{sT0}, s{sT0}, {hex(off)}")
    a.e(f"v_mov_b32 v{vT+4}, s{sTAG}")
    a.e(f"buffer_store_dword v{vT+4}, v{vLz}, {sr(sWS,4)}, s{sT0} offen sc1")
    a.e(f"{lbl}:")
    a.vm = vm

def p0wave(a, st):
    a.e("L_p0:")
    a.vm = []; a.lg = []
    p0_setup(a)
    a.e(f"s_cmp_lg_u32 s{sS}, 0")
    a.e("s_cbranch_scc1 L_notag")
    a.e(f"s_memrealtime {sr(sT0,2)}")
    a.e("s_waitcnt lgkmcnt(0)")
    a.e(f"s_or_b32 s{sT0}, s{sT0}, 1")
    a.e(f"v_mov_b32 v{vT}, s{sT0}")
    a.e(f"v_mov_b32 v{vT+1}, 0")
    a.e(f"buffer_store_dword v{vT}, v{vT+1}, {sr(sDBG,4)}, 0 offen sc1")
    a.vm.pop()
    a.e("L_notag:")
    def dfrag():
        for t in cos_stream(vCd, 1, sJ + 7, sJ + 8, sJ + 10, 1.0 / 1024, 24): a.e(t)
        a.e(f"buffer_store_dwordx4 {vr(vCd,4)}, v{vL16}, {sr(sWS,4)}, s{sJ+9} offen sc1")
    def tag_issue():
        a.e(f"v_mov_b32 v{vT+1}, 0")
        a.e(f"buffer_load_dword v{vT}, v{vT+1}, {sr(sDBG,4)}, 0 offen sc1", tag="tag")
    def tag_lds():
        a.e(f"v_mov_b32 v{vT}, s{sTAG}")
        a.e(f"v_and_b32 v{vT+1}, 7, v{vLANE}")
        a.e(f"v_mul_u32_u24 v{vT+1}, 12288, v{vT+1}")
        a.e(f"v_add_u32 v{vT+1}, 65536, v{vT+1}")
        a.e(f"ds_write_b32 v{vT+1}, v{vT} offset:6144")
    side = c_stream()
    def cs(n):
        for _ in range(n):
            if side: a.e(side.pop(0))
    L = lambda f, *x: (lambda: f(a, *x))
    seg = {-1: [dfrag, lambda: cs(1000)],
           0: [tag_issue, L(p0_row, 0)], 1: [L(p0_row, 1), L(p0_row, 2)],
           2: [L(p0_row, 3), L(p0_quarter, 0)], 3: [L(p0_quarter, 1), L(p0_quarter, 2)], 4: [L(p0_quarter, 3), L(p0_finish)],
           5: [L(p0_special, 0), L(get_tag)], 6: [L(p0_special, 1), lambda: a.e("s_waitcnt vmcnt(0)")],
           7: [L(flag_wg, FL_0, "L_f0", 6)], 14: [tag_lds, L(wf_loads, 0), L(wf_loads, 2)], 15: [L(wf_loads, 3)]}
    for i in range(-1, 16):
        if i >= 0: a.e("s_barrier")
        if i in ((0,) if 'gs' in Cfg.x else (0, 4, 8, 12)): st()
        for f in seg.get(i, []): f()
    assert not side
    st()
    a.e("s_branch L_epi")

vA2, vXf2 = 172, 220
def phase1(a, st):
    a.vm = []; a.lg = []
    a.e(f"v_lshrrev_b32 v{vT}, 5, v{vLANE}")
    a.e(f"v_lshlrev_b32 v{vT}, 9, v{vT}")
    a.e(f"v_bfe_u32 v{vT+1}, v{vLANE}, 2, 2")
    a.e(f"v_lshl_add_u32 v{vT}, v{vT+1}, 6, v{vT}")
    a.e(f"v_bfe_u32 v{vT+1}, v{vLANE}, 4, 1")
    a.e(f"v_lshl_add_u32 v{vT}, v{vT+1}, 5, v{vT}")
    a.e(f"v_and_b32 v{vT+1}, 3, v{vLANE}")
    a.e(f"v_lshl_add_u32 v{vWr}, v{vT+1}, 3, v{vT}")
    a.e(f"v_and_b32 v{vT}, 31, v{vLANE}")
    a.e(f"v_bfe_u32 v{vT+1}, v{vLANE}, 1, 3")
    a.e(f"v_lshrrev_b32 v{vT+2}, 5, v{vLANE}")
    a.e(f"v_xor_b32 v{vT+1}, v{vT+1}, v{vT+2}")
    a.e(f"v_lshlrev_b32 v{vT+1}, 4, v{vT+1}")
    a.e(f"v_lshl_add_u32 v{vT}, v{vT}, 7, v{vT+1}")
    for s in range(4):
        a.e(f"v_xor_b32 v{vT+1}, {32*s}, v{vT}")
        a.e(f"v_add_u32 v{vXr+s}, s{sXl}, v{vT+1}")
    for t in c_stream(): a.e(t)
    a.e("s_waitcnt lgkmcnt(0)")
    def rd_w(n, m):
        i, s = divmod(n, 4)
        for t in range(2):
            a.e(f"ds_read_b64_tr_b16 {vr(vWf + (n % 2) * 12 + 4 * m + 2 * t, 2)}, v{vWr} offset:{((i % 5)*12 + 3*s + m) * 1024 + 256 * t}", tag=("w", n, m))
    def xreg(i, s, b): return [vXf, vXf2][b] + (i % 2) * 16 + 4 * s
    def rd_x(i, s, b):
        a.e(f"ds_read_b128 {vr(xreg(i,s,b), 4)}, v{vXr+s} offset:{(i % 3) * 4096 + b*49152}", tag=("x", i, s, b))
    a.e("s_barrier")
    st()
    rd_x(0, 0, 0); rd_w(0, 0); rd_x(0, 0, 1); rd_w(0, 1); rd_w(0, 2)
    for s in range(1, 4): rd_x(0, s, 0); rd_x(0, s, 1)
    for n in range(64):
        i, s = divmod(n, 4)
        fill = [[] for _ in range(6)]
        if s == 3 and i < 15:
            a.wait(lg=[("w", n, 2)])
            a.e("s_barrier")
            if (i + 1) % 4 == 0 and 'gs' not in Cfg.x: st()
        if n < 63:
            for m in range(3): fill[m].append(lambda m=m: rd_w(n + 1, m))
            if s == 3:
                fill[0].insert(0, lambda: rd_x(i + 1, 0, 0)); fill[1].insert(0, lambda: rd_x(i + 1, 0, 1))
                for s2 in range(1, 4):
                    for b in range(2): fill[2 + s2].append(lambda s2=s2, b=b: rd_x(i + 1, s2, b))
        for m in range(3):
            for b in range(2):
                a.wait(lg=[("w", n, m), ("x", i, s, b)])
                xf = vr(xreg(i, s, b), 4); wf = vr(vWf + (n % 2) * 12 + 4 * m, 4)
                acc = vr([vAQ, vA2][b] + 16 * m, 16)
                c = "0" if n == 0 else acc
                if m < 2: a.e(f"v_mfma_f32_32x32x16_bf16 {acc}, {wf}, {xf}, {c}")
                else:     a.e(f"v_mfma_f32_32x32x16_bf16 {acc}, {xf}, {wf}, {c}")
                for f in fill[2 * m + b]: f()
    st()

def get_tag(a):
    a.e(f"s_mov_b32 s{sSpin}, 0")
    a.wait(vm="tag")
    vm = list(a.vm)
    a.e("L_tagspin:")
    a.e(f"v_readfirstlane_b32 s{sTAG}, v{vT}")
    a.e(f"s_cmp_lg_u32 s{sTAG}, 0")
    a.e("s_cbranch_scc1 L_tagok")
    a.e(f"buffer_load_dword v{vT}, v{vT+1}, {sr(sDBG,4)}, 0 offen sc1")
    a.e("s_waitcnt vmcnt(0)")
    a.e(f"s_add_u32 s{sSpin}, s{sSpin}, 1")
    a.e(f"s_cmp_lt_u32 s{sSpin}, 0x40000")
    a.e("s_cbranch_scc1 L_tagspin")
    a.e("L_tagok:")
    a.vm = vm

def pack(a, dst, src, n):
    for i in range(n):
        a.e(f"v_cvt_pk_bf16_f32 v{dst+i}, v{src+2*i}, v{src+2*i+1}")

def epilogue1(a, st):
    a.e(f"s_lshl3_add_u32 s{sT0}, s{sR}, s{sWAVE}")
    a.e(f"s_lshl_b32 s{sT1}, s{sH}, 6")
    a.e(f"s_add_u32 s{sT1}, s{sT1}, s{sT0}")
    a.e(f"s_lshl_b32 s{sT1}, s{sT1}, 12")
    a.e(f"s_add_u32 s{sT2}, s{sT1}, {4*4096}")
    a.e(f"v_add_u32 v{vT}, s{sXl}, v{vL16}")
    for b in range(2):
        A = [vAQ, vA2][b]; P = vXf + 16 * b
        for f in range(4):
            pack(a, P + 4 * f, A + 16 + 8 * f, 4)
            a.e(f"buffer_store_dwordx4 {vr(P+4*f,4)}, v{vL16}, {sr(sWS,4)}, s{sT1+b} offen offset:{f*1024} sc1", tag="kvst")
            a.e(f"ds_write_b128 v{vT}, {vr(P+4*f,4)} offset:{b*49152 + f*1024}")
    a.e(f"s_mov_b32 s{sT0}, {hex(f2u(math.log2(math.e) / math.sqrt(32.0)))}")
    for b in range(2):
        A = [vAQ, vA2][b]; P = vWf + 8 * b
        for f in range(2):
            for i in range(8): a.e(f"v_mul_f32 v{A+8*f+i}, s{sT0}, v{A+8*f+i}")
            pack(a, P + 4 * f, A + 8 * f, 4)
            a.e(f"ds_write_b128 v{vT}, {vr(P+4*f,4)} offset:{b*49152 + 4096 + f*1024}")
    a.e("L_epi:")
    poll256_issue(a, FL_0, vJx)
    a.e(f"s_lshl3_add_u32 s{sT0}, s{sR}, s{sWAVE}")
    a.e(f"s_lshl_b32 s{sT1}, s{sH}, 6")
    a.e(f"s_add_u32 s{sT1}, s{sT1}, s{sT0}")
    a.e(f"s_lshl_b32 s{sKVo}, s{sT1}, 12")
    a.e(f"s_lshl3_add_u32 s{sF1o}, s{sH}, s{sWAVE}")
    a.e(f"s_lshl_b32 s{sF1o}, s{sF1o}, 7")
    a.e(f"s_add_u32 s{sF1o}, s{sF1o}, {hex(FL_KV)}")
    a.e(f"s_lshl2_add_u32 s{sT3}, s{sR}, s{sF1o}")
    a.e(f"s_lshl_b32 s{sT0}, s{sT0}, 5")
    a.e(f"s_add_u32 s{sT0}, s{sT0}, s{sH}")
    a.e(f"s_lshl_b32 s{sT0}, s{sT0}, 11")
    a.e(f"s_add_u32 s{sOFo}, s{sT0}, {hex(WS_OF)}")
    a.e(f"v_add_u32 v{vKVa}, 65536, v{vL16}")
    a.e(f"v_add_u32 v{vT}, s{sXl}, v{vL16}")
    a.e("s_waitcnt lgkmcnt(0)")
    a.e("s_barrier")
    for f in range(2):
        a.e(f"ds_read_b128 {vr(vQ+4*f,4)}, v{vT} offset:{4096 + f*1024}", tag="K")
        a.e(f"ds_read_b128 {vr(vK+4*f,4)}, v{vKVa} offset:{f*1024}", tag="K")
    a.e(f"ds_read_b32 v{vT+2}, v{vT} offset:6144", tag="K")
    a.e(f"v_bfe_u32 v{vT}, v{vLANE}, 4, 1")
    a.e(f"v_bfe_u32 v{vT+1}, v{vLANE}, 2, 1")
    a.e(f"v_cmp_eq_u32 vcc, v{vT}, v{vT+1}")
    a.e(f"v_mov_b32 v{vT}, 0x3f803f80")
    a.e(f"v_cndmask_b32 v{vSel}, 0, v{vT}, vcc")
    for i in range(1, 4): a.e(f"v_mov_b32 v{vSel+i}, v{vSel}")
    a.wait(lg="K")
    S = vS[0]
    a.e(f"v_mfma_f32_32x32x16_bf16 {vr(S,16)}, {vr(vK,4)}, {vr(vQ,4)}, 0")
    a.e(f"v_mfma_f32_32x32x16_bf16 {vr(S,16)}, {vr(vK+4,4)}, {vr(vQ+4,4)}, {vr(S,16)}")
    a.e(f"v_readfirstlane_b32 s{sTAG}, v{vT+2}")
    a.e(f"v_mov_b32 v{vKVa2}, v{vKVa}")
    for i in range(16): a.e(f"v_mov_b32 v{vO+i}, 0")
    rd_k(a, 1)
    rd_v(a, 0, 1)
    rd_v(a, 0, 0)
    for i in range(4): a.e(f"v_mov_b32 v{vLs+i}, 0")
    for i in range(4): a.e(f"v_mov_b32 v{vP+4+i}, 0")
    a.e(f"v_max3_f32 v{vT}, v{S}, v{S+1}, v{S+2}")
    for i in range(3, 15, 2):
        a.e(f"v_max3_f32 v{vT}, v{vT}, v{S+i}, v{S+i+1}")
    a.e(f"v_max_f32 v{vT}, v{vT}, v{S+15}")
    a.e(f"v_mov_b32 v{vT+1}, v{vT}")
    a.e(f"v_permlane32_swap_b32 v{vT}, v{vT+1}")
    a.e(f"v_max_f32 v{vT}, v{vT}, v{vT+1}")
    for i in range(16): a.e(f"v_sub_f32 v{vM+i}, 0, v{vT}")
    for i in range(16): a.e(f"v_sub_f32 v{S+i}, v{S+i}, v{vT}")
    st()

vJC, vJE, vJacc, vJx, vX9, vJz, vSelS, vA0, vA1 = 136, 172, 208, 240, 24, 4, 8, 12, 13

def a_loads():
    T = vT
    steps = []
    def setup(a):
        a.e(f"s_mul_i32 s{sJ+6}, s{sArr}, {hex(XSTR)}")
        a.e(f"s_lshl_b32 s{sT0}, s{sCb}, 7")
        a.e(f"s_add_u32 s{sJ+6}, s{sJ+6}, s{sT0}")
        a.e(f"s_add_u32 s{sJ+6}, s{sJ+6}, {hex(WS_XF)}")
        a.e(f"s_lshl_b32 s{sT0}, s{sWAVE}, 16")
        a.e(f"s_add_u32 s{sJ+7}, s{sJ+6}, s{sT0}")
        a.e(f"s_lshl_b32 s{sJ+8}, s{sWAVE}, 13")
        a.e(f"v_lshrrev_b32 v{T}, 2, v{vLANE}")
        a.e(f"v_and_b32 v{T+1}, 3, v{vLANE}")
        a.e(f"v_lshlrev_b32 v{T+1}, 4, v{T+1}")
        a.e(f"v_lshl_add_u32 v{T}, v{T}, 10, v{T+1}")
    steps.append(setup)
    for p in range(8):
        def f(a, p=p):
            a.e(f"s_add_u32 m0, s{sJ+8}, {p*1024}")
            a.e(f"s_add_u32 s{sT0}, s{sJ+7}, {(p//2)*16384 + (p%2)*64}")
            a.e(f"buffer_load_dwordx4 v{T}, {sr(sWS,4)}, s{sT0} offen sc1 lds", tag="al")
        steps.append(f)
    def esetup(a):
        a.e(f"v_lshrrev_b32 v{T+1}, 5, v{vLANE}")
        a.e(f"v_lshlrev_b32 v{T+1}, 4, v{T+1}")
        a.e(f"v_and_b32 v{T}, 3, v{vLANE}")
        a.e(f"v_bfe_u32 v{T+2}, v{vLANE}, 3, 1")
        a.e(f"v_lshl_add_u32 v{T}, v{T+2}, 2, v{T}")
        a.e(f"v_and_b32 v{T+2}, 3, v{T}")
        a.e(f"v_lshl_add_u32 v{T}, v{T}, 11, v{T+1}")
        a.e(f"v_cmp_eq_u32 vcc, 0, v{T+2}")
        a.e(f"v_mov_b32 v{T+2}, {hex(OOB)}")
        a.e(f"v_cndmask_b32 v{T}, v{T+2}, v{T}, vcc")
        a.e(f"v_cmp_ne_u32 vcc, 0, v{vSel}")
        a.e(f"v_cndmask_b32 v{T}, v{T+2}, v{T}, vcc")
        if "eo" in Cfg.x:
            a.e(f"s_xor_b32 s{sT0}, s{sR}, s{sCb}")
            a.e(f"s_and_b32 s{sT0}, s{sT0}, 1")
            a.e(f"s_lshr_b32 s{sT1}, s{sCb}, 1")
            a.e(f"s_or_b32 s{sT0}, s{sT0}, s{sT1}")
            a.e(f"s_cselect_b32 s{sT0}, {hex(OOB)}, 0")
            a.e(f"v_or_b32 v{T}, s{sT0}, v{T}")
        a.e(f"s_lshl_b32 s{sJ+7}, s{sArr}, 14")
        a.e(f"s_add_u32 s{sJ+7}, s{sJ+7}, {hex(WS_XE)}")
        a.e(f"s_lshl_b32 s{sT0}, s{sQ}, 8")
        a.e(f"s_add_u32 s{sJ+8}, s{sJ+7}, s{sT0}")
    steps.append(esetup)
    for j in range(8):
        steps.append(lambda a, j=j: a.e(f"buffer_load_dwordx4 {vr(vJE+4*j,4)}, v{T}, {sr(sWS,4)}, s{sJ+8} offen offset:{32*j} sc1", tag="al"))
    def nine(a):
        a.e(f"s_cmp_lg_u32 s{sQ}, 0")
        a.e(f"s_cselect_b32 s{sT0}, {hex(OOB)}, 0")
        a.e(f"v_lshlrev_b32 v{T+1}, 26, v{T+1}")
        a.e(f"v_or_b32 v{T+1}, s{sT0}, v{T+1}")
        a.e(f"v_or_b32 v{T}, v{T}, v{T+1}")
        a.e(f"buffer_load_ushort v{vJE+32}, v{T}, {sr(sWS,4)}, s{sJ+7} offen offset:1024 sc1")
        a.e(f"v_bfrev_b32 v{T}, v{vLANE}")
        a.e(f"v_bfe_u32 v{T}, v{T}, 27, 3")
        a.e(f"v_and_b32 v{T+2}, 3, v{vLANE}")
        a.e(f"v_lshl_add_u32 v{T}, v{T}, 2, v{T+2}")
        a.e(f"v_lshl_or_b32 v{T}, v{T}, 1, v{T+1}")
        a.e(f"s_lshl_b32 s{sT0}, s{sTt}, 6")
        a.e(f"s_add_u32 s{sT1}, s{sJ+6}, {512*1024}")
        a.e(f"s_add_u32 s{sT2}, s{sT1}, s{sT0}")
        a.e(f"buffer_load_ushort v{vX9}, v{T}, {sr(sWS,4)}, s{sT2} offen sc1")
        a.e(f"s_xor_b32 s{sT2}, s{sT2}, 64")
        a.e(f"buffer_load_ushort v{vX9+4}, v{T}, {sr(sWS,4)}, s{sT2} offen sc1", tag="al")
    steps.append(nine)
    return steps

def job_a(a):
    T = vT
    a.e(f"v_lshrrev_b32 v{T}, 5, v{vLANE}")
    a.e(f"v_lshlrev_b32 v{T}, 9, v{T}")
    a.e(f"v_bfe_u32 v{T+1}, v{vLANE}, 2, 2")
    a.e(f"v_lshl_add_u32 v{T}, v{T+1}, 6, v{T}")
    a.e(f"v_and_b32 v{T+1}, 1, v{vLANE}")
    a.e(f"v_lshl_add_u32 v{T}, v{T+1}, 5, v{T}")
    a.e(f"v_bfe_u32 v{T+1}, v{vLANE}, 1, 1")
    a.e(f"v_lshl_add_u32 v{T}, v{T+1}, 4, v{T}")
    a.e(f"v_bfe_u32 v{T+1}, v{vLANE}, 4, 1")
    a.e(f"v_lshl_add_u32 v{T}, v{T+1}, 3, v{T}")
    a.e(f"s_lshl_b32 s{sT0}, s{sQ}, 14")
    a.e(f"s_lshl_b32 s{sT1}, s{sTt}, 10")
    a.e(f"s_add_u32 s{sT0}, s{sT0}, s{sT1}")
    a.e(f"v_add_u32 v{vA0}, s{sT0}, v{T}")
    a.e(f"v_xor_b32 v{vA1}, 1024, v{vA0}")
    def rd(j):
        for sg in range(2):
            for t in range(2):
                a.e(f"ds_read_b64_tr_b16 {vr(vJx + (j%2)*8 + 4*sg + 2*t, 2)}, v{[vA0, vA1][sg]} offset:{j*2048 + 256*t}", tag=("xa", j))
    a.wait(vm="al")
    a.e("s_barrier")
    Cfg.s0()
    vm0 = list(a.vm)
    rd(0); rd(1)
    for r in (vX9 + 1, vX9 + 2, vX9 + 3, vX9 + 5, vX9 + 6, vX9 + 7, vJE + 33, vJE + 34, vJE + 35):
        a.e(f"v_mov_b32 v{r}, 0")
    a.e(f"v_lshlrev_b32 v{T}, 2, v{vSel}")
    a.e(f"v_and_b32 v{T}, 0x80000000, v{T}")
    for i in range(4): a.e(f"v_or_b32 v{vSelS+i}, v{T}, v{vSel}")
    a.e(f"s_xor_b32 s{sT0}, s{sR}, s{sCb}")
    a.e(f"s_bitcmp1_b32 s{sT0}, 0")
    a.e("s_cbranch_scc1 L_jaY")
    lg = list(a.lg)
    z = vr(vJz, 4)
    for ver in "XY":
        if ver == "Y":
            a.e("L_jaY:"); a.lg = list(lg)
        for sg in range(2):
            a.e(f"v_mfma_f32_32x32x16_bf16 {vr(vJacc+16*sg,16)}, {vr(vX9+4*sg,4)}, {vr(vJC+32,4)}, 0")
        if ver == "X": a.e(f"v_mfma_f32_16x16x32_bf16 {z}, {vr(vJE+32,4)}, {vr(vJC+32,4)}, 0")
        else:          a.e(f"v_mfma_f32_16x16x32_bf16 {z}, {vr(vSelS,4)}, {vr(vX9,4)}, 0")
        for j in range(8):
            a.wait(lg=("xa", j))
            x = vJx + (j % 2) * 8
            for sg in range(2):
                a.e(f"v_mfma_f32_32x32x16_bf16 {vr(vJacc+16*sg,16)}, {vr(x+4*sg,4)}, {vr(vJC+4*j,4)}, {vr(vJacc+16*sg,16)}")
            if ver == "X": a.e(f"v_mfma_f32_16x16x32_bf16 {z}, {vr(vJE+4*j,4)}, {vr(vJC+4*j,4)}, {z}")
            else:          a.e(f"v_mfma_f32_16x16x32_bf16 {z}, {vr(vSelS,4)}, {vr(x,4)}, {z}")
            if j + 2 < 8: rd(j + 2)
        a.e(f"v_and_b32 v{T}, 31, v{vLANE}")
        a.e(f"v_lshrrev_b32 v{T+1}, 5, v{vLANE}")
        if ver == "X":
            a.e(f"s_cmp_ge_u32 s{sCb}, 2")
            a.e("s_cbranch_scc1 L_jaC")
            a.e(f"v_lshlrev_b32 v{T+3}, 4, v{T+1}")
            a.e(f"v_lshl_add_u32 v{T+2}, v{T}, 6, v{T+3}")
            a.e(f"s_lshr_b32 s{sT0}, s{sArr}, 1")
            a.e(f"s_lshl_b32 s{sT0}, s{sT0}, 16")
            a.e(f"s_lshl2_add_u32 s{sT0}, s{sQ}, s{sT0}")
            a.e(f"s_add_u32 s{sT0}, s{sT0}, {hex(WS_ZC)}")
            a.e(f"s_lshl_b32 s{sT1}, s{sTrow}, 5")
            a.e(f"s_add_u32 s{sT1}, s{sT1}, s{sT0}")
            def zsum():
                a.e(f"v_add_f32 v{vJz}, v{vJz}, v{vJz+1}")
                a.e(f"v_add_f32 v{vJz+2}, v{vJz+2}, v{vJz+3}")
                a.e(f"v_add_f32 v{T+4}, v{vJz}, v{vJz+2}")
            zsum()
            a.e(f"buffer_store_dword v{T+4}, v{T+2}, {sr(sWS,4)}, s{sT1} offen sc1")
            a.e(f"s_or_b32 s{sT1}, s{sH}, s{sTrow}")
            a.e(f"s_cmp_lg_u32 s{sT1}, 0")
            a.e("s_cbranch_scc1 L_jaC")
            for i in range(4): a.e(f"v_mov_b32 v{vSelS+i}, 0xbf803f80")
            for j in range(9):
                a.e(f"v_mfma_f32_16x16x32_bf16 {z}, {vr(vJE+4*j,4)}, {vr(vSelS,4)}, {z if j else 0}")
            a.e(f"s_add_u32 s{sT1}, s{sT0}, {1024*32}")
            zsum()
            a.e(f"buffer_store_dword v{T+4}, v{T+3}, {sr(sWS,4)}, s{sT1} offen sc1")
            a.e("s_branch L_jaC")
        else:
            a.e(f"s_lshr_b32 s{sT0}, s{sR}, 1")
            a.e(f"s_or_b32 s{sT0}, s{sT0}, s{sArr}")
            a.e(f"s_cmp_lg_u32 s{sT0}, 0")
            a.e("s_cbranch_scc1 L_jaC")
            a.e(f"v_lshrrev_b32 v{T+2}, 4, v{T}")
            a.e(f"v_mul_u32_u24 v{T+2}, {hex(UVSTR)}, v{T+2}")
            a.e(f"v_bfe_u32 v{T+3}, v{T}, 2, 1")
            a.e(f"v_lshl_add_u32 v{T+2}, v{T+3}, 9, v{T+2}")
            a.e(f"v_bfe_u32 v{T+3}, v{T}, 3, 1")
            a.e(f"v_lshl_add_u32 v{T+2}, v{T+3}, 3, v{T+2}")
            a.e(f"v_and_b32 v{T+3}, 3, v{T}")
            a.e(f"v_lshl_add_u32 v{T+2}, v{T+3}, 1, v{T+2}")
            a.e(f"v_lshl_or_b32 v{T+2}, v{T+1}, 30, v{T+2}")
            a.e(f"s_lshl1_add_u32 s{sT0}, s{sCb}, s{sTt}")
            a.e(f"s_lshl_b32 s{sT0}, s{sT0}, 10")
            a.e(f"s_and_b32 s{sT1}, s{sQ}, 1")
            a.e(f"s_lshl_b32 s{sT1}, s{sT1}, 8")
            a.e(f"s_add_u32 s{sT0}, s{sT0}, s{sT1}")
            a.e(f"s_lshr_b32 s{sT1}, s{sQ}, 1")
            a.e(f"s_lshl4_add_u32 s{sT0}, s{sT1}, s{sT0}")
            a.e(f"s_add_u32 s{sT0}, s{sT0}, {hex(WS_UV + 32*16384)}")
            a.e(f"v_cvt_pk_bf16_f32 v{T+4}, v{vJz}, v{vJz}")
            a.e(f"buffer_store_short v{T+4}, v{T+2}, {sr(sWS,4)}, s{sT0} offen sc1")
    a.e("L_jaC:")
    a.vm = vm0
    Cfg.s0()
    js = "js" in Cfg.x
    vW, vG, sG_ = (vA0, vA1, sJ + 13) if js else (T + 2, T + 3, sT0)
    if not js: a.e("s_barrier")
    a.e(f"s_lshl_b32 s{sT0}, s{sWAVE}, 13")
    a.e(f"v_add_u32 v{vW}, s{sT0}, v{vL16}")
    if not js:
        a.e("s_nop 7")
        for c in range(8): ja_write(a, c, vW)
        ja_raddr(a, vW)
    a.e(f"v_lshrrev_b32 v{vG}, 4, v{T}")
    a.e(f"v_lshlrev_b32 v{vG}, 14, v{vG}")
    a.e(f"v_lshl_add_u32 v{vG}, v{T+1}, 9, v{vG}")
    a.e(f"v_and_b32 v{T}, 15, v{T}")
    a.e(f"v_lshl_add_u32 v{vG}, v{T}, 4, v{vG}")
    a.e(f"s_and_b32 s{sT0}, s{sArr}, 2")
    a.e(f"s_and_b32 s{sT1}, s{sQ}, 1")
    a.e(f"s_add_u32 s{sT0}, s{sT0}, s{sT1}")
    a.e(f"s_mul_i32 s{sT0}, s{sT0}, {hex(UVSTR)}")
    a.e(f"s_lshr_b32 s{sT1}, s{sTrow}, 6")
    a.e(f"s_lshl_b32 s{sT1}, s{sT1}, 15")
    a.e(f"s_add_u32 s{sT0}, s{sT0}, s{sT1}")
    a.e(f"s_lshr_b32 s{sT1}, s{sQ}, 1")
    a.e(f"s_xor_b32 s{sT1}, s{sT1}, s{sTt}")
    a.e(f"s_lshl1_add_u32 s{sT1}, s{sCb}, s{sT1}")
    a.e(f"s_lshl_b32 s{sT1}, s{sT1}, 10")
    a.e(f"s_add_u32 s{sT0}, s{sT0}, s{sT1}")
    a.e(f"s_and_b32 s{sT1}, s{sArr}, 1")
    a.e(f"s_lshl_b32 s{sT1}, s{sT1}, 8")
    a.e(f"s_add_u32 s{sT0}, s{sT0}, s{sT1}")
    a.e(f"s_add_u32 s{sG_}, s{sT0}, {hex(WS_UV)}")
    if js: return
    a.e("s_waitcnt lgkmcnt(0)")
    a.e("s_barrier")
    for w in range(4): ja_read(a, w, vW)
    for w in range(1, 4): ja_add(a, w)
    ja_store(a, vG, sG_)
def ja_write(a, c, vW):
    a.e(f"ds_write_b128 v{vW}, {vr(vJacc+4*c,4)} offset:{c*1024}", tag="jw")
def ja_raddr(a, vW):
    a.e(f"s_lshl_b32 s{sT0}, s{sTt}, 15")
    a.e(f"s_lshl_b32 s{sT1}, s{sQ}, 11")
    a.e(f"s_add_u32 s{sT0}, s{sT0}, s{sT1}")
    a.e(f"v_add_u32 v{vW}, s{sT0}, v{vL16}")
def ja_read(a, w, vW):
    for c in range(2):
        a.e(f"ds_read_b128 {vr(vJC+8*w+4*c,4)}, v{vW} offset:{w*8192 + c*1024}", tag=("ra", w))
def ja_add(a, w):
    a.wait(lg=("ra", w))
    for i in range(8): a.e(f"v_add_f32 v{vJC+i}, v{vJC+i}, v{vJC+8*w+i}")
def ja_store(a, vG, sG_):
    pack(a, vJC + 8, vJC, 4)
    a.e(f"buffer_store_dwordx4 {vr(vJC+8,4)}, v{vG}, {sr(sWS,4)}, s{sG_} offen sc1", tag="uv")

def poll256_issue(a, off, reg):
    if isinstance(off, tuple):
        a.e(f"buffer_load_dwordx4 {vr(reg,4)}, v{off[0]}, {sr(sWS,4)}, s{off[1]} offen sc1", tag="poll")
        return
    a.e(f"s_mov_b32 s{sT0}, {hex(off)}")
    a.e(f"buffer_load_dwordx4 {vr(reg,4)}, v{vL16}, {sr(sWS,4)}, s{sT0} offen sc1", tag="poll")
def poll256_check(a, off, reg, lbl, slp=8):
    a.e(f"s_mov_b32 s{sSpin}, 0")
    a.e(f"{lbl}_spin:")
    a.e(f"v_xor_b32 v{reg}, s{sTAG}, v{reg}")
    a.e(f"v_xor_b32 v{reg+1}, s{sTAG}, v{reg+1}")
    a.e(f"v_xor_b32 v{reg+2}, s{sTAG}, v{reg+2}")
    a.e(f"v_xor_b32 v{reg+3}, s{sTAG}, v{reg+3}")
    a.e(f"v_or3_b32 v{reg}, v{reg}, v{reg+1}, v{reg+2}")
    a.e(f"v_or_b32 v{reg}, v{reg}, v{reg+3}")
    a.e(f"v_cmp_ne_u32 vcc, 0, v{reg}")
    a.e(f"s_cmp_eq_u64 vcc, 0")
    a.e(f"s_cbranch_scc1 {lbl}_ok")
    vm = list(a.vm)
    a.e(f"s_sleep {slp}")
    poll256_issue(a, off, reg)
    a.e("s_waitcnt vmcnt(0)")
    a.e(f"s_add_u32 s{sSpin}, s{sSpin}, 1")
    a.e(f"s_cmp_lt_u32 s{sSpin}, 0x40000")
    a.e(f"s_cbranch_scc1 {lbl}_spin")
    a.e(f"{lbl}_ok:")
    a.vm = vm

def rd_k(a, t):
    for f in range(2):
        a.e(f"ds_read_b128 {vr(vK+4*f,4)}, v{vKVa} offset:{t*12288 + f*1024}", tag="K")
def rd_v(a, t, f):
    a.e(f"ds_read_b128 {vr(vV+4*f,4)}, v{vKVa2} offset:{t*12288 + (2+f)*1024}", tag=f"V{f+1}")
vKVa2 = 20

vSm, vSa, vSi = 4, 8, 23
def sm_setup(a):
    a.e(f"v_and_b32 v{vSi}, 4, v{vLANE}")
    a.e(f"v_cmp_eq_u32 vcc, 0, v{vSi}")
    a.e(f"v_mov_b32 v{vSi}, 0x3f803f80")
    for i in range(2): a.e(f"v_cndmask_b32 v{vSa+i}, 0, v{vSi}, vcc")
    for i in range(2): a.e(f"v_xor_b32 v{vSa+2+i}, v{vSi}, v{vSa}")
    a.e(f"v_and_b32 v{vSi}, 1, v{vLANE}")
    a.e(f"v_mul_u32_u24 v{vSi}, 0xaaaa, v{vSi}")
    a.e(f"v_or_b32 v{vSi}, 0x4444, v{vSi}")
    for i in range(4): a.e(f"v_mov_b32 v{vSm+i}, 0")
def att_body(a, par, hooks, last=False, sm=False):
    S = vS[par]; N = vS[1 - par]
    def ex(*idx):
        for i in idx: a.e(f"v_exp_f32 v{S+i}, v{S+i}")
    def cv(j): a.e(f"v_cvt_pk_bf16_f32 v{vP+j}, v{S+2*j}, v{S+2*j+1}")
    def hk(p):
        for f in hooks.get(p, []): f()
    S1 = lambda: last or a.e(f"v_mfma_f32_32x32x16_bf16 {vr(N,16)}, {vr(vK,4)}, {vr(vQ,4)}, {vr(vM,16)}")
    S2 = lambda: last or a.e(f"v_mfma_f32_32x32x16_bf16 {vr(N,16)}, {vr(vK+4,4)}, {vr(vQ+4,4)}, {vr(N,16)}")
    PV = lambda f: a.e(f"v_mfma_f32_32x32x16_bf16 {vr(vO,16)}, {vr(vV+4*f,4)}, {vr(vP+4*f,4)}, {vr(vO,16)}")
    LS = lambda f: a.e(f"v_mfma_f32_16x16x32_bf16 {vr(vLs,4)}, {vr(vSel,4)}, {vr(vP+4*f,4)}, {vr(vLs,4)}")
    if "b2" in Cfg.x:
        a.wait(lg=["K", "V2"])
        S1(); ex(0, 1); hk(1); ex(2, 3); cv(0); cv(1)
        PV(1); ex(4, 5); LS(1); ex(6, 7); cv(2); cv(3)
        S2(); hk(2); ex(8, 9, 10, 11); cv(4); cv(5)
        a.wait(lg="V1")
        PV(0); ex(12, 13); hk(3); LS(0); hk(4); ex(14, 15); cv(6); cv(7)
        return
    if sm:
        SM = lambda: a.e(f"v_smfmac_f32_16x16x64_bf16 {vr(vSm,4)}, {vr(vSa,4)}, {vr(vP,8)}, v{vSi}")
        a.wait(lg=["K", "V2"])
        if "m3" in Cfg.x:
            S1(); ex(0, 1); hk(1); ex(2, 3); cv(0); cv(1); ex(4)
            PV(1); ex(5, 6, 7); cv(2); cv(3); ex(8)
            S2(); hk(2); ex(9); SM(); ex(10, 11); cv(4)
            a.wait(lg="V1")
            PV(0); hk(3); cv(5); ex(12, 13); hk(4); ex(14, 15); cv(6); cv(7)
            return
        if "m4" in Cfg.x:
            S1(); ex(0, 1); hk(1); ex(2, 3); cv(0); cv(1)
            PV(1); ex(4, 5, 6, 7); cv(2); cv(3)
            S2(); hk(2); ex(8, 9, 10, 11)
            a.wait(lg="V1")
            PV(0); hk(3); ex(12, 13); SM(); hk(4); ex(14, 15); cv(4); cv(5); cv(6); cv(7)
            return
        if "m5" in Cfg.x:
            S1(); ex(0, 1); hk(1); cv(0); ex(2, 3); cv(1)
            PV(1); ex(4, 5); cv(2); ex(6, 7); cv(3)
            S2(); hk(2); ex(8, 9); SM(); ex(10); cv(4); ex(11); cv(5)
            a.wait(lg="V1")
            PV(0); hk(3); ex(12, 13); hk(4); cv(6); ex(14, 15); cv(7)
            return
        if "m2" in Cfg.x:
            S1(); ex(0, 1); hk(1); ex(2, 3); cv(0); cv(1)
            PV(1); ex(4, 5, 6, 7); cv(2); cv(3)
            S2(); hk(2); ex(8, 9); SM(); ex(10, 11); cv(4); cv(5)
            a.wait(lg="V1")
            PV(0); hk(3); ex(12, 13); hk(4); ex(14, 15); cv(6); cv(7)
            return
        S1(); ex(0, 1); hk(1); ex(2, 3); cv(0); cv(1); ex(4)
        PV(1); ex(5, 6, 7); cv(2); cv(3)
        S2(); hk(2); ex(8, 9, 10); SM(); ex(11); cv(4); cv(5); ex(12)
        a.wait(lg="V1")
        PV(0); hk(3); ex(13); hk(4); ex(14, 15); cv(6); cv(7)
        return
    if "b3" in Cfg.x:
        a.wait(lg=["K", "V2"])
        S1(); ex(0, 1); hk(1); ex(2, 3); LS(1); cv(0); cv(1); ex(4)
        PV(1); ex(5, 6, 7); cv(2); cv(3)
        S2(); hk(2); ex(8, 9, 10, 11); LS(0); cv(4); cv(5); ex(12)
        a.wait(lg="V1")
        PV(0); hk(3); ex(13); hk(4); ex(14, 15); cv(6); cv(7)
        return
    a.wait(lg=["K", "V2"])
    if not last: a.e(f"v_mfma_f32_32x32x16_bf16 {vr(N,16)}, {vr(vK,4)}, {vr(vQ,4)}, {vr(vM,16)}")
    ex(0, 1)
    hk(1)
    a.e(f"v_mfma_f32_32x32x16_bf16 {vr(vO,16)}, {vr(vV+4,4)}, {vr(vP+4,4)}, {vr(vO,16)}")
    ex(2, 3)
    a.e(f"v_mfma_f32_16x16x32_bf16 {vr(vLs,4)}, {vr(vSel,4)}, {vr(vP+4,4)}, {vr(vLs,4)}")
    ex(4, 5); cv(0); cv(1)
    if not last: a.e(f"v_mfma_f32_32x32x16_bf16 {vr(N,16)}, {vr(vK+4,4)}, {vr(vQ+4,4)}, {vr(N,16)}")
    hk(2)
    ex(6, 7); cv(2); ex(8); cv(3); ex(9, 10)
    a.wait(lg="V1")
    a.e(f"v_mfma_f32_32x32x16_bf16 {vr(vO,16)}, {vr(vV,4)}, {vr(vP,4)}, {vr(vO,16)}")
    ex(11, 12)
    hk(3)
    a.e(f"v_mfma_f32_16x16x32_bf16 {vr(vLs,4)}, {vr(vSel,4)}, {vr(vP,4)}, {vr(vLs,4)}")
    hk(4)
    ex(13, 14); cv(4); ex(15); cv(5); cv(6); cv(7)

def kv_dma(a, q):
    a.e(f"buffer_load_dwordx4 v{vL16}, {sr(sWS,4)}, s{sKVsrc} offen offset:{q*1024} sc1 lds", tag="kv")

def kv_dma_setup(a):
    a.e(f"s_add_u32 s{sT0}, s{sKVsrc}, {8*4096}")
    a.e(f"s_and_b32 s{sT0}, s{sT0}, 0x3ffff")
    a.e(f"s_andn2_b32 s{sKVsrc}, s{sKVsrc}, 0x3ffff")
    a.e(f"s_or_b32 s{sKVsrc}, s{sKVsrc}, s{sT0}")
    a.e(f"s_add_u32 s{sSlot}, s{sSlot}, 4096")
    a.e(f"s_cmp_eq_u32 s{sSlot}, {3*4096}")
    a.e(f"s_cselect_b32 s{sSlot}, 0, s{sSlot}")
    a.e(f"s_add_u32 m0, s{sXl}, s{sSlot}")

def attention(a, st):
    a.e(f"s_mov_b32 s{sKVsrc}, s{sKVo}")
    a.e(f"s_mov_b32 s{sSlot}, 0")
    a.e(f"s_mov_b32 s{sKVl}, 65536")
    def adv_k(second_half_next):
        if second_half_next:
            a.e(f"v_add_u32 v{vKVa}, 49152, v{vKVa}")
        else:
            a.e(f"s_add_u32 s{sKVl}, s{sKVl}, 4096")
            a.e(f"s_cmp_eq_u32 s{sKVl}, {65536+3*4096}")
            a.e(f"s_cselect_b32 s{sKVl}, 65536, s{sKVl}")
            a.e(f"v_add_u32 v{vKVa}, s{sKVl}, v{vL16}")
    def group(g, extra):
        for t in range(8):
            h = {1: [], 2: [], 3: [], 4: []}
            tk = (t + 2) % 4
            last = g == 7 and t >= 6
            for f in extra.get((t, 0), []): f()
            if tk == 0 and not last:
                if t == 6:
                    h[2].append(lambda: (a.wait(vm=[("kv", g + 1)] + (["uv"] if g == 1 + Cfg.jg else [])), a.e("s_barrier")))
                h[2].append(lambda t=t: adv_k(t == 2))
            if not last: h[2].append(lambda tk=tk: rd_k(a, tk))
            h[2].append(lambda t=t: rd_v(a, t % 4, 1))
            if not (g == 7 and t == 7):
                if (t + 1) % 4 == 0:
                    h[4].append(lambda: a.e(f"v_mov_b32 v{vKVa2}, v{vKVa}"))
                h[4].append(lambda t=t: rd_v(a, (t + 1) % 4, 0))
            for p in (1, 2, 3, 4):
                h[p] += extra.get((t, p), [])
            att_body(a, t % 2, h, g == 7 and t == 7, sm="sm" in Cfg.x and (g, t) >= (Cfg.jg, 7))
    def flag_store():
        a.wait(vm="kvst")
        a.e(f"v_mov_b32 v{vT}, s{sTAG}")
        a.e(f"s_lshl_b32 s{sT0}, s{sTt}, 30")
        a.e(f"v_lshl_or_b32 v{vT+1}, v{vL16}, 5, s{sT0}")
        a.e("s_mov_b64 exec, 3")
        a.e(f"buffer_store_dword v{vT}, v{vT+1}, {sr(sWS,4)}, s{sT3} offen sc1")
        a.e("s_mov_b64 exec, -1")
    def poll_issue():
        a.e(f"v_and_b32 v{vT+4}, 7, v{vLANE}")
        a.e(f"v_lshlrev_b32 v{vT+4}, 2, v{vT+4}")
        a.e(f"buffer_load_dword v{vT+5}, v{vT+4}, {sr(sWS,4)}, s{sF1o} offen sc1", tag="kpoll")
    def poll_check():
        a.e(f"s_mov_b32 s{sSpin}, 0")
        a.wait(vm="kpoll")
        vm = list(a.vm)
        a.e("L_kvspin:")
        a.e(f"v_cmp_eq_u32 vcc, s{sTAG}, v{vT+5}")
        a.e("s_cmp_eq_u64 vcc, -1")
        a.e("s_cbranch_scc1 L_kvok")
        a.e(f"buffer_load_dword v{vT+5}, v{vT+4}, {sr(sWS,4)}, s{sF1o} offen sc1")
        a.e("s_waitcnt vmcnt(0)")
        a.e(f"s_add_u32 s{sSpin}, s{sSpin}, 1")
        a.e(f"s_cmp_lt_u32 s{sSpin}, 0x40000")
        a.e("s_cbranch_scc1 L_kvspin")
        a.e("L_kvok:")
        a.vm = vm
    def dma(g, q):
        if q == 0: kv_dma_setup(a)
        kv_dma(a, q); a.vm[-1] = ("kv", g)
    def chk(off, lbl):
        a.wait(vm="poll"); poll256_check(a, off, vJx, lbl)
    EX = [dict() for _ in range(8)]
    def at(g, t, p, f, *x): EX[g].setdefault((t, p), []).append(lambda: f(*x))
    def spread(items, n0, per=2):
        for i, (f, *x) in enumerate(items):
            n = n0 + i // per
            at(n // 8, n % 8, {1: [1], 2: [1, 3], 4: [1, 2, 3, 4]}[per][i % per], f, *x)
    steps = a_loads()
    s0 = st if "g0" in Cfg.x else (lambda: None)
    Cfg.s0 = s0
    at(0, 1, 1, s0); at(0, *((0, 4) if "k0" in Cfg.x else (1, 1)), flag_store); at(0, 1, 1, s0); at(0, 1, 1, chk, FL_0, "L_pf0"); at(0, 1, 1, s0); at(0, 4, 3, s0); at(0, 6, 0, s0); at(0, 1, 1, wf_stores, a)
    JG = Cfg.jg
    at(0, 3, 1, poll_issue)
    if JG:
        sl = [(n // 8, n % 8, p) for n in range(2, 14) for p in (1, 4)] if "l2" in Cfg.x else \
             [(n // 8, n % 8, p) for n in range(5, 14) for p in (1, 3, 4)][1:]
        at(*sl[0], steps[0], a)
        for i in range(8): at(*sl[i], steps[1 + i], a)
        at(*sl[8], steps[9], a)
        for i in range(9): at(*sl[8 + i], steps[10 + i], a)
        EX[0].setdefault((2, 1), [])
    else:
        at(0, 1, 1, steps[0], a)
        for i in range(8): at(0, 1 + (i + 1) // 4, 1 + (i + 1) % 4, steps[1 + i], a)
        at(0, 3, 1, steps[9], a)
        for i in range(9): at(0, 3 + (i // 2 + 1) // 4, 1 + (i // 2 + 1) % 4, steps[10 + i], a)
    at(0, 4, 3, poll_check); at(0, 4, 3, st)
    if "ek" in Cfg.x:
        sE = sJ + 9
        def early():
            a.wait(vm="kpoll")
            vm = list(a.vm)
            a.e(f"v_cmp_eq_u32 vcc, s{sTAG}, v{vT+5}")
            a.e(f"s_add_u32 s{sT0}, s{sR}, 1")
            a.e(f"s_lshr_b32 s{sT0}, vcc_lo, s{sT0}")
            a.e(f"s_andn2_b32 s{sE}, 3, s{sT0}")
            a.e("s_cbranch_scc1 L_ek0")
            for g in (1, 2):
                for q in range(4): dma(g, q)
            a.e("L_ek0:")
            a.vm = vm
        def late(g):
            a.e(f"s_cmp_eq_u32 s{sE}, 0")
            a.e(f"s_cbranch_scc1 L_ek{g}")
            for q in range(4): dma(g, q)
            a.e(f"L_ek{g}:")
        def alw():
            vm = list(a.vm)
            a.e(f"s_cmp_lg_u32 s{sE}, 0")
            a.e("s_cbranch_scc1 L_ek3")
            a.e("s_waitcnt vmcnt(0)")
            a.e("L_ek3:")
            a.vm = vm
        et = 1 if "e1" in Cfg.x else 2
        at(0, 0, 1, poll_issue)
        if et == 1: EX[0][(1, 1)].insert(4, early)
        else: EX[0][(et, 1)].insert(0, early)
        at(0, 4, 3, late, 1); at(0, 5, 1, late, 2)
        if not JG: at(0, 6, 0, alw)
    else:
        for q in range(4): at(0, 4, 3, dma, 1, q)
        for q in range(4): at(0, 5, 1 if JG else 1 + q, dma, 2, q)
    at(JG, 6, 0, job_a, a); at(0, 6, 0, s0); at(0, 6, 3, s0)
    if "sm" in Cfg.x: at(JG, 6, 1, sm_setup, a)
    if "js" in Cfg.x:
        for c, (t, p) in enumerate([(6, 3), (6, 4), (7, 1), (7, 3)]):
            at(JG, t, p, ja_write, a, 2 * c, vA0); at(JG, t, p, ja_write, a, 2 * c + 1, vA0)
        at(JG, 7, 4, ja_raddr, a, vA0)
        at(JG + 1, 0, 3, lambda: (a.wait(lg="jw"), a.e("s_barrier")))
        for w, (t, p) in enumerate([(0, 3), (0, 4), (1, 1), (1, 3)]): at(JG + 1, t, p, ja_read, a, w, vA0)
        for w, (t, p) in enumerate([(2, 1), (2, 3), (3, 1)]): at(JG + 1, t, p, ja_add, a, w + 1)
        at(JG + 1, 3, 3, ja_store, a, vA1, sJ + 13)
    for g in range(1, 6):
        for q, (t, p) in enumerate([(6, 3), (6, 4), (7, 1), (7, 3)]): at(g, t, p, dma, g + 2, q)
    at(1 + JG, 0, 1, b_setup, a)
    spread([(df_load, a, j) for j in range(8)], 16 + 8 * JG, 1)
    spread([(wf_load, a, n) for n in range(28, 32)], 36, 2)
    at(1 + JG, 6, 3, flag_wg, a, FL_A, "L_fa")
    at(3, 5, 1, poll256_issue, a, FL_A, vJx)
    at(4, 0, 1, chk, FL_A, "L_pa"); at(4, 0, 1, uv_setup, a)
    spread([(uv_load, a, j) for j in range(8)], 32, 2)
    at(4, 4, 1, uv_extra, a)
    spread([(b_mfma, a, j) for j in range(8)], 40, 2)
    at(5, 4, 1, b_extra, a); at(5, 5, 1, b_write, a)
    spread([(wf_load, a, n) for n in range(0, 4)], 44, 2)
    spread([(wf_load, a, n) for n in range(4, 28)], 48, 2)
    for g in range(8):
        group(g, EX[g])
        if g == 0 or (g < 7 and 'gs' in Cfg.x and 'g0' not in Cfg.x): st()
    a.wait(lg="V2")
    a.e(f"v_mfma_f32_32x32x16_bf16 {vr(vO,16)}, {vr(vV+4,4)}, {vr(vP+4,4)}, {vr(vO,16)}")
    a.e(f"v_mfma_f32_16x16x32_bf16 {vr(vLs,4)}, {vr(vSel,4)}, {vr(vP+4,4)}, {vr(vLs,4)}")
    st()
    if "sm" in Cfg.x:
        a.e(f"v_add_f32 v{vSm}, v{vSm}, v{vSm+1}")
        a.e(f"v_add_f32 v{vLs}, v{vLs}, v{vSm}")
    o_store(a)
    a.e(f"v_mfma_f32_16x16x32_bf16 {vr(vS[0],4)}, {vr(vSel,4)}, {vr(vP,4)}, 0")
    a.e(f"v_mfma_f32_16x16x32_bf16 {vr(vS[0],4)}, {vr(vSel,4)}, {vr(vP+4,4)}, {vr(vS[0],4)}")
    a.e(f"s_mov_b32 s{sT2}, {hex(f2u(2.0**(-30 if 'fb' in Cfg.x else 100)))}")
    a.e(f"v_cmp_nge_f32_e64 {sr(sT0,2)}, s{sT2}, v{vLs}")
    a.e(f"v_mov_b32 v{vT}, 0x207")
    a.e(f"v_cmp_class_f32 vcc, v{vS[0]}, v{vT}")
    a.e(f"s_or_b64 vcc, vcc, {sr(sT0,2)}")
    a.e("s_cbranch_scc1 L_fb")
    a.e("L_fbret:")
def o_store(a):
    a.e(f"v_rcp_f32 v{vT}, v{vLs}")
    for i in range(16): a.e(f"v_mul_f32 v{vO+i}, v{vT}, v{vO+i}")
    pack(a, vP, vO, 8)
    for f in range(2):
        a.e(f"buffer_store_dwordx4 {vr(vP+4*f,4)}, v{vL16}, {sr(sWS,4)}, s{sOFo} offen offset:{f*1024} sc1", tag="ost")
def fallback(a):
    S = vS[0]
    a.e("L_fb:")
    a.e("s_waitcnt vmcnt(0) lgkmcnt(0)")
    a.e(f"s_lshl_b32 s{sT0}, s{sH}, 18")
    a.e(f"s_add_u32 s{sT1}, s{sT0}, {hex(1 << 18)}")
    a.e(f"v_mov_b32 v{vT}, 0xff800000")
    a.e("L_fb1:")
    for f in range(2):
        a.e(f"buffer_load_dwordx4 {vr(vK+4*f,4)}, v{vL16}, {sr(sWS,4)}, s{sT0} offen offset:{f*1024} sc1")
    a.e("s_waitcnt vmcnt(0)")
    a.e(f"v_mfma_f32_32x32x16_bf16 {vr(S,16)}, {vr(vK,4)}, {vr(vQ,4)}, 0")
    a.e(f"v_mfma_f32_32x32x16_bf16 {vr(S,16)}, {vr(vK+4,4)}, {vr(vQ+4,4)}, {vr(S,16)}")
    for i in range(0, 16, 2):
        a.e(f"v_max3_f32 v{vT}, v{vT}, v{S+i}, v{S+i+1}")
    a.e(f"s_add_u32 s{sT0}, s{sT0}, 4096")
    a.e(f"s_cmp_lt_u32 s{sT0}, s{sT1}")
    a.e("s_cbranch_scc1 L_fb1")
    a.e(f"v_mov_b32 v{vT+1}, v{vT}")
    a.e(f"v_permlane32_swap_b32 v{vT}, v{vT+1}")
    a.e(f"v_max_f32 v{vT}, v{vT}, v{vT+1}")
    for i in range(16): a.e(f"v_sub_f32 v{vM+i}, 0, v{vT}")
    for i in range(16): a.e(f"v_mov_b32 v{vO+i}, 0")
    for i in range(4): a.e(f"v_mov_b32 v{vLs+i}, 0")
    a.e(f"s_lshl_b32 s{sT0}, s{sH}, 18")
    a.e("L_fb2:")
    for f in range(4):
        a.e(f"buffer_load_dwordx4 {vr(vK+4*f,4)}, v{vL16}, {sr(sWS,4)}, s{sT0} offen offset:{f*1024} sc1")
    a.e("s_waitcnt vmcnt(0)")
    a.e(f"v_mfma_f32_32x32x16_bf16 {vr(S,16)}, {vr(vK,4)}, {vr(vQ,4)}, {vr(vM,16)}")
    a.e(f"v_mfma_f32_32x32x16_bf16 {vr(S,16)}, {vr(vK+4,4)}, {vr(vQ+4,4)}, {vr(S,16)}")
    for i in range(16): a.e(f"v_exp_f32 v{S+i}, v{S+i}")
    pack(a, vP, S, 8)
    for f in range(2):
        a.e(f"v_mfma_f32_32x32x16_bf16 {vr(vO,16)}, {vr(vV+4*f,4)}, {vr(vP+4*f,4)}, {vr(vO,16)}")
        a.e(f"v_mfma_f32_16x16x32_bf16 {vr(vLs,4)}, {vr(vSel,4)}, {vr(vP+4*f,4)}, {vr(vLs,4)}")
    a.e(f"s_add_u32 s{sT0}, s{sT0}, 4096")
    a.e(f"s_cmp_lt_u32 s{sT0}, s{sT1}")
    a.e("s_nop 15")
    a.e("s_cbranch_scc1 L_fb2")
    o_store(a)
    a.e("s_branch L_fbret")

sTB, sWFo = sJ + 11, sJ + 12
vBD, vBU, vBacc, vBR = 136, 168, 200, 216
TS = 4352
sDo, sUo, vUa = sJ + 6, sJ + 8, 22
def b_setup(a):
    a.e(f"s_and_b32 s{sT0}, s2, 7")
    a.e(f"s_bfe_u32 s{sT1}, s2, 0x20003")
    a.e(f"s_lshl2_add_u32 s{sTB}, s{sT0}, s{sT1}")
    a.e(f"s_lshr_b32 s{sT0}, s{sWAVE}, 1")
    a.e(f"s_lshl3_add_u32 s{sT0}, s{sT0}, s{sCb}")
    a.e(f"s_and_b32 s{sT1}, s{sWAVE}, 1")
    a.e(f"s_lshl1_add_u32 s{sT0}, s{sT0}, s{sT1}")
    a.e(f"s_lshl_b32 s{sT0}, s{sT0}, 13")
    a.e(f"s_add_u32 s{sDo}, s{sT0}, {hex(WS_DF)}")
    a.e(f"s_add_u32 s{sDo+1}, s{sDo}, 4096")
    a.e(f"s_lshl2_add_u32 s{sT0}, s{sCb}, s{sQ}")
    a.e(f"s_lshl{3 if 'hs' in Cfg.x else 1}_add_u32 s{sT0}, s{sT0}, s{sTt}")
    a.e(f"s_lshl_b32 s{sT0}, s{sT0}, {13 if 'hs' in Cfg.x else 15}")
    a.e(f"s_add_u32 s{sWFo}, s{sT0}, {hex(WS_WF)}")
    a.e(f"s_lshr_b32 s{sT0}, s{sWAVE}, 1")
    a.e(f"s_mul_i32 s{sT0}, s{sT0}, {hex(UVSTR)}")
    a.e(f"s_lshl1_add_u32 s{sT1}, s{sTB}, s{sT1}")
    a.e(f"s_lshl_b32 s{sT1}, s{sT1}, 13")
    a.e(f"s_add_u32 s{sT0}, s{sT0}, s{sT1}")
    a.e(f"s_add_u32 s{sUo}, s{sT0}, {hex(WS_UV)}")
    a.e(f"s_add_u32 s{sUo+1}, s{sUo}, 4096")
def df_load(a, j):
    a.e(f"buffer_load_dwordx4 {vr(vBD+4*j,4)}, v{vL16}, {sr(sWS,4)}, s{sDo+j//4} offen offset:{1024*(j%4)} sc1", tag="df")
def uv_setup(a):
    T = vT
    a.e(f"v_lshrrev_b32 v{T}, 5, v{vLANE}")
    a.e(f"v_lshlrev_b32 v{T}, 9, v{T}")
    a.e(f"v_and_b32 v{T+1}, 1, v{vLANE}")
    a.e(f"v_lshl_add_u32 v{T}, v{T+1}, 8, v{T}")
    a.e(f"v_bfe_u32 v{T+1}, v{vLANE}, 1, 4")
    a.e(f"v_lshl_add_u32 v{vUa}, v{T+1}, 4, v{T}")
def uv_load(a, j):
    a.e(f"buffer_load_dwordx4 {vr(vBU+4*j,4)}, v{vUa}, {sr(sWS,4)}, s{sUo+j//4} offen offset:{1024*(j%4)} sc1", tag=("u", j))
def uv_extra(a):
    vm = list(a.vm)
    a.e(f"s_or_b32 s{sT2}, s{sTB}, s{sTt}")
    a.e("s_cbranch_scc1 L_j5e")
    a.e(f"s_add_u32 s{sT0}, s{sUo}, {32*16384}")
    a.e(f"s_add_u32 s{sT1}, s{sUo+1}, {32*16384}")
    for j in range(8):
        a.e(f"buffer_load_dwordx4 {vr(vBR+4*j,4)}, v{vUa}, {sr(sWS,4)}, s{sT0+j//4} offen offset:{1024*(j%4)} sc1")
    a.e("L_j5e:")
    a.vm = vm
def wfreg(n): return 136 + 4 * n if n < 30 else 24 + 4 * (n - 30)
def wf_load(a, n):
    if n % 4 == 0: a.e(f"s_add_u32 s{sJ+10}, s{sWFo}, {(n//8)*16384 + (n//4%2)*4096 if 'hs' in Cfg.x else (n//4)*4096}")
    a.e(f"buffer_load_dwordx4 {vr(wfreg(n),4)}, v{vL16}, {sr(sWS,4)}, s{sJ+10} offen offset:{1024*(n%4)} sc1")
def tile_waddr(a, dst, T):
    a.e(f"v_lshrrev_b32 v{T}, 5, v{vLANE}")
    a.e(f"v_lshl_add_u32 v{dst}, v{T}, 5, v{vL16}")
def b_mfma(a, j):
    a.wait(vm=["df", ("u", j)])
    a.e(f"v_mfma_f32_32x32x16_bf16 {vr(vBacc,16)}, {vr(vBD+4*j,4)}, {vr(vBU+4*j,4)}, {vr(vBacc,16) if j else 0}")
def b_extra(a):
    tile_waddr(a, vUa, vT + 1)
    a.e(f"s_mul_i32 s{sT0}, s{sWAVE}, {TS}")
    a.e(f"v_add_u32 v{vUa}, s{sT0}, v{vUa}")
    vm = list(a.vm); lg = list(a.lg)
    a.e(f"s_or_b32 s{sT2}, s{sTB}, s{sTt}")
    a.e("s_cbranch_scc1 L_j6b")
    a.e("s_waitcnt vmcnt(0)")
    for j in range(8):
        a.e(f"v_mfma_f32_32x32x16_bf16 {vr(vBU,16)}, {vr(vBD+4*j,4)}, {vr(vBR+4*j,4)}, {vr(vBU,16) if j else 0}")
    for q in range(4):
        a.e(f"ds_write_b128 v{vUa}, {vr(vBU+4*q,4)} offset:{8*TS + q*1088}")
    a.e("s_waitcnt lgkmcnt(0)")
    a.e("L_j6b:")
    a.vm = vm; a.lg = lg
def b_write(a):
    for q in range(4):
        a.e(f"ds_write_b128 v{vUa}, {vr(vBacc+4*q,4)} offset:{q*1088}", tag="bw")

vAcc, vGY, vOmg, vFr = 32, 64, 80, 88
vOd0, vOd1, vFl, vRa, vRow, vSt = 81, 82, 83, 84, 85, 86
def rbf(a, r):
    a.e(f"v_cvt_pk_bf16_f32 v{r}, v{r}, v{r}")
    a.e(f"v_and_b32 v{r}, 0xffff0000, v{r}")
def FM(): return " sc1" if "f1" in Cfg.x else " nt" if "f2" in Cfg.x else " sc0 sc1" if "f3" in Cfg.x else ""
def phase3(a, st):
    T = vT
    def oaddr():
        a.e(f"s_lshl_b32 s{sT0}, s{sTB}, 16")
        a.e(f"v_add_u32 v{vOd0}, s{sT0}, v{vL16}")
        a.e(f"s_sub_u32 s{sT0}, 63, s{sTB}")
        a.e(f"s_sub_u32 s{sT1}, 64, s{sTB}")
        a.e(f"s_cmp_eq_u32 s{sTB}, 0")
        a.e(f"s_cselect_b32 s{sT1}, 32, s{sT1}")
        a.e(f"v_and_b32 v{T}, 31, v{vLANE}")
        a.e(f"v_cmp_eq_u32 vcc, 0, v{T}")
        a.e(f"v_mov_b32 v{T+2}, s{sT0}")
        a.e(f"v_mov_b32 v{T+3}, s{sT1}")
        a.e(f"v_cndmask_b32 v{T+2}, v{T+2}, v{T+3}, vcc")
        a.e(f"v_sub_u32 v{T}, 32, v{T}")
        a.e(f"v_and_b32 v{T}, 31, v{T}")
        a.e(f"v_and_b32 v{T+3}, 32, v{vLANE}")
        a.e(f"v_add_u32 v{T}, v{T}, v{T+3}")
        a.e(f"v_lshlrev_b32 v{T}, 4, v{T}")
        a.e(f"v_lshl_add_u32 v{vOd1}, v{T+2}, 16, v{T}")
        a.e(f"v_cmp_eq_u32 vcc, 0, v{T+3}")
        a.e(f"v_mov_b32 v{T}, s{sTB}")
        a.e(f"v_cndmask_b32 v{T+2}, v{T+2}, v{T}, vcc")
        a.e(f"v_lshlrev_b32 v{vFl}, 10, v{T+2}")
    vPo, sMk = 4, sJ + 8
    def opoll(r=vPo):
        a.e(f"s_mov_b64 exec, {sr(sMk,2)}")
        poll256_issue(a, (vFl, sJ + 6), r)
        a.e("s_mov_b64 exec, -1")
    if 'es' in Cfg.x:
        oaddr()
        a.e(f"s_lshl_b32 s{sJ+6}, s{sWAVE}, 7")
        a.e(f"s_add_u32 s{sJ+6}, s{sJ+6}, {hex(FL_O)}")
        a.e(f"s_mov_b32 s{sMk}, 1"); a.e(f"s_mov_b32 s{sMk+1}, 3")
        opoll()
    a.e(f"v_lshrrev_b32 v{T}, 3, v{vLANE}")
    a.e(f"s_lshl_b32 s{sT0}, s{sQ}, 3")
    a.e(f"v_add_u32 v{T}, s{sT0}, v{T}")
    a.e(f"v_and_b32 v{T+1}, 7, v{vLANE}")
    a.e(f"v_mul_u32_u24 v{vRa}, 544, v{T+1}")
    a.e(f"v_mov_b32 v{T+5}, v{vRa}")
    a.e(f"v_lshl_add_u32 v{vRa}, v{T}, 4, v{vRa}")
    for t in range(8):
        a.e(f"ds_read_b128 {vr(vFr+4*t,4)}, v{vRa} offset:{t*TS}", tag=("pm", t))
    a.e(f"s_lshl_b32 s{sT0}, s{sTB}, 5")
    a.e(f"v_add_u32 v{T}, s{sT0}, v{T}")
    a.e(f"v_sub_u32 v{T+2}, 2048, v{T}")
    a.e(f"v_cmp_eq_u32 vcc, 0, v{T}")
    a.e(f"v_mov_b32 v{T+3}, 1024")
    a.e(f"v_cndmask_b32 v{T+2}, v{T+2}, v{T+3}, vcc")
    a.e(f"v_cndmask_b32 v{T+3}, v{T}, v{T+3}, vcc")
    a.e(f"s_cmp_lg_u32 s{sTt}, 0")
    a.e(f"s_cselect_b64 vcc, -1, 0")
    a.e(f"v_cndmask_b32 v{vRow}, v{T}, v{T+2}, vcc")
    a.e(f"v_cndmask_b32 v{T+3}, v{T}, v{T+3}, vcc")
    a.e(f"v_lshlrev_b32 v{T+2}, 2, v{vRow}")
    a.e(f"v_lshlrev_b32 v{T+3}, 5, v{T+3}")
    a.e(f"v_lshlrev_b32 v{T}, 5, v{T}")
    a.e(f"s_mov_b32 s{sT0}, {hex(WS_GP)}")
    a.e(f"s_mov_b32 s{sT1}, {hex(WS_ZC)}")
    a.e(f"s_mov_b32 s{sT2}, {hex(WS_ZC+ZSTR)}")
    G, ZC, ZW, ZS = 32, 36, 40, 44
    a.e(f"buffer_load_dword v{G}, v{T+2}, {sr(sWS,4)}, s{sT0} offen sc1", tag="sm")
    a.e(f"buffer_load_dwordx4 {vr(ZC,4)}, v{T+3}, {sr(sWS,4)}, s{sT1} offen sc1", tag="sm")
    a.e(f"buffer_load_dwordx4 {vr(ZW,4)}, v{T+3}, {sr(sWS,4)}, s{sT1} offen offset:16 sc1", tag="sm")
    a.e(f"buffer_load_dwordx4 {vr(ZS,4)}, v{T}, {sr(sWS,4)}, s{sT2} offen sc1", tag="sm")
    if 'es' not in Cfg.x: oaddr()
    for t in range(0, 8, 2):
        a.wait(lg=("pm", t + 1))
        for i in range(4): a.e(f"v_add_f32 v{vFr+4*t+i}, v{vFr+4*t+i}, v{vFr+4*t+4+i}")
    a.e(f"s_xor_b32 s{sT0}, s{sWAVE}, 4")
    a.e(f"s_or_b32 s{sT0}, s{sT0}, s{sTB}")
    a.e(f"s_cmp_lg_u32 s{sT0}, 0")
    a.e("s_cbranch_scc1 L_norow")
    a.e("s_mov_b64 exec, 0xff")
    for pe in range(2):
        for k in range(8):
            d = vFr + 8 * pe if k == 0 else 48
            a.e(f"ds_read_b128 {vr(d,4)}, v{T+5} offset:{(8+2*pe+k//4)*TS + (k%4)*16}")
            a.e("s_waitcnt lgkmcnt(0)")
            if k:
                for i in range(4): a.e(f"v_add_f32 v{vFr+8*pe+i}, v{vFr+8*pe+i}, v{48+i}")
    a.e("s_mov_b64 exec, -1")
    a.e("L_norow:")
    a.wait(vm="ost")
    a.e(f"s_sub_u32 s{sT0}, s{sOFo}, {hex(WS_OF)}")
    if 'hs' in Cfg.x:
        a.e(f"s_lshr_b32 s{sT0}, s{sT0}, 16")
        a.e(f"s_lshl3_add_u32 s{sT0}, s{sT0}, s{sCb}")
        a.e(f"s_lshl_b32 s{sT0}, s{sT0}, 7")
        a.e(f"s_lshl2_add_u32 s{sT0}, s{sArr}, s{sT0}")
    else:
        a.e(f"s_lshr_b32 s{sT0}, s{sT0}, 13")
        a.e(f"s_lshl_b32 s{sT0}, s{sT0}, 7")
        a.e(f"s_and_b32 s{sT1}, s{sH}, 3")
        a.e(f"s_lshl2_add_u32 s{sT0}, s{sT1}, s{sT0}")
    a.e(f"s_add_u32 s{sT0}, s{sT0}, {hex(FL_O)}")
    a.e(f"v_mov_b32 v{T+4}, s{sTAG}")
    a.e(f"buffer_store_dword v{T+4}, v{vLz}, {sr(sWS,4)}, s{sT0} offen sc1")
    st()
    if 'p2' in Cfg.x: opoll(vPo + 4)
    if 'es' not in Cfg.x:
        a.e(f"s_lshl_b32 s{sJ+6}, s{sWAVE}, 7")
        a.e(f"s_add_u32 s{sJ+6}, s{sJ+6}, {hex(FL_O)}")
        a.e("s_mov_b32 exec_lo, 1"); a.e("s_mov_b32 exec_hi, 3")
        poll256_issue(a, (vFl, sJ + 6), 48)
        a.e("s_mov_b64 exec, -1")
    a.wait(vm="sm")
    for r in (ZC, ZW, ZS):
        a.e(f"v_add_f32 v{r}, v{r}, v{r+1}")
        a.e(f"v_add_f32 v{r+2}, v{r+2}, v{r+3}")
        a.e(f"v_add_f32 v{r}, v{r}, v{r+2}")
    rbf(a, G)
    a.e(f"v_mul_f32 v{G}, {hex(f2u(-math.log2(math.e)))}, v{G}")
    a.e(f"v_exp_f32 v{G}, v{G}")
    a.e(f"v_add_f32 v{ZW}, v{ZW}, v{ZC}")
    a.e(f"v_add_f32 v{G}, 1.0, v{G}")
    a.e(f"v_rcp_f32 v{G}, v{G}")
    for i in range(4):
        a.e(f"v_{'sub' if i % 2 else 'add'}_f32 v{vFr+i}, v{vFr+i}, v{ZC}")
        a.e(f"v_{'add' if i % 2 else 'sub'}_f32 v{vFr+24+i}, v{vFr+24+i}, v{ZS}")
    rbf(a, G)
    a.e(f"v_sub_f32 v{vOmg}, 1.0, v{G}")
    rbf(a, vOmg)
    a.e(f"s_cmp_lg_u32 s{sTt}, 0")
    a.e(f"s_cselect_b32 s{sT0}, 1.0, -1.0")
    for pe in range(2):
        for i in range(4):
            P, Q = vFr + 8 * pe + i, vFr + 16 + 8 * pe + i
            a.e(f"v_fma_f32 v{vGY+4*pe+i}, v{Q}, s{sT0}, v{P}")
            a.e(f"v_fma_f32 v{vGY+8+4*pe+i}, v{Q}, -s{sT0}, v{P}")
    a.e(f"v_or_b32 v{T}, s{sCb}, v{T+1}")
    a.e(f"v_cmp_eq_u32 vcc, 0, v{T}")
    a.e(f"v_cndmask_b32 v{vGY+8}, v{vGY+8}, v{ZW}, vcc")
    for i in range(16): a.e(f"v_mul_f32 v{vGY+i}, v{G}, v{vGY+i}")
    a.e(f"s_lshl_b32 s{sT0}, s{sCb}, 7")
    a.e(f"v_lshl_add_u32 v{T}, v{T+1}, 4, s{sT0}")
    a.e(f"v_lshlrev_b32 v{vRow}, 11, v{vRow}")
    a.e(f"v_add_u32 v{vSt}, v{vRow}, v{T}")
    a.e(f"v_sub_u32 v{T}, {2048-16}, v{T}")
    a.e(f"v_add_u32 v{vSt+1}, v{vRow}, v{T}")
    a.e(f"v_add_u32 v{vRow}, {1024-16}, v{vRow}")
    a.e(f"v_cndmask_b32 v{vRow}, v{vSt+1}, v{vRow}, vcc")
    a.e(f"s_lshl_b32 s{sT0}, s{sTt}, 14")
    a.e(f"v_add_u32 v{T}, s{sT0}, v{vL16}")
    a.e(f"v_add_u32 v{T+1}, 65536, v{T}")
    es = 'es' in Cfg.x
    a.e("s_waitcnt lgkmcnt(0)" if es else "s_waitcnt vmcnt(0) lgkmcnt(0)")
    a.e("s_barrier")
    if not es:
        a.e("s_mov_b32 exec_lo, 1"); a.e("s_mov_b32 exec_hi, 3")
        poll256_check(a, (vFl, sJ + 6), 48, "L_po", slp=8 if "s8" in Cfg.x else 1)
        a.e("s_mov_b64 exec, -1")
        st()
    base = [65536, 98304, 0, 32768]
    a.e(f"s_lshl_b32 s{sT0}, s{sWAVE}, 12")
    a.e(f"s_lshl_b32 s{sT1}, s{sWAVE}, {11 if 'hs' in Cfg.x else 13}")
    a.e(f"s_add_u32 s{sT1}, s{sT1}, {hex(WS_OF)}")
    a.e(f"s_mov_b32 s{sSpin}, 0")
    ds = 'ds' in Cfg.x
    sN, sRd, sOl, sOs = sJ + 7, sJ + 10, sJ + 13, sJ + 12
    def bnd(j):
        vm = list(a.vm)
        if j == 0:
            a.e(f"s_add_u32 s{sOl}, s{sT0}, 65536")
            a.e(f"s_mov_b32 s{sOs}, s{sT1}")
            a.e(f"s_mov_b32 s{sN}, 0")
            a.e(f"s_branch L_bq{j}")
        else:
            a.e(f"s_cmp_eq_u32 s{sN}, 4")
            a.e(f"s_cbranch_scc1 L_be{j}")
        a.e(f"L_bw{j}:")
        a.e("s_waitcnt vmcnt(0)")
        a.e(f"L_bq{j}:")
        for k in range(j + 1 if j else 0, 4):
            a.e(f"v_cmp_ne_u32 vcc, s{sTAG}, v{vPo+k}")
            a.e(f"s_and_b64 vcc, vcc, {sr(sMk,2)}")
            first = k == (j + 1 if j else 0)
            a.e(f"s_cselect_b32 s{sRd if first else sT2}, 0, {1 << k}")
            if not first: a.e(f"s_or_b32 s{sRd}, s{sRd}, s{sT2}")
        a.e(f"L_bt{j}:")
        a.e(f"s_bitcmp1_b32 s{sRd}, s{sN}")
        a.e(f"s_cbranch_scc0 L_bn{j}")
        for rs in range(2):
            a.e(f"s_add_u32 m0, s{sOl}, {rs*2048}")
            for f in range(2):
                a.e(f"buffer_load_dwordx4 v{[vOd0, vOd1][rs]}, {sr(sWS,4)}, s{sOs} offen offset:{f*1024} sc1 lds")
        a.e(f"s_add_u32 s{sOs}, s{sOs}, {16384 if 'hs' in Cfg.x else 2048}")
        a.e(f"s_add_u32 s{sOl}, s{sOl}, 32768")
        a.e(f"s_and_b32 s{sOl}, s{sOl}, 0x1ffff")
        a.e(f"s_add_u32 s{sN}, s{sN}, 1")
        a.e(f"s_branch L_bt{j}")
        a.e(f"L_bn{j}:")
        a.e(f"s_cmp_eq_u32 s{sN}, 4")
        a.e(f"s_cbranch_scc1 L_be{j}")
        opoll()
        a.e(f"s_add_u32 s{sSpin}, s{sSpin}, 1")
        a.e(f"s_cmp_ge_u32 s{sSpin}, 0x40000")
        a.e(f"s_cbranch_scc1 L_be{j}")
        a.e(f"s_cmp_le_u32 s{sN}, {j+1}")
        a.e(f"s_cbranch_scc1 L_bw{j}")
        if j == 0: a.e("s_waitcnt vmcnt(5)")
        a.e(f"L_be{j}:")
        a.vm = vm + ([("O", k) for k in range(4) for _ in range(4)] if j == 0 else [])
        if j == 0: st()
    for j in range(0 if ds else 4):
        if es:
            vm = list(a.vm)
            a.e(f"L_po{j}:")
            a.e(f"v_cmp_ne_u32 vcc, s{sTAG}, v{vPo+j}")
            a.e(f"s_and_b64 vcc, vcc, {sr(sMk,2)}")
            a.e(f"s_cbranch_scc0 L_pk{j}")
            if 'p2' in Cfg.x:
                a.e(f"s_cmp_lg_u32 s{sSpin}, 0")
                a.e(f"s_cbranch_scc1 L_pn{j}")
                a.e(f"s_waitcnt vmcnt({4*j})")
                for i in range(4): a.e(f"v_mov_b32 v{vPo+i}, v{vPo+4+i}")
                a.e(f"s_mov_b32 s{sSpin}, 1")
                a.e(f"s_branch L_po{j}")
                a.e(f"L_pn{j}:")
            for z in (1, 3, 6):
                if f"z{z}" in Cfg.x: a.e(f"s_sleep {z}")
            opoll()
            a.e("s_waitcnt vmcnt(0)")
            a.e(f"s_add_u32 s{sSpin}, s{sSpin}, 1")
            a.e(f"s_cmp_lt_u32 s{sSpin}, 0x40000")
            a.e(f"s_cbranch_scc1 L_po{j}")
            a.e(f"L_pk{j}:")
            a.vm = vm
            if j == 3: st()
        for rs in range(2):
            a.e(f"s_add_u32 m0, s{sT0}, {base[j] + rs*2048}")
            for f in range(2):
                a.e(f"buffer_load_dwordx4 v{[vOd0, vOd1][rs]}, {sr(sWS,4)}, s{sT1} offen offset:{f*1024} sc1 lds", tag=("O", j))
        if j < 3: a.e(f"s_add_u32 s{sT1}, s{sT1}, {16384 if 'hs' in Cfg.x else 2048}")
    D = 3
    w3 = 'w3' in Cfg.x
    def item(n, i):
        j, k = divmod(n, 8)
        return (2 * (k % 4) + i, k // 4) if (w3 and j == 3) else (k, i)
    W = T + 2 if w3 else T
    def waddr():
        tile_waddr(a, W, W + 1)
        a.e(f"s_lshl1_add_u32 s{sT0}, s{sQ}, s{sTt}")
        a.e(f"s_mul_i32 s{sT0}, s{sT0}, {TS}")
        a.e(f"s_add_u32 s{sT0}, s{sT0}, 65536")
        a.e(f"v_add_u32 v{W}, s{sT0}, v{W}")
        a.e(f"s_mul_i32 s{sT0}, s{sTt}, {8*TS}")
        a.e(f"s_add_u32 s{sT0}, s{sT0}, 65536")
        a.e(f"v_add_u32 v{vRa}, s{sT0}, v{vRa}")
    def wr(rs, q): a.e(f"ds_write_b128 v{W}, {vr(vAcc+16*rs+4*q,4)} offset:{rs*8*TS + q*1088}")
    def rd(n):
        j, k = divmod(n, 8)
        if k == 0:
            if ds and j < 3: bnd(j)
            a.wait(vm=("O", j)); a.e("s_barrier")
        for i in range(2):
            kk, rs = item(n, i)
            a.e(f"ds_read_b128 {vr(vFr + (n % 6)*8 + 4*i, 4)}, v{T+1 if j < 2 else T} offset:{(j%2)*32768 + (kk//2)*4096 + rs*2048 + (kk%2)*1024}", tag=("o", n))
    for n in range(D): rd(n)
    for n in range(32):
        j, k = divmod(n, 8)
        a.wait(lg=("o", n))
        for i in range(2):
            kk, rs = item(n, i)
            wf = wfreg(8 * j + kk if 'hs' in Cfg.x else 8 * (kk // 2) + 2 * j + kk % 2)
            acc = vr(vAcc + 16 * rs, 16)
            a.e(f"v_mfma_f32_32x32x16_bf16 {acc}, {vr(wf,4)}, {vr(vFr + (n%6)*8 + 4*i, 4)}, {acc if n else 0}")
            if w3 and n >= 30: wr(0, 2 * (n - 30) + i)
        if w3 and n == 4: waddr()
        if n + D < 32: rd(n + D)
        if n == 2 and 'gs' not in Cfg.x: st()
    if 'gs' not in Cfg.x: st()
    if not w3: waddr()
    for rs in range(1 if w3 else 0, 2):
        for q in range(4): wr(rs, q)
    a.e("s_waitcnt lgkmcnt(0)")
    a.e("s_barrier")
    for t in range(8):
        a.e(f"ds_read_b128 {vr(vFr+4*t,4)}, v{vRa} offset:{t*TS}", tag=("fb", t))
    for c in range(4):
        a.wait(lg=("fb", 2 * c + 1))
        for i in range(4):
            a.e(f"v_add_f32 v{vFr+8*c+i}, v{vFr+8*c+i}, v{vFr+8*c+4+i}")
        for i in range(4):
            a.e(f"v_fma_f32 v{vGY+4*c+i}, v{vFr+8*c+i}, v{vOmg}, v{vGY+4*c+i}")
        if c == 1:
            for i in range(4): a.e(f"v_cvt_pk_bf16_f32 v{32+i}, v{vGY+i}, v{vGY+4+i}")
            a.e(f"buffer_store_dwordx4 {vr(32,4)}, v{vSt}, {sr(sOUT,4)}, 0 offen{FM()}")
    E, Od = vGY + 8, vGY + 12
    for i in range(3): a.e(f"v_cvt_pk_bf16_f32 v{36+i}, v{E+3-i}, v{Od+2-i}")
    a.e(f"v_cvt_pk_bf16_f32 v40, v{Od+3}, v{E}")
    a.e(f"buffer_store_dwordx3 {vr(36,3)}, v{vSt+1}, {sr(sOUT,4)}, 0 offen offset:4{FM()}")
    a.e(f"buffer_store_short v40, v{vSt+1}, {sr(sOUT,4)}, 0 offen offset:2{FM()}")
    a.e(f"buffer_store_short_d16_hi v40, v{vRow}, {sr(sOUT,4)}, 0 offen offset:16{FM()}")


def kernel_a():
    a = Asm(); st = Stamper(a)
    if Cfg.stamps: a.e("s_memrealtime s[96:97]")
    st()
    prologue(a, st)
    phase1(a, st)
    epilogue1(a, st)
    attention(a, st)
    phase3(a, st)
    if Cfg.stamps or "nw" not in Cfg.x:
        a.e("s_waitcnt vmcnt(0) lgkmcnt(0)")
        st()
        st.dump()
        a.e("s_waitcnt vmcnt(0)")
    a.e("L_end:")
    a.e("s_endpgm")
    n0 = st.n
    if "lf" not in Cfg.x:
        st.n = 1; loader(a, st)
    st.n = 1; p0wave(a, st)
    fallback(a)
    a.verify_edges()
    return a

HEADER = open("cdna_kernels/" + NAME + ".s.ref").read().split("; Override launch")[0]

def wrap(kernels):
    out = HEADER
    if len(kernels) == 1:
        l, a, g, b, lds, nv = kernels[0]
        out += f"; @launch grid=({g},1,1) block=({b},1,1) lds={lds}\n"
    else:
        for l, a, g, b, lds, nv in kernels:
            out += f"; @launch kernel={l} grid=({g},1,1) block=({b},1,1) lds={lds}\n"
    out += '.amdgcn_target "amdgcn-amd-amdhsa--gfx950"\n.text\n'
    for l, a, g, b, lds, nv in kernels:
        out += f".globl {l}\n.p2align 8\n.type {l},@function\n{l}:\n" + a.text()
    out += '.section .rodata,"a"\n'
    for l, a, g, b, lds, nv in kernels:
        acc = (nv + 3) // 4 * 4
        out += f""".p2align 6
.amdhsa_kernel {l}
  .amdhsa_next_free_vgpr {nv}
  .amdhsa_next_free_sgpr 102
  .amdhsa_accum_offset {acc}
  .amdhsa_group_segment_fixed_size 0
  .amdhsa_kernarg_size 96
  .amdhsa_user_sgpr_count 2
  .amdhsa_user_sgpr_kernarg_segment_ptr 1
  .amdhsa_system_sgpr_workgroup_id_x 1
.end_amdhsa_kernel
"""
    return out

if __name__ == "__main__":
    outp = sys.argv[1] if len(sys.argv) > 1 else "dev.s"
    Cfg.stamps = "--stamps" in sys.argv
    Cfg.pf = "--nopf" not in sys.argv
    Cfg.x = {t[2:] for t in sys.argv if t.startswith("-x")}
    Cfg.jg = 1 if "jg" in Cfg.x else 0
    a = kernel_a()
    open(outp, "w").write(wrap([(NAME + "_kernel", a, 256, 512, 163840, NVGPR)]))
    print("instrs", len(a.ins), "auto nops", a.nops)
```
